```python
import torch

def _softmax(x, axis=-1):
    return torch.softmax(x, dim=axis)
def _gelu(x):
    return torch.nn.functional.gelu(x, approximate="tanh")
def _silu(x):
    return torch.nn.functional.silu(x)
def _sigmoid(x):
    return torch.sigmoid(x)
def _layernorm(x, axis=-1, eps=1e-5):
    m = x.mean(dim=axis, keepdim=True)
    v = x.var(dim=axis, keepdim=True, unbiased=False)
    return (x - m) / torch.sqrt(v + eps)
def _scatter_add(tgt, idx, src, axis=0):
    return tgt.clone().index_add_(axis, idx, src)
def _segment_sum(src, seg, n):
    out = torch.zeros((n,) + src.shape[1:], dtype=src.dtype)
    return out.index_add_(0, seg, src)
def _pad(x, pw):
    flat = tuple(v for pair in reversed(pw) for v in pair)
    return torch.nn.functional.pad(x, flat)

kernel_name = 'gated_mix__linear_attn_block__ssm_conv_s4__prompt'

def setup_inputs():

    _w = (lambda a: (lambda t: t.to(torch.bfloat16) if t.is_floating_point() else t)(torch.as_tensor(a)))
    def _A_setup():
        B, S, D = 1, 2048, 512
        return {
            "x": _w((lambda *s: torch.randn(*s, dtype=torch.bfloat16) * 0.05)(B, S, D)),
            "wqkv": _w((lambda *s: torch.randn(*s, dtype=torch.bfloat16) * 0.8)(D, 3 * D)),
            "wo": _w((lambda *s: torch.randn(*s, dtype=torch.bfloat16) * 0.05)(D, D)),
        }
    _A_in = _A_setup()

    def _B_setup():
        B, L, D, N = 1, 2048, 512, 128
        A_re = -(lambda _x: torch.exp(torch.as_tensor(_x)))((lambda *s: torch.randn(*s, dtype=torch.bfloat16) * 3.2)(D, N))
        A_im = torch.pi * (lambda *s: torch.randn(*s, dtype=torch.bfloat16) * 0.05)(D, N)
        B_re = (lambda *s: torch.randn(*s, dtype=torch.bfloat16) * 0.2)(D, N)
        B_im = (lambda *s: torch.randn(*s, dtype=torch.bfloat16) * 0.2)(D, N)
        C_re = (lambda *s: torch.randn(*s, dtype=torch.bfloat16) * 0.2)(D, N)
        C_im = (lambda *s: torch.randn(*s, dtype=torch.bfloat16) * 0.2)(D, N)
        log_dt = (lambda *s: torch.randn(*s, dtype=torch.bfloat16) * 0.05)(D) * 0.5 - 4.0
        Dskip = (lambda *s: torch.randn(*s, dtype=torch.bfloat16) * 0.05)(D)
        return {
            "u": _w((lambda *s: torch.randn(*s, dtype=torch.bfloat16) * 0.05)(B, L, D)),
            "A_re": _w(A_re),
            "A_im": _w(A_im),
            "B_re": _w(B_re),
            "B_im": _w(B_im),
            "C_re": _w(C_re),
            "C_im": _w(C_im),
            "log_dt": _w(log_dt),
            "Dskip": _w(Dskip),
        }
    _B_in = _B_setup()

    return {
        "A_x": _A_in["x"],
        "A_wqkv": _A_in["wqkv"],
        "A_wo": _A_in["wo"],
        "B_u": _B_in["u"],
        "B_A_re": _B_in["A_re"],
        "B_A_im": _B_in["A_im"],
        "B_B_re": _B_in["B_re"],
        "B_B_im": _B_in["B_im"],
        "B_C_re": _B_in["C_re"],
        "B_C_im": _B_in["C_im"],
        "B_log_dt": _B_in["log_dt"],
        "B_Dskip": _B_in["Dskip"],
        "gate_w": _w((lambda *s: torch.randn(*s, dtype=torch.bfloat16) * 0.05)(512) * 16.0),
    }

def reference(A_x, A_wqkv, A_wo, B_u, B_A_re, B_A_im, B_B_re, B_B_im, B_C_re, B_C_im, B_log_dt, B_Dskip, gate_w):
    def _A_ref(x, wqkv, wo):
        B, S, D = x.shape
        H = 32; Dh = D // H
        qkv = (lambda x, *d: x.permute(*d))((x @ wqkv).reshape(B, S, 3, H, Dh), 2, 0, 3, 1, 4)
        q, k, v = qkv[0], qkv[1], qkv[2]
        phi = lambda t: torch.where(t > 0, t + 1, torch.exp(t)) + 1e-6
        pq, pk = phi(q), phi(k)
        kv = torch.einsum("bhsd,bhse->bhde", pk, v)
        z = torch.einsum("bhsd->bhd", pk)
        num = torch.einsum("bhqd,bhde->bhqe", pq, kv)
        den = torch.einsum("bhqd,bhd->bhq", pq, z)[..., None] + 1e-6
        o = num / den
        return (lambda x, *d: x.permute(*d))(o, 0, 2, 1, 3).reshape(B, S, D) @ wo

    def _B_ref(u, A_re, A_im, B_re, B_im, C_re, C_im, log_dt, Dskip):
        Bsz, L, D = u.shape
        dt = torch.exp(log_dt)[:, None]
        A = A_re + 1j * A_im
        Bc = B_re + 1j * B_im
        Cc = C_re + 1j * C_im
        logdA = dt * A
        dB = dt * Bc
        l = (lambda x, dt: x.to(dt))(torch.arange(L), A_re.dtype)
        P = torch.exp(logdA[:, :, None] * l[None, None, :])
        K = torch.einsum("dn,dnl,dn->dl", Cc, P, dB).real
        L2 = 2 * L
        Kp = _pad(K, ((0, 0), (0, L)))
        up = (lambda x, *d: x.permute(*d))(u, 0, 2, 1)
        up = _pad(up, ((0, 0), (0, 0), (0, L)))
        Kf = (lambda x, axes=(-2,-1): torch.fft.rfft2(x.float(), dim=axes))(Kp[:, None, :], axes=(-2, -1))
        Uf = (lambda x, axes=(-2,-1): torch.fft.rfft2(x.float(), dim=axes))(up[:, :, None, :], axes=(-2, -1))
        Yf = Uf * Kf[None, :, :, :]
        y = (lambda x, s, axes=(-2,-1): torch.fft.irfft2(x, s=s, dim=axes).to(torch.bfloat16))(Yf, (1, L2), axes=(-2, -1))[:, :, 0, :L]
        y = (lambda x, *d: x.permute(*d))(y, 0, 2, 1) + u * Dskip[None, None, :]
        return y

    x = A_x
    g = _sigmoid((x * gate_w).sum(-1, keepdims=True))
    a = _A_ref(x, A_wqkv, A_wo)
    b = _B_ref(x, B_A_re, B_A_im, B_B_re, B_B_im, B_C_re, B_C_im, B_log_dt, B_Dskip)
    return g * a + (1 - g) * b
```

```python
import re

TRANS = ("v_exp_f32","v_log_f32","v_rcp_f32","v_rsq_f32","v_sqrt_f32","v_sin_f32","v_cos_f32")

def regs_of(tok):
    tok = tok.strip()
    tok = re.sub(r"^-", "", tok)
    m = re.match(r"^abs\((.*)\)$", tok) or re.match(r"^\|(.*)\|$", tok)
    if m: tok = m.group(1)
    m = re.match(r"^([vsa])(\d+)$", tok)
    if m: return {(m.group(1), int(m.group(2)))}
    m = re.match(r"^([vsa])\[(\d+):(\d+)\]$", tok)
    if m: return {(m.group(1), i) for i in range(int(m.group(2)), int(m.group(3))+1)}
    if tok in ("vcc","exec","m0","scc"): return {(tok,0)}
    if tok in ("vcc_lo","vcc_hi"): return {("vcc",0)}
    if tok in ("exec_lo","exec_hi"): return {("exec",0)}
    return set()

class Ins:
    def __init__(self, text):
        self.text = text
        t = text.split(";")[0].strip()
        self.is_label = t.endswith(":")
        self.is_dir = t.startswith(".")
        self.op = ""
        self.rd = set(); self.wr = set()
        self.srcA = set(); self.srcC = set()
        if self.is_label or self.is_dir or not t:
            self.empty = True
            return
        self.empty = False
        parts = t.split(None, 1)
        self.op = op = parts[0]
        rest = parts[1] if len(parts) > 1 else ""
        ops = []; cur = ""; depth = 0
        for ch in rest:
            if ch in "[(": depth += 1
            if ch in "])": depth -= 1
            if ch == "," and depth == 0: ops.append(cur.strip()); cur = ""
            else: cur += ch
        if cur.strip(): ops.append(cur.strip())
        mods = ""
        if ops:
            sp = ops[-1].split(None, 1)
            ops[-1] = sp[0]
            mods = sp[1] if len(sp) > 1 else ""
        self.ops = ops; self.mods = mods
        base = re.sub(r"_(e32|e64|dpp|sdwa)$", "", op)
        self.base = base
        self.is_mfma = op.startswith("v_mfma")
        self.is_valu = op.startswith("v_") and not self.is_mfma
        self.is_trans = base in TRANS
        self.is_salu = op.startswith("s_") and not op.startswith(("s_load","s_waitcnt","s_nop","s_barrier","s_branch","s_cbranch","s_endpgm","s_memtime","s_memrealtime","s_setprio","s_sleep","s_atomic","s_buffer"))
        self.is_vmem = op.startswith(("buffer_","global_","flat_")) and op not in ("buffer_wbl2","buffer_inv")
        self.is_ds = op.startswith("ds_")
        self.is_lds_dma = self.is_vmem and (" lds" in (" " + mods) or "load_lds" in op)
        self.is_dpp = ("row_" in mods or "quad_perm" in mods or "wave_" in mods or "row_bcast" in mods or op.endswith("_dpp"))
        self.is_permlane = op.startswith("v_permlane")
        R = [regs_of(o) for o in ops]
        if self.is_mfma:
            self.wr = R[0]; self.srcA = R[1] | R[2]; self.srcC = R[3]; self.rd = self.srcA | self.srcC
            self.passes = 8 if "32x32x16" in op else 4
            if "32x32x2_f32" in op: self.passes = 16
        elif self.is_valu:
            if base.startswith("v_cmp"):
                self.wr = R[0]; self.rd = set().union(*R[1:])
                if base.startswith("v_cmpx"): self.wr |= {("exec",0)}
            elif base in ("v_add_co_u32","v_sub_co_u32","v_subrev_co_u32"):
                self.wr = R[0] | R[1]; self.rd = set().union(*R[2:])
            elif base in ("v_addc_co_u32","v_subb_co_u32"):
                self.wr = R[0] | R[1]; self.rd = set().union(*R[2:])
            elif self.is_permlane and "swap" in op:
                self.wr = R[0] | R[1]; self.rd = R[0] | R[1]
            elif base == "v_nop":
                pass
            else:
                self.wr = R[0]; self.rd = set().union(*R[1:]) if len(R) > 1 else set()
                if base in ("v_fmac_f32","v_pk_fmac_f16","v_dot2c_f32_bf16","v_writelane_b32") or self.is_dpp: self.rd |= R[0]
        elif self.is_vmem:
            if "store" in op or ("atomic" in op):
                self.rd = set().union(*R)
                self.store_data = R[0] if op.startswith("buffer_") else R[1]
                if "atomic" in op and "sc0" in mods:
                    self.wr = R[0]
            elif self.is_lds_dma:
                self.rd = set().union(*R) | {("m0",0)}
            else:
                self.wr = R[0]; self.rd = set().union(*R[1:])
                if "d16" in op: self.rd |= R[0]
        elif self.is_ds:
            if op.startswith(("ds_read","ds_bpermute","ds_permute","ds_swizzle")):
                self.wr = R[0]; self.rd = set().union(*R[1:])
            else:
                self.rd = set().union(*R)
        elif op.startswith("s_"):
            if op.startswith(("s_cmp","s_waitcnt","s_nop","s_barrier","s_branch","s_cbranch","s_endpgm","s_setprio","s_sleep","s_bitcmp")):
                self.rd = set().union(*R) if R else set()
            else:
                self.wr = R[0] if R else set(); self.rd = set().union(*R[1:]) if len(R) > 1 else set()
                if "saveexec" in op: self.wr |= {("exec",0)}
    def states(self):
        if self.empty: return 0
        if self.op == "s_nop": return int(self.ops[0], 0) + 1
        return 1

def vg(s): return {r for r in s if r[0] in "va" and len(r[0]) == 1}
def sg(s): return {r for r in s if r[0] == "s" or r[0] == "vcc"}

def need(p, c):
    n = 0
    if p.is_mfma:
        tab = {4: 8, 8: 12, 16: 20}[p.passes]
        if c.is_mfma:
            if p.wr & c.srcA: n = max(n, tab)
            if p.wr & c.srcC:
                if not (p.wr == c.srcC and p.passes == c.passes): n = max(n, tab - 2)
            if (p.wr & c.wr) and not (p.wr & c.srcC): n = max(n, tab - 2)
        elif c.is_valu:
            if p.wr & (c.rd | c.wr): n = max(n, tab)
            if p.srcC & c.wr: n = max(n, {4: 3, 8: 7, 16: 15}[p.passes])
        elif c.is_vmem or c.is_ds:
            if p.wr & (c.rd | c.wr): n = max(n, tab)
    if p.is_valu:
        if c.is_mfma and (vg(p.wr) & c.rd): n = max(n, 2)
        if c.is_mfma and ("exec",0) in p.wr: n = max(n, 4)
        if p.is_trans and c.is_valu and not c.is_trans and (p.wr & c.rd): n = max(n, 1)
        if p.is_trans and (c.is_ds or c.is_vmem) and (p.wr & c.rd): n = max(n, 1)
        if sg(p.wr):
            if c.is_vmem and (sg(p.wr) & c.rd): n = max(n, 5)
            if c.is_valu and (sg(p.wr) & c.rd):
                n = max(n, 4 if c.base in ("v_readlane_b32","v_writelane_b32") else 2)
        if c.is_valu and c.is_dpp and (vg(p.wr) & c.rd): n = max(n, 2)
        if c.is_valu and c.is_dpp and ("exec",0) in p.wr: n = max(n, 5)
        if c.is_permlane and (vg(p.wr) & c.rd): n = max(n, 2)
        if c.base in ("v_readlane_b32","v_readfirstlane_b32") and (vg(p.wr) & c.rd): n = max(n, 1)
        if p.base.startswith("v_dot2") and c.is_valu and (p.wr & (c.rd | c.wr)):
            if not (c.base == p.base): n = max(n, 3)
            else:
                ab = regs_of(c.ops[1]) | regs_of(c.ops[2])
                if p.wr & ab: n = max(n, 3)
        if ("op_sel" in p.mods and not p.base.startswith("v_pk")) and c.is_valu and (p.wr & (c.rd | c.wr)): n = max(n, 1)
    if p.is_vmem and ("store" in p.op or "atomic" in p.op) and re.search(r"x[34]$", p.op):
        if (c.is_valu or c.is_mfma) and (p.store_data & c.wr): n = max(n, 2)
        elif p.store_data & c.wr: n = max(n, 1)
    if p.is_salu and ("m0",0) in p.wr and c.is_lds_dma: n = max(n, 1)
    return n

def hazard_pass(lines, verbose=False):
    out = []
    ins = []
    WIN = 24
    for text in lines:
        c = Ins(text)
        if not c.empty:
            dist = 0; req = 0
            for p in reversed(ins):
                if p.empty: continue
                if p.op in ("s_endpgm", "s_branch"): break
                r = need(p, c) - dist
                if r > req: req = r
                dist += p.states()
                if dist >= WIN: break
            while req > 0:
                k = min(req, 16)
                nop = Ins(f"    s_nop {k-1}")
                ins.append(nop); req -= k
        ins.append(c)
    labels = {i.text.strip().split(":")[0]: n for n, i in enumerate(ins) if i.is_label}
    errs = []
    for n, b in enumerate(ins):
        if b.empty or not b.op.startswith(("s_branch","s_cbranch")): continue
        tgt = labels.get(b.ops[0])
        if tgt is None: continue
        cd = 0
        for c in ins[tgt:]:
            if c.empty: continue
            dist = cd + 1
            for p in reversed(ins[:n]):
                if p.empty: continue
                if need(p, c) > dist: errs.append(f"HAZARD via branch '{b.text.strip()}': '{p.text.strip()}' -> '{c.text.strip()}' need {need(p,c)} have {dist}")
                dist += p.states()
                if dist >= WIN: break
            cd += c.states()
            if cd >= WIN or c.op in ("s_branch","s_endpgm"): break
    return [i.text for i in ins], errs

class Asm:
    def __init__(self):
        self.lines = []
    def __call__(self, s):
        for l in s.strip("\n").split("\n"):
            l = l.strip()
            if not l: continue
            if l.endswith(":") or l.startswith("."): self.lines.append(l)
            else: self.lines.append("    " + l)
    def label(self, n): self.lines.append(n + ":")
    def c(self, s): self.lines.append("    ; " + s)

def v(n, k=1): return f"v{n}" if k == 1 else f"v[{n}:{n+k-1}]"
def s(n, k=1): return f"s{n}" if k == 1 else f"s[{n}:{n+k-1}]"
def a(n, k=1): return f"a{n}" if k == 1 else f"a[{n}:{n+k-1}]"

def kernel_desc(name, vgpr, sgpr, accum):
    return f""".p2align 6
.amdhsa_kernel {name}
  .amdhsa_next_free_vgpr {vgpr}
  .amdhsa_next_free_sgpr {sgpr}
  .amdhsa_accum_offset {accum}
  .amdhsa_group_segment_fixed_size 0
  .amdhsa_kernarg_size 128
  .amdhsa_user_sgpr_count 2
  .amdhsa_user_sgpr_kernarg_segment_ptr 1
  .amdhsa_system_sgpr_workgroup_id_x 1
.end_amdhsa_kernel
"""
```

```python
import sys, struct
from asmlib import *

PQ_OFF = 0x0
BT_OFF = 0x200000
KV_OFF = 0x400000
HS = 2048
G_OFF = 0x410000
TS_OFF = 0x500000
WS_SIZE = 0x600000
STAMP = "--stamp" in sys.argv

LOG2E = 0x3fb8aa3b
EPS = 0x358637bd

def f2u(x): return struct.unpack("<I", struct.pack("<f", x))[0]

A = Asm()

def srd(base, ptr, size):
    A(f"s_mov_b32 s{base}, s{ptr}\ns_mov_b32 s{base+1}, s{ptr+1}\ns_mov_b32 s{base+2}, {hex(size)}\ns_mov_b32 s{base+3}, 0x20000")

stamp_n = [0]
def stamp_reset(): stamp_n[0] = 0
def stamp():
    if not STAMP: return
    n = stamp_n[0]; stamp_n[0] += 1
    assert n < 16
    A(f"s_memtime s[{64+2*n}:{65+2*n}]")
def stamp_flush(kern, wsrd, vtmp):
    if not STAMP: return
    n = stamp_n[0]
    A("s_memrealtime s[98:99]")
    A("s_waitcnt lgkmcnt(0)")
    A(f"s_lshl_b32 s60, s2, 3\ns_add_u32 s60, s60, s3\ns_lshl_b32 s60, s60, 6\ns_add_u32 s60, s60, {hex(TS_OFF + kern*0x40000)}")
    A(f"v_mov_b32 v{vtmp}, s60")
    A("s_mov_b64 exec, 1")
    for i in range(14):
        src = f"s{64+2*i}" if i < n else "0"
        A(f"v_mov_b32 v{vtmp+1}, {src}")
        A(f"buffer_store_dword v{vtmp+1}, v{vtmp}, s[{wsrd}:{wsrd+3}], 0 offen offset:{4*i}")
    A(f"v_mov_b32 v{vtmp+1}, s96")
    A(f"buffer_store_dword v{vtmp+1}, v{vtmp}, s[{wsrd}:{wsrd+3}], 0 offen offset:56")
    A(f"v_mov_b32 v{vtmp+1}, s98")
    A(f"buffer_store_dword v{vtmp+1}, v{vtmp}, s[{wsrd}:{wsrd+3}], 0 offen offset:60")

P_X, P_W, P_WO, P_ARE, P_AIM, P_BRE, P_BIM, P_CRE, P_CIM, P_LDT, P_DSK, P_GW, P_OUT, P_DBG, P_WS = 16,18,20,24,26,28,30,32,34,36,38,40,42,44,46

def common_prologue(endlabel):
    if STAMP: A("s_memrealtime s[96:97]")
    stamp()
    A(f"""
    s_cmp_ge_u32 s2, 256
    s_cbranch_scc1 {endlabel}
    s_load_dwordx16 s[16:31], s[0:1], 0
    s_load_dwordx16 s[32:47], s[0:1], 64
    v_lshrrev_b32 v1, 6, v0
    v_and_b32 v0, 63, v0
    v_readfirstlane_b32 s3, v1
    """)

SLOT = 40960
def k1():
    A(".p2align 8\nk1_kernel:")
    stamp_reset()
    common_prologue("K1_END")
    A("""
    s_and_b32 s4, s2, 7          ; xcd
    s_lshr_b32 s5, s2, 3         ; j
    s_cmp_ge_u32 s5, 16
    s_cbranch_scc1 K1_SSM
    """)
    A("""
    s_and_b32 s6, s4, 3
    s_lshl_b32 s6, s6, 2
    s_and_b32 s7, s5, 3
    s_add_u32 s6, s6, s7         ; mi
    s_lshr_b32 s7, s4, 2
    s_lshl_b32 s7, s7, 2
    s_lshr_b32 s8, s5, 2
    s_add_u32 s7, s7, s8         ; ni
    s_cmp_ge_u32 s3, 4
    s_cbranch_scc1 K1_LOADER
    """)
    gemm_compute()
    A("K1_LOADER:")
    gemm_loader()
    A("K1_SSM:")
    A("""
    s_sub_u32 s5, s5, 16         ; js
    s_cmp_ge_u32 s3, 4
    s_cbranch_scc1 K1_HELPER
    """)
    ssm_compute()
    A("K1_HELPER:")
    ssm_helper()
    A("K1_END:\ns_endpgm")

def gemm_loader():
    n0 = stamp_n[0]; stamp_n[0] = 1
    X, W, WS = 48, 52, 56
    A("s_sub_u32 s9, s3, 4          ; w")
    A("""
    v_lshrrev_b32 v2, 3, v0      ; lane>>3
    v_and_b32 v3, 7, v0
    v_lshrrev_b32 v4, 4, v0      ; lane>>4
    s_and_b32 s10, s9, 1
    s_lshl_b32 s10, s10, 2
    v_or_b32 v5, s10, v4
    v_xor_b32 v5, v5, v3
    s_lshl_b32 s10, s6, 7
    s_lshl_b32 s11, s9, 3
    s_add_u32 s10, s10, s11
    v_add_u32 v6, s10, v2        ; row
    v_lshlrev_b32 v6, 10, v6
    v_lshl_add_u32 v6, v5, 4, v6 ; vXsrc
    v_and_b32 v4, 1, v4
    v_lshlrev_b32 v4, 2, v4
    v_xor_b32 v4, v4, v3
    v_add_u32 v7, s11, v2
    v_mul_u32_u24 v7, 3072, v7
    v_lshl_add_u32 v7, v4, 4, v7
    s_lshl_b32 s10, s7, 7
    v_add_u32 v7, s10, v7        ; vWsrc
    s_lshl_b32 s12, s9, 10
    s_mul_i32 s13, s9, 3072
    s_add_u32 s13, s13, 16384
    s_lshl_b32 s10, s6, 7
    s_lshl_b32 s11, s7, 4
    s_add_u32 s10, s10, s11
    s_lshl_b32 s11, s9, 2
    s_add_u32 s14, s10, s11
    s_lshl_b32 s10, s14, 10
    v_lshlrev_b32 v8, 4, v0
    v_add_u32 v9, s10, v8
    s_waitcnt lgkmcnt(0)
    """)
    srd(X, P_X, 0x200000); srd(W, P_W, 0x180000); srd(WS, P_WS, WS_SIZE)
    stamp()
    A("s_mov_b32 s15, 0")
    def issue(slot_s, c_s):
        A(f"s_lshl_b32 s61, {c_s}, 7")
        A(f"s_mul_i32 s62, {c_s}, {64*3072}")
        for n in range(4):
            A(f"s_add_u32 s63, {slot_s}, s12")
            A(f"s_add_u32 m0, s63, {n*4096}")
            A(f"s_add_u32 s63, s61, {n*32768}")
            A(f"buffer_load_dwordx4 v6, s[{X}:{X+3}], s63 offen lds")
            if n < 2:
                A(f"s_add_u32 s63, {slot_s}, s13")
                A(f"s_add_u32 m0, s63, {n*4*3072}")
                A(f"s_add_u32 s63, s62, {n*32*3072}")
                for p in range(3):
                    A(f"buffer_load_dwordx4 v7, s[{W}:{W+3}], s63 offen offset:{p*1024} lds")
    A("""
    s_mov_b32 s4, 0
    s_mov_b32 s5, 0
K1_LD_LOOP:
    s_cmp_lt_u32 s4, 4
    s_cbranch_scc1 K1_LD_ISSUE
    s_cmp_lg_u32 s4, 4
    s_cbranch_scc1 K1_LD_W20
    s_waitcnt vmcnt(30)
    s_barrier
K1_LD_W20:
    s_waitcnt vmcnt(20)
    s_barrier
K1_LD_ISSUE:
    s_add_u32 s60, s4, s15
    s_and_b32 s60, s60, 7
    """)
    issue("s5", "s60")
    A(f"""
    s_add_u32 s5, s5, {SLOT}
    s_cmp_eq_u32 s5, {4*SLOT}
    s_cselect_b32 s5, 0, s5
    s_add_u32 s4, s4, 1
    s_cmp_lt_u32 s4, 8
    s_cbranch_scc1 K1_LD_LOOP
    """)
    for r in range(4):
        A(f"buffer_load_dwordx4 v[{16+4*r}:{19+4*r}], v9, s[{X}:{X+3}], 0 offen offset:{r*1024}")
    A(f"global_load_dwordx4 v[32:35], v8, s[{P_GW}:{P_GW+1}]")
    A("""
    s_waitcnt vmcnt(25)
    s_barrier
    s_waitcnt vmcnt(15)
    s_barrier
    s_waitcnt vmcnt(5)
    s_barrier
    s_waitcnt vmcnt(0)
    """)
    stamp()
    for r in range(4):
        A(f"v_mov_b32 v{40+r}, 0")
    for i in range(4):
        for r in range(4):
            A(f"v_dot2c_f32_bf16 v{40+r}, v{16+4*r+i}, v{32+i}")
    for m in ("row_shr:1","row_shr:2","row_shr:4","row_shr:8"):
        for r in range(4):
            A(f"v_add_f32_dpp v{40+r}, v{40+r}, v{40+r} {m} row_mask:0xf bank_mask:0xf bound_ctrl:0")
    for m in ("row_bcast:15 row_mask:0xa","row_bcast:31 row_mask:0xc"):
        for r in range(4):
            A(f"v_add_f32_dpp v{40+r}, v{40+r}, v{40+r} {m} bank_mask:0xf")
    for r in range(4):
        A(f"v_mul_f32 v{40+r}, {hex(f2u(-1.4426950408889634))}, v{40+r}")
    for r in range(4):
        A(f"v_exp_f32 v{40+r}, v{40+r}")
    for r in range(4):
        A(f"v_add_f32 v{40+r}, 1.0, v{40+r}")
    for r in range(4):
        A(f"v_rcp_f32 v{40+r}, v{40+r}")
    A(f"""
    s_lshl_b32 s10, s14, 2
    s_add_u32 s10, s10, {hex(G_OFF)}
    v_mov_b32 v10, s10
    s_mov_b32 exec_lo, 0
    s_mov_b32 exec_hi, 0x80000000
    buffer_store_dwordx4 v[40:43], v10, s[{WS}:{WS+3}], 0 offen
    """)
    stamp()
    stamp_flush(0, WS, 100)
    A("s_endpgm")
    stamp_n[0] = n0

def gemm_compute():
    n0 = stamp_n[0]
    WS = 56
    ACC = {"q": (64, 80), "k": (96, 112), "v": (128, 144)}
    SET = (16, 36)
    A("""
    s_and_b32 s8, s3, 1          ; mw
    s_lshr_b32 s9, s3, 1         ; nw
    v_and_b32 v1, 31, v0
    v_lshrrev_b32 v2, 5, v0      ; hf
    v_bfe_u32 v3, v0, 1, 3       ; f
    v_xor_b32 v3, v3, v2         ; hf^f
    s_lshl_b32 s10, s8, 6
    v_add_u32 v1, s10, v1
    v_lshlrev_b32 v1, 7, v1      ; row*128
    """)
    for ks in range(4):
        A(f"v_xor_b32 v{4+ks}, {2*ks}, v3")
        A(f"v_lshl_add_u32 v{4+ks}, v{4+ks}, 4, v1")
    A("""
    v_mul_u32_u24 v8, 3072, v2   ; (g>>1)*3072
    v_bfe_u32 v1, v0, 2, 2       ; l'>>2
    v_lshl_add_u32 v8, v1, 7, v8
    v_bfe_u32 v1, v0, 4, 1       ; g&1
    v_lshlrev_b32 v1, 5, v1
    v_and_b32 v3, 3, v0
    v_lshl_add_u32 v1, v3, 3, v1
    s_lshl_b32 s10, s9, 6
    v_add_u32 v1, s10, v1
    v_bfe_u32 v3, v0, 3, 1
    v_lshlrev_b32 v3, 6, v3
    v_xor_b32 v1, v1, v3
    v_add_u32 v8, v8, v1
    v_add_u32 v8, 16384, v8      ; vWa
    """)
    for r in range(64, 160):
        A(f"v_mov_b32 v{r}, 0")
    A("s_waitcnt lgkmcnt(0)")
    srd(WS, P_WS, WS_SIZE)
    def reads(ks, st):
        b = SET[st]
        L = [f"ds_read_b128 v[{b}:{b+3}], v{9+ks}",
             f"ds_read_b128 v[{b+4}:{b+7}], v{9+ks} offset:4096"]
        for p in range(3):
            for t in range(2):
                L.append(f"ds_read_b64_tr_b16 v[{b+8+4*p+2*t}:{b+9+4*p+2*t}], v13 offset:{ks*6144+p*1024+t*512}")
        return L
    def mfmas(st):
        b = SET[st]
        L = []
        for p, nm in enumerate("qkv"):
            for mb in range(2):
                d = ACC[nm][mb]
                xf = f"v[{b+4*mb}:{b+4*mb+3}]"; wf = f"v[{b+8+4*p}:{b+11+4*p}]"
                if nm == "q": L.append(f"v_mfma_f32_32x32x16_bf16 v[{d}:{d+15}], {wf}, {xf}, v[{d}:{d+15}]")
                else: L.append(f"v_mfma_f32_32x32x16_bf16 v[{d}:{d+15}], {xf}, {wf}, v[{d}:{d+15}]")
        return L
    def setaddr():
        for i in range(5):
            A(f"v_add_u32 v{9+i}, s5, v{4+i}")
    A("s_mov_b32 s5, 0\ns_mov_b32 s4, 0")
    setaddr()
    stamp()
    A("s_barrier")
    stamp()
    for r in reads(0, 0): A(r)
    A("K1_G_LOOP:")
    for ks in range(4):
        st = ks & 1
        M = mfmas(st)
        A("s_waitcnt lgkmcnt(0)")
        if ks < 3:
            R = reads(ks+1, st ^ 1)
            A(M[0]); [A(r) for r in R[0:3]]
            A(M[1]); [A(r) for r in R[3:6]]
            A(M[2]); [A(r) for r in R[6:8]]
            for m in M[3:]: A(m)
        else:
            A(M[0])
            A(f"""
            s_add_u32 s5, s5, {SLOT}
            s_cmp_eq_u32 s5, {4*SLOT}
            s_cselect_b32 s5, 0, s5
            s_add_u32 s4, s4, 1
            s_cmp_eq_u32 s4, 8
            s_cbranch_scc1 K1_G_TAIL
            """)
            setaddr()
            A("s_barrier")
            R = reads(0, 0)
            A(M[1]); [A(r) for r in R[0:3]]
            A(M[2]); [A(r) for r in R[3:6]]
            A(M[3]); [A(r) for r in R[6:8]]
            for m in M[4:]: A(m)
            A("s_branch K1_G_LOOP")
            A("K1_G_TAIL:")
            for m in M[1:]: A(m)
    stamp()
    A(f"""
    s_lshl_b32 s10, s7, 2
    v_mov_b32 v1, s10
    global_load_dword v2, v1, s[{P_DBG}:{P_DBG+1}] sc1
    s_mov_b32 s10, {hex(LOG2E)}
    s_mov_b32 s11, {hex(LOG2E)}
    """)
    def phi(base, dst):
        for i in range(0, 16, 2):
            A(f"v_pk_mul_f32 v[{16+i}:{17+i}], v[{base+i}:{base+i+1}], s[10:11]")
        for i in range(16):
            A(f"v_exp_f32_e64 v{16+i}, v{16+i} clamp")
            A(f"v_max_f32 v{base+i}, {hex(EPS)}, v{base+i}")
        for i in range(0, 16, 2):
            A(f"v_pk_add_f32 v[{base+i}:{base+i+1}], v[{base+i}:{base+i+1}], v[{16+i}:{17+i}]")
        for i in range(8):
            A(f"v_cvt_pk_bf16_f32 v{dst+i}, v{base+2*i}, v{base+2*i+1}")
    PK = (160, 168); VV = (176, 184)
    phi(ACC["k"][0], PK[0]); phi(ACC["k"][1], PK[1])
    for mb in range(2):
        for i in range(8):
            A(f"v_cvt_pk_bf16_f32 v{VV[mb]+i}, v{ACC['v'][mb]+2*i}, v{ACC['v'][mb]+2*i+1}")
    for i in range(4):
        A(f"v_mov_b32 v{32+i}, 0x3f803f80")
    KVA = 192; ZA = 208
    first = True
    for mb in range(2):
        for fr in range(2):
            c1 = "0" if first else f"v[{KVA}:{KVA+15}]"
            c2 = "0" if first else f"v[{ZA}:{ZA+15}]"
            pk = f"v[{PK[mb]+4*fr}:{PK[mb]+4*fr+3}]"; vv = f"v[{VV[mb]+4*fr}:{VV[mb]+4*fr+3}]"
            A(f"v_mfma_f32_32x32x16_bf16 v[{KVA}:{KVA+15}], {vv}, {pk}, {c1}")
            A(f"v_mfma_f32_32x32x16_bf16 v[{ZA}:{ZA+15}], v[32:35], {pk}, {c2}")
            first = False
    A(f"""
    s_lshl_b32 s12, s7, 2
    s_lshl_b32 s13, s9, 1
    s_add_u32 s12, s12, s13      ; head0
    v_bfe_u32 v3, v0, 4, 1
    v_add_u32 v3, s12, v3
    v_mul_u32_u24 v3, {HS}, v3
    v_and_b32 v4, 3, v0
    v_bfe_u32 v5, v0, 2, 1
    v_lshl_add_u32 v4, v5, 3, v4
    v_bfe_u32 v5, v0, 3, 1
    v_lshl_add_u32 v4, v5, 2, v4 ; p
    v_lshl_add_u32 v3, v4, 2, v3
    v_add_u32 v3, {hex(KV_OFF)}, v3
    v_lshrrev_b32 v5, 5, v0
    v_lshl_add_u32 v4, v5, 8, v3 ; + hf*256
    v_and_b32 v5, 16, v0
    v_cmp_ne_u32 vcc, 0, v5
    """)
    for i in range(8):
        A(f"v_cndmask_b32 v{KVA+i}, v{KVA+i}, v{KVA+8+i}, vcc")
    A(f"""
    s_mov_b32 s14, 0
K1_POLL:
    s_waitcnt vmcnt(0)
    v_readfirstlane_b32 s13, v2
    s_cmp_lg_u32 s13, 0
    s_cbranch_scc1 K1_POLL_DONE
    s_add_u32 s14, s14, 1
    s_cmp_gt_u32 s14, 0x40000
    s_cbranch_scc1 K1_POLL_DONE
    s_sleep 2
    global_load_dword v2, v1, s[{P_DBG}:{P_DBG+1}] sc1
    s_branch K1_POLL
K1_POLL_DONE:
    """)
    for i in range(8):
        e = 8*(i >> 2) + (i & 3)
        A(f"buffer_atomic_add_f32 v{KVA+i}, v4, s[{WS}:{WS+3}], 0 offen offset:{e*64}")
    A("s_mov_b32 exec_hi, 0")
    A(f"buffer_atomic_add_f32 v{ZA}, v3, s[{WS}:{WS+3}], 0 offen offset:1024")
    A("s_mov_b32 exec_hi, -1")
    stamp()
    A(f"""
    s_lshl_b32 s13, s6, 2
    s_lshl_b32 s14, s8, 1
    s_add_u32 s13, s13, s14
    s_lshl_b32 s13, s13, 5
    s_add_u32 s13, s13, s12      ; rb0*32+head0
    s_lshl_b32 s13, s13, 10
    v_lshlrev_b32 v3, 4, v0
    v_add_u32 v3, s13, v3
    s_mov_b32 s14, 32768
    """)
    for mb in range(2):
        phi(ACC["q"][mb], PK[mb])
        so = "0" if mb == 0 else "s14"
        A(f"buffer_store_dwordx4 v[{PK[mb]}:{PK[mb]+3}], v3, s[{WS}:{WS+3}], {so} offen")
        A(f"buffer_store_dwordx4 v[{PK[mb]+4}:{PK[mb]+7}], v3, s[{WS}:{WS+3}], {so} offen offset:1024")
    if STAMP: A("s_waitcnt vmcnt(0)")
    stamp()
    stamp_flush(0, WS, 100)
    A("s_endpgm")
    stamp_n[0] = n0

TROW = 528
L_TA = 0
L_TB = 22*TROW
L_U = 54*TROW
L_KR0 = L_U + 4608
L_KR1 = L_KR0 + 1152 + 64
L_T = L_KR1 + 1152 + 64
TSEQ = 192
TCOPY = 6*TSEQ + 64
CH = L_T + 2*TCOPY
CH = (CH + 255)//256*256
assert 4*CH <= 163840, CH
AROWS = list(range(9)) + [256,258,260,262,264] + [516,520,772,776] + [1032,1288,1544,1800]
HROWS = ([0,1,2,3,4,5,6,7,8,516,520,772,776,0,0,0], [256,256,258,260,260,260,262,264,264,1032,1288,1544,1800,0,0,0])
BOX = [(3,3,-16),(5,6,-16),(3,11,-16),(5,14,-24),(7,5,-16),(9,12,-24)]

def ssm_tables():
    T = []
    for (ln, o, off) in BOX:
        for lane in range(64):
            b = lane & 15; q = lane >> 4
            h = []
            for i in range(8):
                e = off + 8*q + i
                h.append(0x3f80 if (b - o - ln + 1 <= e <= b - o) else 0)
            T += [h[2*i] | (h[2*i+1] << 16) for i in range(4)]
    for lane in range(64):
        b = lane & 15; q = lane >> 4
        h = [0xffff if (16 + b - (8*q+i)) in (3, 4) else 0 for i in range(8)]
        T += [h[2*i] | (h[2*i+1] << 16) for i in range(4)]
    for lane in range(64):
        j = lane & 31; h = lane >> 5
        w = []
        for kap in range(4):
            if h == 0:
                seq = 2*(j & 1) + (kap & 1); kp = 32 + 16*(kap >> 1) + (j >> 1); Q0 = 79
            else:
                seq = 4 + (j & 1); kp = 64 + 16*kap + (j >> 1); Q0 = 127
            w.append(L_T + seq*TSEQ + 2*(Q0 - kp))
        T += w
    for lane in range(64):
        R = lane & 31; hf = lane >> 5
        g = R >> 3; h = (R >> 2) & 1; i = R & 3
        arow = AROWS.index(HROWS[h][4*g+i])
        ta = L_TA + arow*TROW + hf*16
        b = lane & 15; q = lane >> 4
        p0 = 535 - 32*16 - b + 8*q
        kr = (L_KR1 + 2*(p0+1)) if (p0 & 1) else (L_KR0 + 2*p0)
        p0 = 15 - b + 4*q
        tf = (L_T + TCOPY + 2*(p0+1)) if (p0 & 1) else (L_T + 2*p0)
        fr = L_U + 512 - 32 + 32*b + 16*q
        T += [ta, kr, tf, fr]
    return T

def ssm_helper():
    n0 = stamp_n[0]; stamp_n[0] = 1
    X, WS = 48, 56
    A("""
    s_sub_u32 s9, s3, 4
    s_lshl_b32 s10, s9, 6
    v_add_u32 v1, s10, v0        ; t = 0..255
    s_lshl_b32 s10, s4, 7
    s_lshl_b32 s11, s5, 3
    s_add_u32 s10, s10, s11
    v_lshlrev_b32 v2, 10, v1
    v_add_u32 v2, s10, v2
    s_lshr_b32 s12, s5, 1        ; rotation
    v_mov_b32 v40, 0
    v_mov_b32 v41, 0
    v_mov_b32 v42, 0
    v_mov_b32 v43, 0
    s_waitcnt lgkmcnt(0)
    """)
    srd(X, P_X, 0x200000); srd(WS, P_WS, WS_SIZE)
    stamp()
    for i in range(8):
        A(f"s_add_u32 s13, s12, {i}\ns_and_b32 s13, s13, 7\ns_lshl_b32 s13, s13, 18")
        A(f"buffer_load_dwordx2 v[{16+2*i}:{17+2*i}], v2, s[{X}:{X+3}], s13 offen")
    A(f"""
    s_or_b32 s13, s5, s9
    s_cmp_lg_u32 s13, 0
    s_cbranch_scc1 K1_H_NOZ
    s_mul_i32 s13, s4, {4*HS}
    s_add_u32 s13, s13, {hex(KV_OFF)}
    v_lshlrev_b32 v3, 4, v0
    """)
    for i in range(4*HS//1024):
        A(f"buffer_store_dwordx4 v[40:43], v3, s[{WS}:{WS+3}], s13 offen sc0 sc1")
        A("s_add_u32 s13, s13, 1024")
    A(f"""
    s_waitcnt vmcnt(0)
    s_lshl_b32 s13, s4, 2
    v_mov_b32 v3, s13
    v_mov_b32 v4, 1
    s_mov_b64 exec, 1
    global_store_dword v3, v4, s[{P_DBG}:{P_DBG+1}] sc0 sc1
    s_mov_b64 exec, -1
K1_H_NOZ:
    """)
    A(f"""
    s_mul_i32 s13, s9, {CH}
    v_lshlrev_b32 v3, 3, v0
    v_add_u32 v3, s13, v3
    ds_write_b64 v3, v[40:41] offset:{L_U}
    v_lshlrev_b32 v1, 1, v1
    v_add_u32 v1, {L_U+512}, v1
    """)
    for i in range(8):
        A(f"s_add_u32 s13, s12, {i}\ns_and_b32 s13, s13, 7\ns_lshl_b32 s13, s13, 9")
        A(f"v_add_u32 v3, s13, v1")
        A(f"v_add_u32 v4, {2*CH}, v3")
        A(f"s_waitcnt vmcnt({7-i})")
        A(f"ds_write_b16 v3, v{16+2*i}")
        A(f"ds_write_b16_d16_hi v3, v{16+2*i} offset:{CH}")
        A(f"ds_write_b16 v4, v{17+2*i}")
        A(f"ds_write_b16_d16_hi v4, v{17+2*i} offset:{CH}")
    A("s_waitcnt lgkmcnt(0)")
    stamp()
    A("s_barrier")
    stamp_flush(0, WS, 100)
    A("s_endpgm")
    stamp_n[0] = n0

def cmul(d, x, y):
    return [f"v_pk_mul_f32 v[{d}:{d+1}], v[{x}:{x+1}], v[{y}:{y+1}] op_sel:[0,0] op_sel_hi:[1,0]",
            f"v_pk_fma_f32 v[{d}:{d+1}], v[{x}:{x+1}], v[{y}:{y+1}], v[{d}:{d+1}] op_sel:[1,1,0] op_sel_hi:[0,1,1] neg_lo:[1,0,0]"]

def ssm_compute():
    n0 = stamp_n[0]
    WS = 56
    A("""
    s_lshl_b32 s6, s4, 6
    s_lshl_b32 s7, s5, 2
    s_add_u32 s6, s6, s7         ; ch0
    s_add_u32 s7, s6, s3         ; ch
    s_lshl_b32 s8, s7, 8
    v_lshlrev_b32 v1, 2, v0
    v_add_u32 v1, s8, v1
    v_lshlrev_b32 v2, 4, v0
    s_getpc_b64 s[10:11]
K1_PC:
    s_add_u32 s10, s10, K1_TABLE-K1_PC
    s_addc_u32 s11, s11, 0
    s_lshl_b32 s9, s6, 1
    s_waitcnt lgkmcnt(0)
    """)
    stamp()
    for n, p in enumerate((P_ARE, P_AIM, P_BRE, P_BIM, P_CRE, P_CIM)):
        A(f"global_load_dword v{4+n}, v1, s[{p}:{p+1}]")
    A(f"s_load_dwordx2 s[12:13], s[{P_LDT}:{P_LDT+1}], s9")
    A(f"s_load_dwordx2 s[14:15], s[{P_DSK}:{P_DSK+1}], s9")
    BOXR = 200
    for n in range(9):
        if n == 4: A("v_add_u32 v2, 4096, v2")
        if n == 8: A("v_add_u32 v2, 4096, v2")
        A(f"global_load_dwordx4 v[{BOXR+4*n}:{BOXR+4*n+3}], v2, s[10:11] offset:{(n%4)*1024}")
    srd(WS, P_WS, WS_SIZE)
    A(f"""
    s_mul_i32 s8, s3, {CH}
    v_mov_b32 v16, 0
    v_mov_b32 v17, 0
    v_mov_b32 v18, 0
    v_mov_b32 v19, 0
    v_lshlrev_b32 v3, 4, v0
    v_add_u32 v3, s8, v3
    """)
    zl = CH - L_KR0
    for o in range(0, zl, 1024):
        oo = min(o, zl - 1024)
        A(f"ds_write_b128 v3, v[16:19] offset:{L_KR0+oo}")
    A("""
    s_waitcnt lgkmcnt(0)
    s_lshl_b32 s9, s3, 4
    s_lshr_b64 s[12:13], s[12:13], s9
    s_lshl_b32 s12, s12, 16
    s_lshr_b64 s[14:15], s[14:15], s9
    s_lshl_b32 s14, s14, 16
    """)
    A(f"""
    v_mov_b32 v10, {hex(LOG2E)}
    v_mul_f32 v10, s12, v10
    v_exp_f32 v10, v10
    v_cvt_pk_bf16_f32 v10, v10, v10
    v_and_b32 v10, 0xffff0000, v10   ; dt
    s_waitcnt vmcnt(9)
    """)
    stamp()
    for n in range(6):
        A(f"v_lshlrev_b32 v{20+2*n}, 16, v{4+n}")
        A(f"v_and_b32 v{21+2*n}, 0xffff0000, v{4+n}")
    for r in range(20, 28):
        A(f"v_mul_f32 v{r}, v10, v{r}")
    AV = {}
    nxt = [40]
    def alloc():
        r = nxt[0]; nxt[0] += 4; return r
    for r in AROWS: AV[r] = alloc()
    E1, E8, E256 = alloc(), alloc(), alloc()
    B0, B1 = alloc(), alloc()
    for m in range(2):
        d = AV[0] + 2*m
        A(f"v_mul_f32 v{d}, v{28+m}, v{24+m}")
        A(f"v_mul_f32 v{d+1}, v{28+m}, v{26+m}")
        A(f"v_fma_f32 v{d}, -v{30+m}, v{26+m}, v{d}")
        A(f"v_fma_f32 v{d+1}, v{30+m}, v{24+m}, v{d+1}")
    for (E, r, sgn) in ((E1, 1, 1.0), (E8, 8, -1.0), (E256, 256, 1.0)):
        for m in range(2):
            A(f"v_mul_f32 v{32+m}, {hex(f2u(r*1.4426950408889634))}, v{20+m}")
            A(f"v_mul_f32 v{34+m}, {hex(f2u(sgn*r*0.15915494309189535))}, v{22+m}")
        for m in range(2):
            A(f"v_exp_f32 v{32+m}, v{32+m}")
            A(f"v_fract_f32 v{34+m}, v{34+m}")
        for m in range(2):
            A(f"v_cos_f32 v{E+2*m}, v{34+m}")
            A(f"v_sin_f32 v{E+2*m+1}, v{34+m}")
        for m in range(2):
            A(f"v_mul_f32 v{E+2*m}, v{32+m}, v{E+2*m}")
            A(f"v_mul_f32 v{E+2*m+1}, v{32+m}, v{E+2*m+1}")
    A(f"v_lshlrev_b32 v3, 3, v0\nv_add_u32 v3, s8, v3")
    def emit_row(src, ldsrow, tmp):
        return [f"v_cvt_pk_bf16_f32 v{tmp}, v{src}, v{src+1}",
                f"v_cvt_pk_bf16_f32 v{tmp+1}, v{src+2}, v{src+3}",
                f"ds_write_b64 v3, v[{tmp}:{tmp+1}] offset:{ldsrow*TROW}"]
    asteps = [(0, None, None)]
    for r in range(1, 9): asteps.append((r, r-1, E1))
    for r in (256,258,260,262,264,516,520,772,776,1032,1288,1544,1800): asteps.append((r, r-256, E256))
    def astep(n):
        r, src, E = asteps[n]
        L = []
        if src is not None:
            c0 = cmul(AV[r], AV[src], E); c1 = cmul(AV[r]+2, AV[src]+2, E+2)
            L += [c0[0], c1[0], c0[1], c1[1]]
        return L, emit_row(AV[r], AROWS.index(r), 150 + 2*(n & 1))
    def bstep(j):
        if j == 0:
            return ["v_mov_b32 v154, 0x3f80", "v_mov_b32 v155, 0x3f80"], [f"ds_write_b64 v3, v[154:155] offset:{22*TROW}"]
        if j == 1:
            return [], emit_row(E8, 23, 156)
        src = E8 if j == 2 else (B0 if (j & 1) else B1)
        dst = B1 if (j & 1) else B0
        c0 = cmul(dst, src, E8); c1 = cmul(dst+2, src+2, E8+2)
        return [c0[0], c1[0], c0[1], c1[1]], emit_row(dst, 22+j, 154 + 2*(j & 1))
    for j in range(32):
        bm, be = bstep(j)
        am, ae = astep(j) if j < len(asteps) else ([], [])
        for k in range(max(len(bm), len(am))):
            if k < len(bm): A(bm[k])
            if k < len(am): A(am[k])
        for x in be: A(x)
        for x in ae: A(x)
    stamp()
    A(f"""
    s_waitcnt vmcnt(0)
    v_add_u32 v232, s8, v232
    v_add_u32 v233, s8, v233
    v_add_u32 v234, s8, v234     ; T read
    v_add_u32 v235, s8, v235     ; F read
    v_add_u32 v228, s8, v228
    v_add_u32 v229, s8, v229
    v_add_u32 v230, s8, v230
    v_add_u32 v231, s8, v231
    v_and_b32 v4, 31, v0
    v_mul_u32_u24 v4, {TROW}, v4
    v_lshrrev_b32 v5, 5, v0
    v_lshl_add_u32 v4, v5, 4, v4
    v_add_u32 v4, s8, v4
    s_waitcnt lgkmcnt(0)
    """)
    KA = 16
    FR = 40
    for s_ in range(16):
        A(f"ds_read_b128 v[{FR+8*s_}:{FR+8*s_+3}], v232 offset:{32*s_}")
        A(f"ds_read_b128 v[{FR+8*s_+4}:{FR+8*s_+7}], v4 offset:{L_TB+32*s_}")
        if s_ >= 6:
            t = s_ - 6
            A(f"s_waitcnt lgkmcnt(12)")
            A(f"v_mfma_f32_32x32x16_bf16 v[{KA}:{KA+15}], v[{FR+8*t}:{FR+8*t+3}], v[{FR+8*t+4}:{FR+8*t+7}], {'0' if t == 0 else f'v[{KA}:{KA+15}]'}")
    for t in range(10, 16):
        A(f"s_waitcnt lgkmcnt({2*(15-t)})")
        A(f"v_mfma_f32_32x32x16_bf16 v[{KA}:{KA+15}], v[{FR+8*t}:{FR+8*t+3}], v[{FR+8*t+4}:{FR+8*t+7}], v[{KA}:{KA+15}]")
    A(f"""
    v_mov_b32 v5, 0
    v_writelane_b32 v5, s14, 0
    v_lshlrev_b32 v6, 4, v0
    v_sub_u32 v6, {L_KR0+1088}, v6
    v_add_u32 v6, s8, v6
    v_add_f32 v{KA}, v{KA}, v5
    """)
    for i in range(4):
        A(f"v_cvt_pk_bf16_f32 v{40+i}, v{KA+7-2*i}, v{KA+6-2*i}")
    for i in range(4):
        A(f"v_cvt_pk_bf16_f32 v{44+i}, v{KA+8-2*i}, v{KA+7-2*i}")
    A(f"ds_write_b128 v6, v[40:43]")
    A(f"ds_write_b128 v6, v[44:47] offset:{L_KR1-L_KR0}")
    for k in range(4):
        A(f"v_cvt_pk_bf16_f32 v{48+k}, v{KA+9+k}, v{KA+9+k}")
    A(f"v_cvt_pk_bf16_f32 v52, v{KA+8}, v{KA+8}")
    for k in range(4):
        A(f"ds_write_b16 v{228+k}, v{48+k}")
        A(f"ds_write_b16 v{228+k}, v{48+k} offset:{TCOPY+2}")
    A(f"""
    v_mov_b32 v7, s8
    s_mov_b64 exec, 1
    ds_write_b16_d16_hi v7, v43 offset:{L_KR1+2*552}
    s_mov_b32 exec_lo, 0
    s_mov_b32 exec_hi, 0x80000000
    ds_write_b32 v7, v52 offset:{L_KR0+2*38}
    ds_write_b16 v7, v52 offset:{L_KR0+2*37}
    ds_write_b32 v7, v52 offset:{L_KR1+2*38}
    s_mov_b64 exec, -1
    v_readlane_b32 s15, v51, 31      ; (K1024,K1024) packed
    """)
    for i in range(4):
        A(f"v_and_b32 v{224+i}, s15, v{224+i}")
    stamp()
    A("s_waitcnt lgkmcnt(0)\ns_barrier")
    stamp()
    ACC = 160
    F0 = 16
    F1 = 48
    G = 48
    XP = 80
    TMP = 144
    AF = (192, 236)
    for t in range(8):
        A(f"ds_read_b128 v[{F0+4*t}:{F0+4*t+3}], v235 offset:{512*t}")
    A("v_subrev_u32 v4, 16, v235")
    for t in range(6):
        A(f"ds_read_b128 v[{G+4*t}:{G+4*t+3}], v4 offset:{512*t}")
    A("s_waitcnt lgkmcnt(0)")
    jobs = []
    for tau in range(6):
        jobs += [(0, tau), (1, tau)]
        if tau < 4: jobs.append((2, tau))
    def xreg(pair, tau): return XP + 4*((0, 6, 12)[pair] + tau)
    def boxm(n):
        pair, tau = jobs[n]
        for hh in range(2):
            sq = 2*pair + hh
            src = (G if BOX[sq][2] == -24 else F0) + 4*tau
            d = TMP + 8*(n & 1) + 4*hh
            A(f"v_mfma_f32_16x16x32_bf16 v[{d}:{d+3}], v[{src}:{src+3}], v[{BOXR+4*sq}:{BOXR+4*sq+3}], 0")
    def boxc(n):
        pair, tau = jobs[n]
        d = TMP + 8*(n & 1); x = xreg(pair, tau)
        for i in range(4):
            A(f"v_cvt_pk_bf16_f32 v{x+i}, v{d+2*i}, v{d+2*i+1}")
    for n in range(len(jobs)):
        boxm(n)
        if n > 0: boxc(n-1)
    boxc(len(jobs)-1)
    TF = [200,204,208,212,216,220,48,52,56,60]
    def tf(pair, dl):
        return TF[(dl-2) + 3*pair] if pair < 2 else TF[6 + dl - 4]
    for pair in range(3):
        dls = (2,3,4) if pair < 2 else (4,5,6,7)
        for dl in dls:
            r = tf(pair, dl)
            for hh in range(2):
                o = ((2*pair+hh)*TSEQ + 32*(dls[-1]-dl))//4
                if o + 1 > 255:
                    A(f"ds_read2_b32 v[{r+2*hh}:{r+2*hh+1}], v5 offset0:{o-192} offset1:{o-191}")
                else:
                    A(f"ds_read2_b32 v[{r+2*hh}:{r+2*hh+1}], v234 offset0:{o} offset1:{o+1}")
        if pair == 0: A("v_add_u32 v5, 768, v234")
    A("v_add_u32 v6, 512, v233      ; c=8 base")
    A("ds_read2_b32 v[64:65], v233 offset0:0 offset1:1\nds_read2_b32 v[66:67], v233 offset0:2 offset1:3")
    def aread(buf):
        b = AF[buf]
        return [f"ds_read2_b32 v[{b}:{b+1}], v6 offset0:128 offset1:129", f"ds_read2_b32 v[{b+2}:{b+3}], v6 offset0:130 offset1:131",
                f"ds_read2_b32 v[{b+4}:{b+5}], v6 offset0:0 offset1:1", f"ds_read2_b32 v[{b+6}:{b+7}], v6 offset0:2 offset1:3"]
    for x in aread(0): A(x)
    A("s_waitcnt lgkmcnt(0)")
    started = set()
    def mm(t, af, bf):
        c = f"v[{ACC+4*t}:{ACC+4*t+3}]" if t in started else "0"
        started.add(t)
        return f"v_mfma_f32_16x16x32_bf16 v[{ACC+4*t}:{ACC+4*t+3}], v[{af}:{af+3}], v[{bf}:{bf+3}], {c}"
    for pair in range(3):
        dls = (2,3,4) if pair < 2 else (4,5,6,7)
        for dl in dls:
            for t in range(dl, 8):
                A(mm(t, xreg(pair, t-dl), tf(pair, dl)))
    for t in range(2, 8): A(mm(t, 64, F0+4*(t-2)))
    for t in range(4, 8): A(mm(t, 224, F0+4*(t-4)))
    A(f"v_mov_b32 v{ACC}, 0\nv_mov_b32 v{ACC+1}, 0\nv_mov_b32 v{ACC+2}, 0\nv_mov_b32 v{ACC+3}, 0")
    A(f"v_mov_b32 v{ACC+4}, 0\nv_mov_b32 v{ACC+5}, 0\nv_mov_b32 v{ACC+6}, 0\nv_mov_b32 v{ACC+7}, 0")
    started |= {0, 1}
    stamp()
    A("s_mov_b32 s9, 0")
    A("K1_S_LOOP:")
    for half in range(2):
        cur = (F0, F1)[half]; nx = (F1, F0)[half]
        A("v_subrev_u32 v235, 64, v235\nv_subrev_u32 v6, 64, v6")
        R = aread(half ^ 1) + [f"ds_read_b128 v[{nx+4*t}:{nx+4*t+3}], v235 offset:{512*t}" for t in range(8)]
        M = [mm(t, AF[half], cur+4*t) for t in range(8)] + [mm(t, AF[half]+4, cur+4*(t-1)) for t in range(1, 8)]
        for i, m in enumerate(M):
            A(m)
            if i < len(R): A(R[i])
        A("s_waitcnt lgkmcnt(0)")
    A("""
    s_add_u32 s9, s9, 1
    s_cmp_lt_u32 s9, 4
    s_cbranch_scc1 K1_S_LOOP
    """)
    stamp()
    A(f"""
    s_lshl_b32 s9, s7, 12
    s_add_u32 s9, s9, {hex(BT_OFF)}
    v_and_b32 v1, 15, v0
    v_lshrrev_b32 v2, 4, v0
    v_lshlrev_b32 v1, 5, v1
    v_lshl_add_u32 v1, v2, 3, v1
    """)
    for t in range(8):
        A(f"v_cvt_pk_bf16_f32 v{16+2*t}, v{ACC+4*t}, v{ACC+4*t+1}")
        A(f"v_cvt_pk_bf16_f32 v{17+2*t}, v{ACC+4*t+2}, v{ACC+4*t+3}")
        A(f"buffer_store_dwordx2 v[{16+2*t}:{17+2*t}], v1, s[{WS}:{WS+3}], s9 offen offset:{512*t}")
    if STAMP: A("s_waitcnt vmcnt(0)")
    stamp()
    stamp_flush(0, WS, 100)
    A("s_endpgm")
    stamp_n[0] = n0

K2_WO = 0
K2_KV = 65536
KVS = 576
K2_RED = K2_KV + 32*KVS
K2_LDS = K2_RED + 16384
def k2():
    A(".p2align 8\nk2_kernel:")
    stamp_reset()
    common_prologue("K2_END")
    WO, WS, OUT = 48, 52, 56
    A("""
    s_and_b32 s4, s2, 7
    s_lshr_b32 s5, s2, 3
    s_and_b32 s6, s4, 3
    s_lshl_b32 s6, s6, 3
    s_lshr_b32 s7, s4, 2
    s_lshl_b32 s7, s7, 2
    s_add_u32 s6, s6, s7
    s_and_b32 s7, s5, 3
    s_add_u32 s6, s6, s7         ; rt (0..31)
    s_lshr_b32 s7, s5, 2         ; ct (0..7)
    s_and_b32 s8, s3, 1          ; sw
    s_lshr_b32 s9, s3, 1         ; kw
    """)
    A(f"""
    s_lshl_b32 s10, s9, 4
    s_lshl_b32 s11, s8, 3
    s_add_u32 s10, s10, s11
    s_mul_i32 s11, s10, {HS}
    s_add_u32 s11, s11, {hex(KV_OFF)}
    v_lshlrev_b32 v1, 4, v0
    v_add_u32 v2, s11, v1
    v_bfe_u32 v3, v0, 2, 3
    v_mul_u32_u24 v4, {HS}, v3
    v_and_b32 v5, 3, v0
    v_lshl_add_u32 v4, v5, 4, v4
    v_add_u32 v4, s11, v4
    v_lshrrev_b32 v6, 3, v0
    s_lshl_b32 s12, s3, 3
    v_add_u32 v6, s12, v6
    v_lshlrev_b32 v6, 10, v6
    v_bfe_u32 v7, v0, 4, 1
    v_lshlrev_b32 v7, 2, v7
    v_and_b32 v8, 7, v0
    v_xor_b32 v7, v7, v8
    v_lshl_add_u32 v6, v7, 4, v6
    s_lshl_b32 s12, s7, 7
    v_add_u32 v6, s12, v6        ; vWOsrc
    s_lshl_b32 s12, s6, 1
    s_add_u32 s12, s12, s8
    s_lshl_b32 s13, s12, 5
    s_lshl_b32 s14, s9, 4
    s_add_u32 s13, s13, s14
    s_lshl_b32 s13, s13, 10
    v_add_u32 v7, s13, v1
    s_lshl_b32 s13, s7, 6
    s_lshl_b32 s14, s9, 5
    s_add_u32 s13, s13, s14
    s_lshl_b32 s14, s13, 12
    s_add_u32 s14, s14, {hex(BT_OFF)}
    v_and_b32 v8, 31, v0
    s_lshl_b32 s15, s12, 5
    v_add_u32 v8, s15, v8        ; row
    v_lshrrev_b32 v9, 5, v0      ; hf
    v_lshlrev_b32 v10, 14, v9
    v_lshl_add_u32 v10, v8, 1, v10
    v_add_u32 v10, s14, v10      ; b offset
    v_lshlrev_b32 v11, 2, v8
    v_add_u32 v11, {hex(G_OFF)}, v11  ; g offset
    v_lshlrev_b32 v12, 10, v8
    v_lshl_add_u32 v12, v9, 4, v12
    s_lshl_b32 s13, s13, 1
    v_add_u32 v12, s13, v12
    """)
    BB = 176
    for i in range(16): A(f"v_mov_b32 v{BB+i}, 0")
    A("s_waitcnt lgkmcnt(0)")
    srd(WO, P_WO, 0x80000); srd(WS, P_WS, WS_SIZE); srd(OUT, P_OUT, 0x200000)
    stamp()
    KVR = 16
    for n in range(8):
        A(f"s_mov_b32 s60, {n*HS}")
        A(f"buffer_load_dwordx4 v[{KVR+4*n}:{KVR+4*n+3}], v2, s[{WS}:{WS+3}], s60 offen")
    A(f"buffer_load_dwordx4 v[{KVR+32}:{KVR+35}], v4, s[{WS}:{WS+3}], 0 offen offset:1024")
    A("s_lshl_b32 s61, s3, 10")
    PQR = 64
    for n in range(16):
        A(f"s_add_u32 m0, s61, {n*4096}")
        A(f"s_mov_b32 s60, {n*32768}")
        A(f"buffer_load_dwordx4 v6, s[{WO}:{WO+3}], s60 offen lds")
        A(f"s_mov_b32 s60, {(n//4)*4096}")
        A(f"buffer_load_dwordx4 v[{PQR+4*n}:{PQR+4*n+3}], v7, s[{WS}:{WS+3}], s60 offen offset:{(n%4)*1024}")
    for i in range(16):
        g, ii = i >> 2, i & 3
        A(f"s_mov_b32 s60, {(8*g+ii)*4096}")
        A(f"buffer_load_short_d16_hi v{BB+i}, v10, s[{WS}:{WS+3}], s60 offen")
    A(f"buffer_load_dword v13, v11, s[{WS}:{WS+3}], 0 offen")
    A(f"""
    s_mul_i32 s11, s10, {KVS}
    s_add_u32 s11, s11, {K2_KV}
    v_lshlrev_b32 v2, 3, v0
    v_add_u32 v2, s11, v2
    v_mul_u32_u24 v4, {KVS}, v3
    v_xor_b32 v5, 2, v5
    v_lshl_add_u32 v4, v5, 3, v4
    v_add_u32 v4, s11, v4
    s_waitcnt vmcnt(49)
    """)
    for n in range(9):
        A(f"v_cvt_pk_bf16_f32 v{KVR+4*n}, v{KVR+4*n}, v{KVR+4*n+1}")
        A(f"v_cvt_pk_bf16_f32 v{KVR+4*n+1}, v{KVR+4*n+2}, v{KVR+4*n+3}")
        if n < 8: A(f"ds_write_b64 v2, v[{KVR+4*n}:{KVR+4*n+1}] offset:{n*KVS}")
        else:
            A("s_mov_b32 exec_hi, 0")
            A(f"ds_write_b64 v4, v[{KVR+4*n}:{KVR+4*n+1}] offset:512")
            A("s_mov_b32 exec_hi, -1")
    A(f"""
    v_and_b32 v2, 31, v0
    v_min_u32 v3, 16, v2
    v_lshrrev_b32 v4, 4, v3      ; is z
    v_xor_b32 v4, v4, v9
    v_lshlrev_b32 v3, 5, v3
    v_lshl_add_u32 v3, v4, 4, v3
    s_mul_i32 s11, s9, {16*KVS}
    s_add_u32 s11, s11, {K2_KV}
    v_add_u32 v3, s11, v3        ; vKVa
    v_bfe_u32 v4, v0, 2, 2
    v_lshl_add_u32 v4, v9, 2, v4
    v_lshlrev_b32 v4, 7, v4
    v_bfe_u32 v5, v0, 4, 1
    v_lshl_add_u32 v4, v5, 5, v4
    v_and_b32 v5, 3, v0
    v_lshl_add_u32 v4, v5, 3, v4
    v_bfe_u32 v5, v0, 3, 1
    v_lshl_add_u32 v4, v5, 6, v4
    s_lshl_b32 s11, s9, 15
    v_add_u32 v4, s11, v4
    v_xor_b32 v5, 64, v4
    s_waitcnt vmcnt(17) lgkmcnt(0)
    """)
    stamp()
    A("s_barrier")
    stamp()
    ACC = (128, 144)
    OD = (192, 208)
    KF = (16, 20)
    WF = (24, 32)
    OF = (40, 44)
    def rd_kv(h): A(f"ds_read_b128 v[{KF[h&1]}:{KF[h&1]+3}], v3 offset:{h*KVS}")
    def rd_wo(h):
        b = WF[h & 1]
        for jt in range(2):
            for t in range(2):
                A(f"ds_read_b64_tr_b16 v[{b+4*jt+2*t}:{b+4*jt+2*t+1}], v{4+jt} offset:{h*2048+t*1024}")
    def omf(h): A(f"v_mfma_f32_32x32x16_bf16 v[{OD[h&1]}:{OD[h&1]+15}], v[{KF[h&1]}:{KF[h&1]+3}], v[{PQR+4*h}:{PQR+4*h+3}], 0")
    def norm(h):
        d = OD[h & 1]; o = OF[h & 1]
        A(f"v_add_f32 v{d+8}, {hex(EPS)}, v{d+8}")
        A(f"v_rcp_f32 v{d+8}, v{d+8}")
        for i in range(0, 8, 2):
            A(f"v_pk_mul_f32 v[{d+i}:{d+i+1}], v[{d+i}:{d+i+1}], v[{d+8}:{d+9}] op_sel_hi:[1,0]")
        for i in range(4):
            A(f"v_cvt_pk_bf16_f32 v{o+i}, v{d+2*i}, v{d+2*i+1}")
    def proj(h):
        b = WF[h & 1]; o = OF[h & 1]
        for jt in range(2):
            c = "0" if h == 0 else f"v[{ACC[jt]}:{ACC[jt]+15}]"
            A(f"v_mfma_f32_32x32x16_bf16 v[{ACC[jt]}:{ACC[jt]+15}], v[{b+4*jt}:{b+4*jt+3}], v[{o}:{o+3}], {c}")
    rd_kv(0); rd_kv(1); rd_wo(0)
    A("s_waitcnt lgkmcnt(5)")
    omf(0)
    for h in range(16):
        A("s_waitcnt lgkmcnt(0)")
        if h + 1 < 16: omf(h+1)
        if h + 2 < 16: rd_kv(h+2)
        if h + 1 < 16: rd_wo(h+1)
        norm(h)
        proj(h)
    stamp()
    A(f"""
    s_lshl_b32 s11, s3, 12
    s_add_u32 s11, s11, {K2_RED}
    v_add_u32 v2, s11, v1
    s_xor_b32 s12, s3, 2
    s_lshl_b32 s12, s12, 12
    s_add_u32 s12, s12, {K2_RED}
    v_add_u32 v3, s12, v1
    s_cmp_eq_u32 s9, 0
    s_nop 3
    s_cbranch_scc1 K2_KW0
    """)
    for g in range(4): A(f"ds_write_b128 v2, v[{ACC[0]+4*g}:{ACC[0]+4*g+3}] offset:{g*1024}")
    for i in range(16): A(f"v_mov_b32 v{ACC[0]+i}, v{ACC[1]+i}")
    A("s_branch K2_KWD\nK2_KW0:")
    for g in range(4): A(f"ds_write_b128 v2, v[{ACC[1]+4*g}:{ACC[1]+4*g+3}] offset:{g*1024}")
    A("K2_KWD:\ns_waitcnt lgkmcnt(0)\ns_barrier")
    for g in range(4): A(f"ds_read_b128 v[{16+4*g}:{19+4*g}], v3 offset:{g*1024}")
    A("s_waitcnt vmcnt(0)")
    A("v_sub_f32 v14, 1.0, v13")
    for i in range(16): A(f"v_mul_f32 v{BB+i}, v14, v{BB+i}")
    A("s_waitcnt lgkmcnt(0)")
    for i in range(16): A(f"v_add_f32 v{16+i}, v{16+i}, v{ACC[0]+i}")
    for i in range(16): A(f"v_fma_f32 v{16+i}, v13, v{16+i}, v{BB+i}")
    for i in range(8): A(f"v_cvt_pk_bf16_f32 v{32+i}, v{16+2*i}, v{17+2*i}")
    for p in range(2):
        A(f"v_permlane32_swap_b32 v{32+4*p}, v{34+4*p}")
        A(f"v_permlane32_swap_b32 v{33+4*p}, v{35+4*p}")
    for p in range(2):
        A(f"buffer_store_dwordx4 v[{32+4*p}:{35+4*p}], v12, s[{OUT}:{OUT+3}], 0 offen offset:{32*p}")
    if STAMP: A("s_waitcnt vmcnt(0)")
    stamp()
    stamp_flush(1, WS, 100)
    A("K2_END:\ns_endpgm")

k1()
k2()
lines, errs = hazard_pass(A.lines)
for e in errs: print(e, file=sys.stderr)
hdr = open("gated_mix__linear_attn_block__ssm_conv_s4__prompt.s.ref").read().split("; Override launch")[0]
out = hdr
out += "; @launch kernel=k1_kernel grid=(256,1,1) block=(512,1,1) lds=163840\n"
out += f"; @launch kernel=k2_kernel grid=(256,1,1) block=(256,1,1) lds={K2_LDS}\n"
out += '.amdgcn_target "amdgcn-amd-amdhsa--gfx950"\n.text\n.globl k1_kernel\n.type k1_kernel,@function\n.globl k2_kernel\n.type k2_kernel,@function\n'
out += "\n".join(lines) + "\n"
T = ssm_tables()
out += ".p2align 8\n.type K1_TABLE,@object\nK1_TABLE:\n"
for i in range(0, len(T), 8):
    out += ".long " + ", ".join(hex(x) for x in T[i:i+8]) + "\n"
out += f".size K1_TABLE, {4*len(T)}\n"
out += '.section .rodata,"a"\n' + kernel_desc("k1_kernel", 256, 102, 256) + kernel_desc("k2_kernel", 256, 102, 256)
fn = [x for x in sys.argv[1:] if not x.startswith("--")][0]
open(fn, "w").write(out)
```

```python
import sys
src, dst, mode = sys.argv[1], sys.argv[2], sys.argv[3]
s = open(src).read()
lines = s.split("\n")
li = max(i for i, l in enumerate(lines) if l.startswith("; @launch"))
lines.insert(li+1, "; @launch kernel=k3_kernel grid=(1,1,1) block=(64,1,1) lds=0")
s = "\n".join(lines)
body = ""
if mode.startswith("spin"):
    off = int(mode.split(":")[1], 0)
    body = f"""
    s_cmp_ge_u32 s2, 1
    s_cbranch_scc1 K3_END
    s_memrealtime s[8:9]
    s_load_dwordx2 s[4:5], s[0:1], 120
    s_waitcnt lgkmcnt(0)
    v_mov_b32 v1, {off}
    global_load_dword v2, v1, s[4:5]
    s_waitcnt vmcnt(0)
    v_readfirstlane_b32 s10, v2
    s_sub_u32 s10, s8, s10
    s_min_u32 s10, s10, 10000
    s_mul_i32 s10, s10, 10
K3_LOOP:
    s_memrealtime s[12:13]
    s_waitcnt lgkmcnt(0)
    s_sub_u32 s12, s12, s8
    s_cmp_lt_u32 s12, s10
    s_cbranch_scc1 K3_LOOP
K3_END:
"""
k3 = ".p2align 8\n.globl k3_kernel\n.type k3_kernel,@function\nk3_kernel:\n" + body + "    s_endpgm\n"
s = s.replace(".p2align 8\n.type K1_TABLE,@object", k3 + ".p2align 8\n.type K1_TABLE,@object")
from asmlib import kernel_desc
s += kernel_desc("k3_kernel", 8, 32, 8)
open(dst, "w").write(s)
```

```python
import sys, struct
from asmlib import *

PQ_OFF = 0x0
BT_OFF = 0x200000
KV_OFF = 0x400000
HS = 2048
G_OFF = 0x410000
TS_OFF = 0x500000
WS_SIZE = 0x600000
STAMP = "--stamp" in sys.argv
FUSE = "--fuse" in sys.argv
PF = "--nopf" not in sys.argv
SPIN = "--spin" in sys.argv
KN = "gated_mix__linear_attn_block__ssm_conv_s4__prompt_kernel"

LOG2E = 0x3fb8aa3b
EPS = 0x358637bd

def f2u(x): return struct.unpack("<I", struct.pack("<f", x))[0]

A = Asm()

def srd(base, ptr, size):
    A(f"s_mov_b32 s{base}, s{ptr}\ns_mov_b32 s{base+1}, s{ptr+1}\ns_mov_b32 s{base+2}, {hex(size)}\ns_mov_b32 s{base+3}, 0x20000")

stamp_n = [0]
def stamp_reset(): stamp_n[0] = 0
def stamp():
    if not STAMP: return
    n = stamp_n[0]; stamp_n[0] += 1
    assert n < 16
    A(f"s_memtime s[{64+2*n}:{65+2*n}]")
def stamp_dyn(idx_s, base):
    if not STAMP: return
    A(f"s_memtime s[94:95]\ns_add_u32 s93, {idx_s}, {base}\ns_waitcnt lgkmcnt(0)\ns_mov_b32 m0, s93\nv_writelane_b32 v248, s94, m0")
def stamp_flush(kern, wsrd, vtmp, skip=()):
    if not STAMP: return
    n = stamp_n[0]
    A("s_memrealtime s[98:99]")
    A("s_waitcnt lgkmcnt(0)")
    A(f"s_lshl_b32 s60, s2, 3\ns_add_u32 s60, s60, s3\ns_lshl_b32 s60, s60, 6\ns_add_u32 s60, s60, {hex(TS_OFF + kern*0x40000)}")
    A("s_mov_b64 exec, -1")
    for i in range(14):
        if i in skip: continue
        A(f"v_writelane_b32 v248, {f's{64+2*i}' if i < n else '0'}, {i}")
    A("v_writelane_b32 v248, s96, 14\nv_writelane_b32 v248, s98, 15")
    A(f"v_lshlrev_b32 v249, 2, v0\ns_mov_b64 exec, 0xffff")
    A(f"buffer_store_dword v248, v249, s[{wsrd}:{wsrd+3}], s60 offen")
    A("s_mov_b64 exec, -1")

P_X, P_W, P_WO, P_ARE, P_AIM, P_BRE, P_BIM, P_CRE, P_CIM, P_LDT, P_DSK, P_GW, P_OUT, P_DBG, P_WS = 16,18,20,24,26,28,30,32,34,36,38,40,42,44,46

def common_prologue(endlabel):
    if STAMP: A("s_memrealtime s[96:97]")
    stamp()
    A(f"""
    s_cmp_ge_u32 s2, 256
    s_cbranch_scc1 {endlabel}
    s_load_dwordx16 s[16:31], s[0:1], 0
    s_load_dwordx16 s[32:47], s[0:1], 64
    v_lshrrev_b32 v1, 6, v0
    v_and_b32 v0, 63, v0
    v_readfirstlane_b32 s3, v1
    """)

def code_prefetch(lo, hi, tag):
    A(f"""
    s_getpc_b64 s[62:63]
PF_{tag}:
    s_add_u32 s62, s62, {lo}-PF_{tag}
    s_addc_u32 s63, s63, 0
    v_lshlrev_b32 v250, 7, v0
    v_min_u32 v250, ({hi}-{lo}-4), v250
    global_load_dword v251, v250, s[62:63]
    """)

SLOT = 40960
NSLOT = 3
def k1():
    A(".p2align 8\n" + (KN if FUSE else "k1_kernel") + ":")
    if SPIN: A("s_memrealtime s[100:101]")
    stamp_reset()
    common_prologue("K1_END")
    A("""
    s_and_b32 s4, s2, 7          ; xcd
    s_lshr_b32 s5, s2, 3         ; j
    s_cmp_ge_u32 s5, 16
    s_cbranch_scc1 K1_SSM
    """)
    A("""
    s_and_b32 s6, s4, 3
    s_lshl_b32 s6, s6, 2
    s_and_b32 s7, s5, 3
    s_add_u32 s6, s6, s7         ; mi
    s_lshr_b32 s7, s4, 2
    s_lshl_b32 s7, s7, 2
    s_lshr_b32 s8, s5, 2
    s_add_u32 s7, s7, s8         ; ni
    s_cmp_ge_u32 s3, 4
    s_cbranch_scc1 K1_LOADER
    """)
    gemm_compute()
    A("K1_LOADER:")
    gemm_loader()
    A("K1_SSM:")
    A("""
    s_sub_u32 s5, s5, 16         ; js
    s_cmp_ge_u32 s3, 4
    s_cbranch_scc1 K1_HELPER
    """)
    ssm_compute()
    A("K1_HELPER:")
    ssm_helper()
    A("K1_END:\ns_endpgm")

def gemm_loader():
    n0 = stamp_n[0]; stamp_n[0] = 1
    X, W, WS = 48, 52, 56
    A("s_sub_u32 s9, s3, 4          ; w")
    A("""
    v_lshrrev_b32 v2, 3, v0      ; lane>>3
    v_and_b32 v3, 7, v0
    v_lshrrev_b32 v4, 4, v0      ; lane>>4
    s_and_b32 s10, s9, 1
    s_lshl_b32 s10, s10, 2
    v_or_b32 v5, s10, v4
    v_xor_b32 v5, v5, v3
    s_lshl_b32 s10, s6, 7
    s_lshl_b32 s11, s9, 3
    s_add_u32 s10, s10, s11
    v_add_u32 v6, s10, v2        ; row
    v_lshlrev_b32 v6, 10, v6
    v_lshl_add_u32 v6, v5, 4, v6 ; vXsrc
    v_and_b32 v4, 1, v4
    v_lshlrev_b32 v4, 2, v4
    v_xor_b32 v4, v4, v3
    v_add_u32 v7, s11, v2
    v_mul_u32_u24 v7, 3072, v7
    v_lshl_add_u32 v7, v4, 4, v7
    s_lshl_b32 s10, s7, 7
    v_add_u32 v7, s10, v7        ; vWsrc
    s_lshl_b32 s12, s9, 10
    s_mul_i32 s13, s9, 3072
    s_add_u32 s13, s13, 16384
    s_lshl_b32 s10, s6, 7
    s_lshl_b32 s11, s7, 4
    s_add_u32 s10, s10, s11
    s_lshl_b32 s11, s9, 2
    s_add_u32 s14, s10, s11
    s_lshl_b32 s10, s14, 10
    v_lshlrev_b32 v8, 4, v0
    v_add_u32 v9, s10, v8
    s_waitcnt lgkmcnt(0)
    """)
    srd(X, P_X, 0x200000); srd(W, P_W, 0x180000); srd(WS, P_WS, WS_SIZE)
    stamp()
    A("s_add_u32 s15, s6, s7")
    def chunk_regs(n_s, xo, wo):
        A(f"""
        s_add_u32 s60, {n_s}, s15
        s_and_b32 s60, s60, 3
        s_and_b32 s61, {n_s}, 4
        s_or_b32 s60, s60, s61
        s_lshl_b32 {xo}, s60, 7
        s_mul_i32 {wo}, s60, {64*3072}
        """)
    def ldx(slot, xo, n):
        A(f"s_add_u32 s63, {slot}, s12")
        A(f"s_add_u32 m0, s63, {n*4096}")
        A(f"s_add_u32 s63, {xo}, {n*32768}")
        A(f"buffer_load_dwordx4 v6, s[{X}:{X+3}], s63 offen lds")
    def ldw(slot, wo, n):
        A(f"s_add_u32 s63, {slot}, s13")
        A(f"s_add_u32 m0, s63, {n*4*3072}")
        A(f"s_add_u32 s63, {wo}, {n*32*3072}")
        for p in range(3):
            A(f"buffer_load_dwordx4 v7, s[{W}:{W+3}], s63 offen offset:{p*1024} lds")
    def part1(slot, xo, wo): ldw(slot, wo, 0); ldx(slot, xo, 0); ldx(slot, xo, 1); ldx(slot, xo, 2)
    def part2(slot, xo, wo): ldw(slot, wo, 1); ldx(slot, xo, 3)
    A("s_mov_b32 s4, 0\ns_mov_b32 s5, 0")
    chunk_regs("s4", "s10", "s11")
    part1("s5", "s10", "s11")
    A("s_branch K1_LD_ENTER")
    A("K1_LD_LOOP:")
    A("s_waitcnt vmcnt(6)")
    stamp_dyn("s4", 3)
    A("s_barrier")
    A("K1_LD_ENTER:")
    part2("s5", "s10", "s11")
    A(f"""
    s_add_u32 s4, s4, 1
    s_cmp_eq_u32 s4, 8
    s_cbranch_scc1 K1_LD_DONE
    s_add_u32 s5, s5, {SLOT}
    s_cmp_eq_u32 s5, {NSLOT*SLOT}
    s_cselect_b32 s5, 0, s5
    """)
    chunk_regs("s4", "s10", "s11")
    part1("s5", "s10", "s11")
    A("s_branch K1_LD_LOOP")
    A("K1_LD_DONE:")
    for r in range(4):
        A(f"buffer_load_dwordx4 v[{16+4*r}:{19+4*r}], v9, s[{X}:{X+3}], 0 offen offset:{r*1024}")
    A(f"global_load_dwordx4 v[32:35], v8, s[{P_GW}:{P_GW+1}]")
    A("""
    s_waitcnt vmcnt(5)
    s_barrier
    s_waitcnt vmcnt(0)
    """)
    stamp()
    for r in range(4):
        A(f"v_mov_b32 v{40+r}, 0")
    for i in range(4):
        for r in range(4):
            A(f"v_dot2c_f32_bf16 v{40+r}, v{16+4*r+i}, v{32+i}")
    for m in ("row_shr:1","row_shr:2","row_shr:4","row_shr:8"):
        for r in range(4):
            A(f"v_add_f32_dpp v{40+r}, v{40+r}, v{40+r} {m} row_mask:0xf bank_mask:0xf bound_ctrl:0")
    for m in ("row_bcast:15 row_mask:0xa","row_bcast:31 row_mask:0xc"):
        for r in range(4):
            A(f"v_add_f32_dpp v{40+r}, v{40+r}, v{40+r} {m} bank_mask:0xf")
    for r in range(4):
        A(f"v_mul_f32 v{40+r}, {hex(f2u(-1.4426950408889634))}, v{40+r}")
    for r in range(4):
        A(f"v_exp_f32 v{40+r}, v{40+r}")
    for r in range(4):
        A(f"v_add_f32 v{40+r}, 1.0, v{40+r}")
    for r in range(4):
        A(f"v_rcp_f32 v{40+r}, v{40+r}")
    A(f"""
    s_lshl_b32 s10, s14, 2
    s_add_u32 s10, s10, {hex(G_OFF)}
    v_mov_b32 v10, s10
    s_mov_b32 exec_lo, 0
    s_mov_b32 exec_hi, 0x80000000
    buffer_store_dwordx4 v[40:43], v10, s[{WS}:{WS+3}], 0 offen
    """)
    stamp()
    stamp_flush(0, WS, 100, skip=range(4, 11))
    if FUSE: A("s_waitcnt vmcnt(0)\ns_barrier")
    A("s_endpgm")
    stamp_n[0] = n0

def gemm_compute():
    n0 = stamp_n[0]
    WS = 56
    ACC = {"q": (64, 80), "k": (96, 112), "v": (128, 144)}
    SET = (16, 36)
    A("""
    s_and_b32 s8, s3, 1          ; mw
    s_lshr_b32 s9, s3, 1         ; nw
    v_and_b32 v1, 31, v0
    v_lshrrev_b32 v2, 5, v0      ; hf
    v_bfe_u32 v3, v0, 1, 3       ; f
    v_xor_b32 v3, v3, v2         ; hf^f
    s_lshl_b32 s10, s8, 6
    v_add_u32 v1, s10, v1
    v_lshlrev_b32 v1, 7, v1      ; row*128
    """)
    for ks in range(4):
        A(f"v_xor_b32 v{4+ks}, {2*ks}, v3")
        A(f"v_lshl_add_u32 v{4+ks}, v{4+ks}, 4, v1")
    A("""
    v_mul_u32_u24 v8, 3072, v2   ; (g>>1)*3072
    v_bfe_u32 v1, v0, 2, 2       ; l'>>2
    v_lshl_add_u32 v8, v1, 7, v8
    v_bfe_u32 v1, v0, 4, 1       ; g&1
    v_lshlrev_b32 v1, 5, v1
    v_and_b32 v3, 3, v0
    v_lshl_add_u32 v1, v3, 3, v1
    s_lshl_b32 s10, s9, 6
    v_add_u32 v1, s10, v1
    v_bfe_u32 v3, v0, 3, 1
    v_lshlrev_b32 v3, 6, v3
    v_xor_b32 v1, v1, v3
    v_add_u32 v8, v8, v1
    v_add_u32 v8, 16384, v8      ; vWa
    """)
    for r in range(64, 160):
        A(f"v_mov_b32 v{r}, 0")
    A("s_waitcnt lgkmcnt(0)")
    srd(WS, P_WS, WS_SIZE)
    def reads(ks, st):
        b = SET[st]
        L = [f"ds_read_b128 v[{b}:{b+3}], v{9+ks}",
             f"ds_read_b128 v[{b+4}:{b+7}], v{9+ks} offset:4096"]
        for p in range(3):
            for t in range(2):
                L.append(f"ds_read_b64_tr_b16 v[{b+8+4*p+2*t}:{b+9+4*p+2*t}], v13 offset:{ks*6144+p*1024+t*512}")
        return L
    def mfmas(st):
        b = SET[st]
        L = []
        for p, nm in enumerate("qkv"):
            for mb in range(2):
                d = ACC[nm][mb]
                xf = f"v[{b+4*mb}:{b+4*mb+3}]"; wf = f"v[{b+8+4*p}:{b+11+4*p}]"
                if nm == "q": L.append(f"v_mfma_f32_32x32x16_bf16 v[{d}:{d+15}], {wf}, {xf}, v[{d}:{d+15}]")
                else: L.append(f"v_mfma_f32_32x32x16_bf16 v[{d}:{d+15}], {xf}, {wf}, v[{d}:{d+15}]")
        return L
    def setaddr():
        for i in range(5):
            A(f"v_add_u32 v{9+i}, s5, v{4+i}")
    A("s_mov_b32 s5, 0\ns_mov_b32 s4, 0")
    setaddr()
    stamp()
    A("s_barrier")
    stamp()
    for r in reads(0, 0): A(r)
    A("K1_G_LOOP:")
    for ks in range(4):
        st = ks & 1
        M = mfmas(st)
        A("s_waitcnt lgkmcnt(0)")
        if ks < 3:
            R = reads(ks+1, st ^ 1)
            A(M[0]); [A(r) for r in R[0:3]]
            A(M[1]); [A(r) for r in R[3:6]]
            A(M[2]); [A(r) for r in R[6:8]]
            for m in M[3:]: A(m)
        else:
            A(M[0])
            A(f"""
            s_add_u32 s5, s5, {SLOT}
            s_cmp_eq_u32 s5, {NSLOT*SLOT}
            s_cselect_b32 s5, 0, s5
            s_add_u32 s4, s4, 1
            s_cmp_eq_u32 s4, 8
            s_cbranch_scc1 K1_G_TAIL
            """)
            setaddr()
            A("s_barrier")
            R = reads(0, 0)
            A(M[1]); [A(r) for r in R[0:3]]
            A(M[2]); [A(r) for r in R[3:6]]
            A(M[3]); [A(r) for r in R[6:8]]
            for m in M[4:]: A(m)
            A("s_branch K1_G_LOOP")
            A("K1_G_TAIL:")
            for m in M[1:]: A(m)
    stamp()
    A(f"""
    s_lshl_b32 s10, s7, 2
    v_mov_b32 v1, s10
    global_load_dword v2, v1, s[{P_DBG}:{P_DBG+1}] sc1
    s_mov_b32 s10, {hex(LOG2E)}
    s_mov_b32 s11, {hex(LOG2E)}
    """)
    def phi(base, dst):
        for i in range(0, 16, 2):
            A(f"v_pk_mul_f32 v[{16+i}:{17+i}], v[{base+i}:{base+i+1}], s[10:11]")
        for i in range(16):
            A(f"v_exp_f32_e64 v{16+i}, v{16+i} clamp")
            A(f"v_max_f32 v{base+i}, {hex(EPS)}, v{base+i}")
        for i in range(0, 16, 2):
            A(f"v_pk_add_f32 v[{base+i}:{base+i+1}], v[{base+i}:{base+i+1}], v[{16+i}:{17+i}]")
        for i in range(8):
            A(f"v_cvt_pk_bf16_f32 v{dst+i}, v{base+2*i}, v{base+2*i+1}")
    PK = (160, 168); VV = (176, 184)
    phi(ACC["k"][0], PK[0]); phi(ACC["k"][1], PK[1])
    for mb in range(2):
        for i in range(8):
            A(f"v_cvt_pk_bf16_f32 v{VV[mb]+i}, v{ACC['v'][mb]+2*i}, v{ACC['v'][mb]+2*i+1}")
    for i in range(4):
        A(f"v_mov_b32 v{32+i}, 0x3f803f80")
    KVA = 192; ZA = 208
    first = True
    for mb in range(2):
        for fr in range(2):
            c1 = "0" if first else f"v[{KVA}:{KVA+15}]"
            c2 = "0" if first else f"v[{ZA}:{ZA+15}]"
            pk = f"v[{PK[mb]+4*fr}:{PK[mb]+4*fr+3}]"; vv = f"v[{VV[mb]+4*fr}:{VV[mb]+4*fr+3}]"
            A(f"v_mfma_f32_32x32x16_bf16 v[{KVA}:{KVA+15}], {vv}, {pk}, {c1}")
            A(f"v_mfma_f32_32x32x16_bf16 v[{ZA}:{ZA+15}], v[32:35], {pk}, {c2}")
            first = False
    A(f"""
    s_lshl_b32 s12, s7, 2
    s_lshl_b32 s13, s9, 1
    s_add_u32 s12, s12, s13      ; head0
    v_bfe_u32 v3, v0, 4, 1
    v_add_u32 v3, s12, v3
    v_mul_u32_u24 v3, {HS}, v3
    v_and_b32 v4, 3, v0
    v_bfe_u32 v5, v0, 2, 1
    v_lshl_add_u32 v4, v5, 3, v4
    v_bfe_u32 v5, v0, 3, 1
    v_lshl_add_u32 v4, v5, 2, v4 ; p
    v_lshl_add_u32 v3, v4, 2, v3
    v_add_u32 v3, {hex(KV_OFF)}, v3
    v_lshrrev_b32 v5, 5, v0
    v_lshl_add_u32 v4, v5, 8, v3 ; + hf*256
    v_and_b32 v5, 16, v0
    v_cmp_ne_u32 vcc, 0, v5
    """)
    for i in range(8):
        A(f"v_cndmask_b32 v{KVA+i}, v{KVA+i}, v{KVA+8+i}, vcc")
    A(f"""
    s_mov_b32 s14, 0
K1_POLL:
    s_waitcnt vmcnt(0)
    v_readfirstlane_b32 s13, v2
    s_cmp_lg_u32 s13, 0
    s_cbranch_scc1 K1_POLL_DONE
    s_add_u32 s14, s14, 1
    s_cmp_gt_u32 s14, 0x40000
    s_cbranch_scc1 K1_POLL_DONE
    s_sleep 2
    global_load_dword v2, v1, s[{P_DBG}:{P_DBG+1}] sc1
    s_branch K1_POLL
K1_POLL_DONE:
    """)
    for i in range(8):
        e = 8*(i >> 2) + (i & 3)
        A(f"buffer_atomic_add_f32 v{KVA+i}, v4, s[{WS}:{WS+3}], 0 offen offset:{e*64}")
    A("s_mov_b32 exec_hi, 0")
    A(f"buffer_atomic_add_f32 v{ZA}, v3, s[{WS}:{WS+3}], 0 offen offset:1024")
    A("s_mov_b32 exec_hi, -1")
    stamp()
    A(f"""
    s_lshl_b32 s13, s6, 2
    s_lshl_b32 s14, s8, 1
    s_add_u32 s13, s13, s14
    s_lshl_b32 s13, s13, 5
    s_add_u32 s13, s13, s12      ; rb0*32+head0
    s_lshl_b32 s13, s13, 10
    v_lshlrev_b32 v3, 4, v0
    v_add_u32 v3, s13, v3
    s_mov_b32 s14, 32768
    """)
    for mb in range(2):
        phi(ACC["q"][mb], PK[mb])
        so = "0" if mb == 0 else "s14"
        A(f"buffer_store_dwordx4 v[{PK[mb]}:{PK[mb]+3}], v3, s[{WS}:{WS+3}], {so} offen")
        A(f"buffer_store_dwordx4 v[{PK[mb]+4}:{PK[mb]+7}], v3, s[{WS}:{WS+3}], {so} offen offset:1024")
    if STAMP: A("s_waitcnt vmcnt(0)")
    stamp()
    stamp_flush(0, WS, 100)
    A("s_branch K_SYNC" if FUSE else "s_endpgm")
    stamp_n[0] = n0

TROW = 528
L_TA = 0
L_TB = 22*TROW
L_U = 54*TROW
L_KR0 = L_U + 4608
L_KR1 = L_KR0 + 1152 + 64
L_T = L_KR1 + 1152 + 64
TSEQ = 192
TCOPY = 6*TSEQ + 64
CH = L_T + 2*TCOPY
CH = (CH + 255)//256*256
assert 4*CH <= 163840, CH
AROWS = list(range(9)) + [256,258,260,262,264] + [516,520,772,776] + [1032,1288,1544,1800]
HROWS = ([0,1,2,3,4,5,6,7,8,516,520,772,776,0,0,0], [256,256,258,260,260,260,262,264,264,1032,1288,1544,1800,0,0,0])
BOX = [(3,3,-16),(5,6,-16),(3,11,-16),(5,14,-24),(7,5,-16),(9,12,-24)]

def ssm_tables():
    T = []
    for (ln, o, off) in BOX:
        for lane in range(64):
            b = lane & 15; q = lane >> 4
            h = []
            for i in range(8):
                e = off + 8*q + i
                h.append(0x3f80 if (b - o - ln + 1 <= e <= b - o) else 0)
            T += [h[2*i] | (h[2*i+1] << 16) for i in range(4)]
    for lane in range(64):
        b = lane & 15; q = lane >> 4
        h = [0xffff if (16 + b - (8*q+i)) in (3, 4) else 0 for i in range(8)]
        T += [h[2*i] | (h[2*i+1] << 16) for i in range(4)]
    for lane in range(64):
        j = lane & 31; h = lane >> 5
        w = []
        for kap in range(4):
            if h == 0:
                seq = 2*(j & 1) + (kap & 1); kp = 32 + 16*(kap >> 1) + (j >> 1); Q0 = 79
            else:
                seq = 4 + (j & 1); kp = 64 + 16*kap + (j >> 1); Q0 = 127
            w.append(L_T + seq*TSEQ + 2*(Q0 - kp))
        T += w
    for lane in range(64):
        R = lane & 31; hf = lane >> 5
        g = R >> 3; h = (R >> 2) & 1; i = R & 3
        arow = AROWS.index(HROWS[h][4*g+i])
        ta = L_TA + arow*TROW + hf*16
        b = lane & 15; q = lane >> 4
        p0 = 535 - 32*16 - b + 8*q
        kr = (L_KR1 + 2*(p0+1)) if (p0 & 1) else (L_KR0 + 2*p0)
        p0 = 15 - b + 4*q
        tf = (L_T + TCOPY + 2*(p0+1)) if (p0 & 1) else (L_T + 2*p0)
        fr = L_U + 512 - 32 + 32*b + 16*q
        T += [ta, kr, tf, fr]
    return T

def ssm_helper():
    n0 = stamp_n[0]; stamp_n[0] = 1
    X, WS = 48, 56
    A("""
    s_sub_u32 s9, s3, 4
    s_lshl_b32 s10, s9, 6
    v_add_u32 v1, s10, v0        ; t = 0..255
    s_lshl_b32 s10, s4, 7
    s_lshl_b32 s11, s5, 3
    s_add_u32 s10, s10, s11
    v_lshlrev_b32 v2, 10, v1
    v_add_u32 v2, s10, v2
    s_lshr_b32 s12, s5, 1        ; rotation
    v_mov_b32 v40, 0
    v_mov_b32 v41, 0
    v_mov_b32 v42, 0
    v_mov_b32 v43, 0
    s_waitcnt lgkmcnt(0)
    """)
    srd(X, P_X, 0x200000); srd(WS, P_WS, WS_SIZE)
    stamp()
    for i in range(8):
        A(f"s_add_u32 s13, s12, {i}\ns_and_b32 s13, s13, 7\ns_lshl_b32 s13, s13, 18")
        A(f"buffer_load_dwordx2 v[{16+2*i}:{17+2*i}], v2, s[{X}:{X+3}], s13 offen")
    A(f"""
    s_or_b32 s13, s5, s9
    s_cmp_lg_u32 s13, 0
    s_cbranch_scc1 K1_H_NOZ
    s_mul_i32 s13, s4, {4*HS}
    s_add_u32 s13, s13, {hex(KV_OFF)}
    v_lshlrev_b32 v3, 4, v0
    """)
    for i in range(4*HS//1024):
        A(f"buffer_store_dwordx4 v[40:43], v3, s[{WS}:{WS+3}], s13 offen sc0 sc1")
        A("s_add_u32 s13, s13, 1024")
    A(f"""
    s_waitcnt vmcnt(0)
    s_lshl_b32 s13, s4, 2
    v_mov_b32 v3, s13
    v_mov_b32 v4, 1
    s_mov_b64 exec, 1
    global_store_dword v3, v4, s[{P_DBG}:{P_DBG+1}] sc0 sc1
    s_mov_b64 exec, -1
K1_H_NOZ:
    """)
    A(f"""
    s_mul_i32 s13, s9, {CH}
    v_lshlrev_b32 v3, 3, v0
    v_add_u32 v3, s13, v3
    ds_write_b64 v3, v[40:41] offset:{L_U}
    v_lshlrev_b32 v1, 1, v1
    v_add_u32 v1, {L_U+512}, v1
    """)
    for i in range(8):
        A(f"s_add_u32 s13, s12, {i}\ns_and_b32 s13, s13, 7\ns_lshl_b32 s13, s13, 9")
        A(f"v_add_u32 v3, s13, v1")
        A(f"v_add_u32 v4, {2*CH}, v3")
        A(f"s_waitcnt vmcnt({7-i})")
        A(f"ds_write_b16 v3, v{16+2*i}")
        A(f"ds_write_b16_d16_hi v3, v{16+2*i} offset:{CH}")
        A(f"ds_write_b16 v4, v{17+2*i}")
        A(f"ds_write_b16_d16_hi v4, v{17+2*i} offset:{CH}")
    A("s_waitcnt lgkmcnt(0)")
    stamp()
    A("s_barrier")
    if PF:
        A(f"""
        s_lshl_b32 s13, s5, 2
        s_add_u32 s13, s13, s9
        s_lshl_b32 s13, s13, 13
        v_lshlrev_b32 v3, 7, v0
        v_add_u32 v3, s13, v3
        global_load_dword v4, v3, s[{P_WO}:{P_WO+1}]
        """)
        code_prefetch("k2_kernel", "K2_END", "k2")
    stamp_flush(0, WS, 100)
    A("s_endpgm")
    stamp_n[0] = n0

def cmul(d, x, y):
    return [f"v_pk_mul_f32 v[{d}:{d+1}], v[{x}:{x+1}], v[{y}:{y+1}] op_sel:[0,0] op_sel_hi:[1,0]",
            f"v_pk_fma_f32 v[{d}:{d+1}], v[{x}:{x+1}], v[{y}:{y+1}], v[{d}:{d+1}] op_sel:[1,1,0] op_sel_hi:[0,1,1] neg_lo:[1,0,0]"]

def ssm_compute():
    n0 = stamp_n[0]
    WS = 56
    A("""
    s_lshl_b32 s6, s4, 6
    s_lshl_b32 s7, s5, 2
    s_add_u32 s6, s6, s7         ; ch0
    s_add_u32 s7, s6, s3         ; ch
    s_lshl_b32 s8, s7, 8
    v_lshlrev_b32 v1, 2, v0
    v_add_u32 v1, s8, v1
    v_lshlrev_b32 v2, 4, v0
    s_getpc_b64 s[10:11]
K1_PC:
    s_add_u32 s10, s10, K1_TABLE-K1_PC
    s_addc_u32 s11, s11, 0
    s_lshl_b32 s9, s6, 1
    s_waitcnt lgkmcnt(0)
    """)
    stamp()
    for n, p in enumerate((P_ARE, P_AIM, P_BRE, P_BIM, P_CRE, P_CIM)):
        A(f"global_load_dword v{4+n}, v1, s[{p}:{p+1}]")
    A(f"s_load_dwordx2 s[12:13], s[{P_LDT}:{P_LDT+1}], s9")
    A(f"s_load_dwordx2 s[14:15], s[{P_DSK}:{P_DSK+1}], s9")
    BOXR = 200
    for n in range(9):
        if n == 4: A("v_add_u32 v2, 4096, v2")
        if n == 8: A("v_add_u32 v2, 4096, v2")
        A(f"global_load_dwordx4 v[{BOXR+4*n}:{BOXR+4*n+3}], v2, s[10:11] offset:{(n%4)*1024}")
    srd(WS, P_WS, WS_SIZE)
    A(f"""
    s_mul_i32 s8, s3, {CH}
    v_mov_b32 v16, 0
    v_mov_b32 v17, 0
    v_mov_b32 v18, 0
    v_mov_b32 v19, 0
    v_lshlrev_b32 v3, 4, v0
    v_add_u32 v3, s8, v3
    """)
    zl = CH - L_KR0
    for o in range(0, zl, 1024):
        oo = min(o, zl - 1024)
        A(f"ds_write_b128 v3, v[16:19] offset:{L_KR0+oo}")
    A("""
    s_waitcnt lgkmcnt(0)
    s_lshl_b32 s9, s3, 4
    s_lshr_b64 s[12:13], s[12:13], s9
    s_lshl_b32 s12, s12, 16
    s_lshr_b64 s[14:15], s[14:15], s9
    s_lshl_b32 s14, s14, 16
    """)
    A(f"""
    v_mov_b32 v10, {hex(LOG2E)}
    v_mul_f32 v10, s12, v10
    v_exp_f32 v10, v10
    v_cvt_pk_bf16_f32 v10, v10, v10
    v_and_b32 v10, 0xffff0000, v10   ; dt
    s_waitcnt vmcnt(9)
    """)
    stamp()
    for n in range(6):
        A(f"v_lshlrev_b32 v{20+2*n}, 16, v{4+n}")
        A(f"v_and_b32 v{21+2*n}, 0xffff0000, v{4+n}")
    for r in range(20, 28):
        A(f"v_mul_f32 v{r}, v10, v{r}")
    AV = {}
    nxt = [40]
    def alloc():
        r = nxt[0]; nxt[0] += 4; return r
    for r in AROWS: AV[r] = alloc()
    E1, E8, E256 = alloc(), alloc(), alloc()
    B0, B1 = alloc(), alloc()
    for m in range(2):
        d = AV[0] + 2*m
        A(f"v_mul_f32 v{d}, v{28+m}, v{24+m}")
        A(f"v_mul_f32 v{d+1}, v{28+m}, v{26+m}")
        A(f"v_fma_f32 v{d}, -v{30+m}, v{26+m}, v{d}")
        A(f"v_fma_f32 v{d+1}, v{30+m}, v{24+m}, v{d+1}")
    for (E, r, sgn) in ((E1, 1, 1.0), (E8, 8, -1.0), (E256, 256, 1.0)):
        for m in range(2):
            A(f"v_mul_f32 v{32+m}, {hex(f2u(r*1.4426950408889634))}, v{20+m}")
            A(f"v_mul_f32 v{34+m}, {hex(f2u(sgn*r*0.15915494309189535))}, v{22+m}")
        for m in range(2):
            A(f"v_exp_f32 v{32+m}, v{32+m}")
            A(f"v_fract_f32 v{34+m}, v{34+m}")
        for m in range(2):
            A(f"v_cos_f32 v{E+2*m}, v{34+m}")
            A(f"v_sin_f32 v{E+2*m+1}, v{34+m}")
        for m in range(2):
            A(f"v_mul_f32 v{E+2*m}, v{32+m}, v{E+2*m}")
            A(f"v_mul_f32 v{E+2*m+1}, v{32+m}, v{E+2*m+1}")
    A(f"v_lshlrev_b32 v3, 3, v0\nv_add_u32 v3, s8, v3")
    def emit_row(src, ldsrow, tmp):
        return [f"v_cvt_pk_bf16_f32 v{tmp}, v{src}, v{src+1}",
                f"v_cvt_pk_bf16_f32 v{tmp+1}, v{src+2}, v{src+3}",
                f"ds_write_b64 v3, v[{tmp}:{tmp+1}] offset:{ldsrow*TROW}"]
    asteps = [(0, None, None)]
    for r in range(1, 9): asteps.append((r, r-1, E1))
    for r in (256,258,260,262,264,516,520,772,776,1032,1288,1544,1800): asteps.append((r, r-256, E256))
    def astep(n):
        r, src, E = asteps[n]
        L = []
        if src is not None:
            c0 = cmul(AV[r], AV[src], E); c1 = cmul(AV[r]+2, AV[src]+2, E+2)
            L += [c0[0], c1[0], c0[1], c1[1]]
        return L, emit_row(AV[r], AROWS.index(r), 150 + 2*(n & 1))
    def bstep(j):
        if j == 0:
            return ["v_mov_b32 v154, 0x3f80", "v_mov_b32 v155, 0x3f80"], [f"ds_write_b64 v3, v[154:155] offset:{22*TROW}"]
        if j == 1:
            return [], emit_row(E8, 23, 156)
        src = E8 if j == 2 else (B0 if (j & 1) else B1)
        dst = B1 if (j & 1) else B0
        c0 = cmul(dst, src, E8); c1 = cmul(dst+2, src+2, E8+2)
        return [c0[0], c1[0], c0[1], c1[1]], emit_row(dst, 22+j, 154 + 2*(j & 1))
    for j in range(32):
        bm, be = bstep(j)
        am, ae = astep(j) if j < len(asteps) else ([], [])
        for k in range(max(len(bm), len(am))):
            if k < len(bm): A(bm[k])
            if k < len(am): A(am[k])
        for x in be: A(x)
        for x in ae: A(x)
    stamp()
    A(f"""
    s_waitcnt vmcnt(0)
    v_add_u32 v232, s8, v232
    v_add_u32 v233, s8, v233
    v_add_u32 v234, s8, v234     ; T read
    v_add_u32 v235, s8, v235     ; F read
    v_add_u32 v228, s8, v228
    v_add_u32 v229, s8, v229
    v_add_u32 v230, s8, v230
    v_add_u32 v231, s8, v231
    v_and_b32 v4, 31, v0
    v_mul_u32_u24 v4, {TROW}, v4
    v_lshrrev_b32 v5, 5, v0
    v_lshl_add_u32 v4, v5, 4, v4
    v_add_u32 v4, s8, v4
    s_waitcnt lgkmcnt(0)
    """)
    KA = 16
    FR = 40
    for s_ in range(16):
        A(f"ds_read_b128 v[{FR+8*s_}:{FR+8*s_+3}], v232 offset:{32*s_}")
        A(f"ds_read_b128 v[{FR+8*s_+4}:{FR+8*s_+7}], v4 offset:{L_TB+32*s_}")
        if s_ >= 6:
            t = s_ - 6
            A(f"s_waitcnt lgkmcnt(12)")
            A(f"v_mfma_f32_32x32x16_bf16 v[{KA}:{KA+15}], v[{FR+8*t}:{FR+8*t+3}], v[{FR+8*t+4}:{FR+8*t+7}], {'0' if t == 0 else f'v[{KA}:{KA+15}]'}")
    for t in range(10, 16):
        A(f"s_waitcnt lgkmcnt({2*(15-t)})")
        A(f"v_mfma_f32_32x32x16_bf16 v[{KA}:{KA+15}], v[{FR+8*t}:{FR+8*t+3}], v[{FR+8*t+4}:{FR+8*t+7}], v[{KA}:{KA+15}]")
    A(f"""
    v_mov_b32 v5, 0
    v_writelane_b32 v5, s14, 0
    v_lshlrev_b32 v6, 4, v0
    v_sub_u32 v6, {L_KR0+1088}, v6
    v_add_u32 v6, s8, v6
    v_add_f32 v{KA}, v{KA}, v5
    """)
    for i in range(4):
        A(f"v_cvt_pk_bf16_f32 v{40+i}, v{KA+7-2*i}, v{KA+6-2*i}")
    for i in range(4):
        A(f"v_cvt_pk_bf16_f32 v{44+i}, v{KA+8-2*i}, v{KA+7-2*i}")
    A(f"ds_write_b128 v6, v[40:43]")
    A(f"ds_write_b128 v6, v[44:47] offset:{L_KR1-L_KR0}")
    for k in range(4):
        A(f"v_cvt_pk_bf16_f32 v{48+k}, v{KA+9+k}, v{KA+9+k}")
    A(f"v_cvt_pk_bf16_f32 v52, v{KA+8}, v{KA+8}")
    for k in range(4):
        A(f"ds_write_b16 v{228+k}, v{48+k}")
        A(f"ds_write_b16 v{228+k}, v{48+k} offset:{TCOPY+2}")
    A(f"""
    v_mov_b32 v7, s8
    s_mov_b64 exec, 1
    ds_write_b16_d16_hi v7, v43 offset:{L_KR1+2*552}
    s_mov_b32 exec_lo, 0
    s_mov_b32 exec_hi, 0x80000000
    ds_write_b32 v7, v52 offset:{L_KR0+2*38}
    ds_write_b16 v7, v52 offset:{L_KR0+2*37}
    ds_write_b32 v7, v52 offset:{L_KR1+2*38}
    s_mov_b64 exec, -1
    v_readlane_b32 s15, v51, 31      ; (K1024,K1024) packed
    """)
    for i in range(4):
        A(f"v_and_b32 v{224+i}, s15, v{224+i}")
    stamp()
    A("s_waitcnt lgkmcnt(0)\ns_barrier")
    stamp()
    ACC = 160
    F0 = 16
    F1 = 48
    G = 48
    XP = 80
    TMP = 144
    AF = (192, 236)
    for t in range(8):
        A(f"ds_read_b128 v[{F0+4*t}:{F0+4*t+3}], v235 offset:{512*t}")
    A("v_subrev_u32 v4, 16, v235")
    for t in range(6):
        A(f"ds_read_b128 v[{G+4*t}:{G+4*t+3}], v4 offset:{512*t}")
    A("s_waitcnt lgkmcnt(0)")
    jobs = []
    for tau in range(6):
        jobs += [(0, tau), (1, tau)]
        if tau < 4: jobs.append((2, tau))
    def xreg(pair, tau): return XP + 4*((0, 6, 12)[pair] + tau)
    def boxm(n):
        pair, tau = jobs[n]
        for hh in range(2):
            sq = 2*pair + hh
            src = (G if BOX[sq][2] == -24 else F0) + 4*tau
            d = TMP + 8*(n & 1) + 4*hh
            A(f"v_mfma_f32_16x16x32_bf16 v[{d}:{d+3}], v[{src}:{src+3}], v[{BOXR+4*sq}:{BOXR+4*sq+3}], 0")
    def boxc(n):
        pair, tau = jobs[n]
        d = TMP + 8*(n & 1); x = xreg(pair, tau)
        for i in range(4):
            A(f"v_cvt_pk_bf16_f32 v{x+i}, v{d+2*i}, v{d+2*i+1}")
    for n in range(len(jobs)):
        boxm(n)
        if n > 0: boxc(n-1)
    boxc(len(jobs)-1)
    TF = [200,204,208,212,216,220,48,52,56,60]
    def tf(pair, dl):
        return TF[(dl-2) + 3*pair] if pair < 2 else TF[6 + dl - 4]
    for pair in range(3):
        dls = (2,3,4) if pair < 2 else (4,5,6,7)
        for dl in dls:
            r = tf(pair, dl)
            for hh in range(2):
                o = ((2*pair+hh)*TSEQ + 32*(dls[-1]-dl))//4
                if o + 1 > 255:
                    A(f"ds_read2_b32 v[{r+2*hh}:{r+2*hh+1}], v5 offset0:{o-192} offset1:{o-191}")
                else:
                    A(f"ds_read2_b32 v[{r+2*hh}:{r+2*hh+1}], v234 offset0:{o} offset1:{o+1}")
        if pair == 0: A("v_add_u32 v5, 768, v234")
    A("v_add_u32 v6, 512, v233      ; c=8 base")
    A("ds_read2_b32 v[64:65], v233 offset0:0 offset1:1\nds_read2_b32 v[66:67], v233 offset0:2 offset1:3")
    def aread(buf):
        b = AF[buf]
        return [f"ds_read2_b32 v[{b}:{b+1}], v6 offset0:128 offset1:129", f"ds_read2_b32 v[{b+2}:{b+3}], v6 offset0:130 offset1:131",
                f"ds_read2_b32 v[{b+4}:{b+5}], v6 offset0:0 offset1:1", f"ds_read2_b32 v[{b+6}:{b+7}], v6 offset0:2 offset1:3"]
    for x in aread(0): A(x)
    A("s_waitcnt lgkmcnt(0)")
    started = set()
    def mm(t, af, bf):
        c = f"v[{ACC+4*t}:{ACC+4*t+3}]" if t in started else "0"
        started.add(t)
        return f"v_mfma_f32_16x16x32_bf16 v[{ACC+4*t}:{ACC+4*t+3}], v[{af}:{af+3}], v[{bf}:{bf+3}], {c}"
    for pair in range(3):
        dls = (2,3,4) if pair < 2 else (4,5,6,7)
        for dl in dls:
            for t in range(dl, 8):
                A(mm(t, xreg(pair, t-dl), tf(pair, dl)))
    for t in range(2, 8): A(mm(t, 64, F0+4*(t-2)))
    for t in range(4, 8): A(mm(t, 224, F0+4*(t-4)))
    A(f"v_mov_b32 v{ACC}, 0\nv_mov_b32 v{ACC+1}, 0\nv_mov_b32 v{ACC+2}, 0\nv_mov_b32 v{ACC+3}, 0")
    A(f"v_mov_b32 v{ACC+4}, 0\nv_mov_b32 v{ACC+5}, 0\nv_mov_b32 v{ACC+6}, 0\nv_mov_b32 v{ACC+7}, 0")
    started |= {0, 1}
    stamp()
    A("s_mov_b32 s9, 0")
    A("K1_S_LOOP:")
    for half in range(2):
        cur = (F0, F1)[half]; nx = (F1, F0)[half]
        A("v_subrev_u32 v235, 64, v235\nv_subrev_u32 v6, 64, v6")
        R = aread(half ^ 1) + [f"ds_read_b128 v[{nx+4*t}:{nx+4*t+3}], v235 offset:{512*t}" for t in range(8)]
        M = [mm(t, AF[half], cur+4*t) for t in range(8)] + [mm(t, AF[half]+4, cur+4*(t-1)) for t in range(1, 8)]
        for i, m in enumerate(M):
            A(m)
            if i < len(R): A(R[i])
        A("s_waitcnt lgkmcnt(0)")
    A("""
    s_add_u32 s9, s9, 1
    s_cmp_lt_u32 s9, 4
    s_cbranch_scc1 K1_S_LOOP
    """)
    stamp()
    A(f"""
    s_lshl_b32 s9, s7, 12
    s_add_u32 s9, s9, {hex(BT_OFF)}
    v_and_b32 v1, 15, v0
    v_lshrrev_b32 v2, 4, v0
    v_lshlrev_b32 v1, 5, v1
    v_lshl_add_u32 v1, v2, 3, v1
    """)
    for t in range(8):
        A(f"v_cvt_pk_bf16_f32 v{16+2*t}, v{ACC+4*t}, v{ACC+4*t+1}")
        A(f"v_cvt_pk_bf16_f32 v{17+2*t}, v{ACC+4*t+2}, v{ACC+4*t+3}")
        A(f"buffer_store_dwordx2 v[{16+2*t}:{17+2*t}], v1, s[{WS}:{WS+3}], s9 offen offset:{512*t}")
    if STAMP: A("s_waitcnt vmcnt(0)")
    stamp()
    stamp_flush(0, WS, 100)
    A("s_branch K_SYNC" if FUSE else "s_endpgm")
    stamp_n[0] = n0

K2_WO = 0
K2_PQ = 65536
K2_KV = 131072
KVS = 576
K2_RED = 0
K2_LDS = K2_KV + 32*KVS
def k2():
    stamp_reset()
    A(".p2align 8\nk2_kernel:")
    common_prologue("K2_END")
    WO, WS, OUT = 48, 52, 56
    A("""
    s_and_b32 s4, s2, 7
    s_lshr_b32 s5, s2, 3
    s_and_b32 s6, s4, 3
    s_lshl_b32 s6, s6, 3
    s_lshr_b32 s7, s4, 2
    s_lshl_b32 s7, s7, 2
    s_add_u32 s6, s6, s7
    s_and_b32 s7, s5, 3
    s_add_u32 s6, s6, s7         ; rt (0..31)
    s_lshr_b32 s7, s5, 2         ; ct (0..7)
    s_and_b32 s8, s3, 1          ; sw
    s_bfe_u32 s9, s3, 0x10001    ; kw
    v_lshlrev_b32 v1, 4, v0
    s_cmp_ge_u32 s3, 4
    s_cbranch_scc1 K2_LOADER
    """)
    k2_compute(WO, WS, OUT)
    A("K2_LOADER:")
    n0 = stamp_n[0]; stamp_n[0] = 1
    A(f"""
    v_lshrrev_b32 v6, 3, v0
    s_lshl_b32 s12, s9, 8
    s_lshl_b32 s13, s8, 5
    s_add_u32 s12, s12, s13
    v_add_u32 v6, s12, v6
    v_lshlrev_b32 v6, 10, v6
    v_bfe_u32 v7, v0, 4, 1
    v_lshlrev_b32 v7, 2, v7
    v_and_b32 v8, 7, v0
    v_xor_b32 v7, v7, v8
    v_lshl_add_u32 v6, v7, 4, v6
    s_lshl_b32 s13, s7, 7
    v_add_u32 v6, s13, v6        ; vWOsrc
    s_lshl_b32 s12, s12, 7
    s_lshl_b32 s13, s8, 5
    s_lshl_b32 s14, s9, 4
    s_add_u32 s13, s13, s14      ; sw*32+16kw
    s_lshl_b32 s13, s13, 10
    s_lshl_b32 s14, s6, 16
    s_add_u32 s14, s14, s13
    v_add_u32 v7, s14, v1
    s_add_u32 s13, s13, {K2_PQ}
    s_waitcnt lgkmcnt(0)
    """)
    srd(WO, P_WO, 0x80000); srd(WS, P_WS, WS_SIZE)
    stamp()
    A("s_barrier")
    def pq(st):
        A(f"s_add_u32 m0, s13, {st*4096}\ns_movk_i32 s60, {st*4096}")
        for i in range(4):
            A(f"buffer_load_dwordx4 v7, s[{WS}:{WS+3}], s60 offen offset:{i*1024} lds")
    def wo(st, i):
        A(f"s_add_u32 m0, s12, {st*8192+i*1024}\ns_mov_b32 s60, {st*65536+i*8192}")
        A(f"buffer_load_dwordx4 v6, s[{WO}:{WO+3}], s60 offen lds")
    for st in range(4):
        pq(st); wo(st, 0); wo(st, 1)
        if st > 0:
            A("s_waitcnt vmcnt(6)"); stamp(); A("s_barrier")
        wo(st, 2); wo(st, 3)
    A("s_waitcnt vmcnt(0)"); stamp(); A("s_barrier")
    stamp_flush(1, WS, 100)
    stamp_n[0] = n0
    A("K2_END:\ns_endpgm")

def k2_compute(WO, WS, OUT):
    A(f"""
    s_lshl_b32 s10, s9, 4
    s_lshl_b32 s11, s8, 3
    s_add_u32 s10, s10, s11
    s_mul_i32 s11, s10, {HS}
    s_add_u32 s11, s11, {hex(KV_OFF)}
    v_add_u32 v2, s11, v1
    v_bfe_u32 v3, v0, 2, 3
    v_mul_u32_u24 v4, {HS}, v3
    v_and_b32 v5, 3, v0
    v_lshl_add_u32 v4, v5, 4, v4
    v_add_u32 v4, s11, v4
    s_waitcnt lgkmcnt(0)
    """)
    srd(WS, P_WS, WS_SIZE)
    stamp()
    KVR = 16
    for n in range(8):
        if n & 1 == 0: A(f"s_movk_i32 s60, {n*HS}")
        A(f"buffer_load_dwordx4 v[{KVR+4*n}:{KVR+4*n+3}], v2, s[{WS}:{WS+3}], s60 offen offset:{(n&1)*HS}")
    A(f"buffer_load_dwordx4 v[{KVR+32}:{KVR+35}], v4, s[{WS}:{WS+3}], 0 offen offset:1024")
    A("s_barrier")
    A(f"""
    s_lshl_b32 s12, s6, 1
    s_add_u32 s12, s12, s8       ; rb
    s_lshl_b32 s13, s7, 6
    s_lshl_b32 s14, s9, 5
    s_add_u32 s13, s13, s14
    s_lshl_b32 s14, s13, 12
    s_add_u32 s14, s14, {hex(BT_OFF)}
    v_and_b32 v8, 31, v0
    s_lshl_b32 s15, s12, 5
    v_add_u32 v8, s15, v8        ; row
    v_lshrrev_b32 v9, 5, v0      ; hf
    v_lshlrev_b32 v10, 14, v9
    v_lshl_add_u32 v10, v8, 1, v10
    v_add_u32 v10, s14, v10      ; b offset
    v_lshlrev_b32 v11, 2, v8
    v_add_u32 v11, {hex(G_OFF)}, v11  ; g offset
    v_lshlrev_b32 v12, 10, v8
    v_lshl_add_u32 v12, v9, 4, v12
    s_lshl_b32 s13, s13, 1
    v_add_u32 v12, s13, v12
    """)
    BB = 144
    for i in range(16): A(f"v_mov_b32 v{BB+i}, 0")
    srd(OUT, P_OUT, 0x200000)
    A(f"""
    s_mul_i32 s11, s10, {KVS}
    s_add_u32 s11, s11, {K2_KV}
    v_lshlrev_b32 v2, 3, v0
    v_add_u32 v2, s11, v2
    v_mul_u32_u24 v4, {KVS}, v3
    v_xor_b32 v5, 2, v5
    v_lshl_add_u32 v4, v5, 3, v4
    v_add_u32 v4, s11, v4
    """)
    for n in range(9):
        A(f"s_waitcnt vmcnt({8-n})")
        A(f"v_cvt_pk_bf16_f32 v{KVR+4*n}, v{KVR+4*n}, v{KVR+4*n+1}")
        A(f"v_cvt_pk_bf16_f32 v{KVR+4*n+1}, v{KVR+4*n+2}, v{KVR+4*n+3}")
        if n < 8: A(f"ds_write_b64 v2, v[{KVR+4*n}:{KVR+4*n+1}] offset:{n*KVS}")
        else:
            A("s_mov_b32 exec_hi, 0")
            A(f"ds_write_b64 v4, v[{KVR+4*n}:{KVR+4*n+1}] offset:512")
            A("s_mov_b32 exec_hi, -1")
    stamp()
    for i in range(16):
        g, ii = i >> 2, i & 3
        A(f"s_mov_b32 s60, {(8*g+ii)*4096}")
        A(f"buffer_load_short_d16_hi v{BB+i}, v10, s[{WS}:{WS+3}], s60 offen")
    A(f"buffer_load_dword v13, v11, s[{WS}:{WS+3}], 0 offen")
    A(f"""
    v_and_b32 v2, 31, v0
    v_min_u32 v3, 16, v2
    v_lshrrev_b32 v4, 4, v3      ; is z
    v_xor_b32 v4, v4, v9
    v_lshlrev_b32 v3, 5, v3
    v_lshl_add_u32 v3, v4, 4, v3
    s_mul_i32 s11, s9, {16*KVS}
    s_add_u32 s11, s11, {K2_KV}
    v_add_u32 v3, s11, v3        ; vKVa
    v_bfe_u32 v4, v0, 2, 2
    v_lshl_add_u32 v4, v9, 2, v4
    v_lshlrev_b32 v4, 7, v4
    v_bfe_u32 v5, v0, 4, 1
    v_lshl_add_u32 v4, v5, 5, v4
    v_and_b32 v5, 3, v0
    v_lshl_add_u32 v4, v5, 3, v4
    v_bfe_u32 v5, v0, 3, 1
    v_lshl_add_u32 v4, v5, 6, v4
    s_lshl_b32 s11, s9, 15
    v_add_u32 v4, s11, v4
    s_lshl_b32 s11, s9, 6
    v_xor_b32 v4, s11, v4
    v_xor_b32 v5, 64, v4
    s_lshl_b32 s11, s8, 5
    s_lshl_b32 s14, s9, 4
    s_add_u32 s11, s11, s14
    s_lshl_b32 s11, s11, 10
    s_add_u32 s11, s11, {K2_PQ}
    v_add_u32 v6, s11, v1
    v_xor_b32 v7, {16*1024}, v6
    s_waitcnt lgkmcnt(0)
    """)
    stamp()
    ACC = (112, 128)
    OD = (64, 80, 96)
    KF = (16, 20); PF = (24, 28)
    WF = (32, 40)
    OF = (48, 52)
    def rd_kp(h): return [f"ds_read_b128 v[{KF[h&1]}:{KF[h&1]+3}], v3 offset:{h*KVS}", f"ds_read_b128 v[{PF[h&1]}:{PF[h&1]+3}], v6 offset:{h*1024}"]
    def rd_wo(h):
        b = WF[h & 1]
        return [f"ds_read_b64_tr_b16 v[{b+4*jt+2*t}:{b+4*jt+2*t+1}], v{4+jt} offset:{h*2048+t*1024}" for jt in range(2) for t in range(2)]
    def omf(h): return f"v_mfma_f32_32x32x16_bf16 v[{OD[h%2]}:{OD[h%2]+15}], v[{KF[h&1]}:{KF[h&1]+3}], v[{PF[h&1]}:{PF[h&1]+3}], 0"
    def norm(h):
        d = OD[h % 2]; o = OF[h & 1]
        L = [f"v_add_f32 v{d+8}, {hex(EPS)}, v{d+8}", f"v_rcp_f32 v{d+8}, v{d+8}"]
        L += [f"v_pk_mul_f32 v[{d+i}:{d+i+1}], v[{d+i}:{d+i+1}], v[{d+8}:{d+9}] op_sel_hi:[1,0]" for i in range(0, 8, 2)]
        L += [f"v_cvt_pk_bf16_f32 v{o+i}, v{d+2*i}, v{d+2*i+1}" for i in range(4)]
        return L
    def proj(h, jt):
        b = WF[h & 1]; o = OF[h & 1]
        c = "0" if h == 0 else f"v[{ACC[jt]}:{ACC[jt]+15}]"
        return f"v_mfma_f32_32x32x16_bf16 v[{ACC[jt]}:{ACC[jt]+15}], v[{b+4*jt}:{b+4*jt+3}], v[{o}:{o+3}], {c}"
    A("s_barrier")
    stamp()
    for x in rd_kp(0): A(x)
    for i in range(18):
        A("s_waitcnt lgkmcnt(0)")
        N = norm(i-1) if 0 <= i-1 < 16 else []
        if i < 16: A(omf(i))
        if i+1 < 16 and (i+1) % 4 == 0: A("s_barrier")
        R = (rd_kp(i+1) if i+1 < 16 else [])
        W_ = rd_wo(i-1) if 0 <= i-1 < 16 else []
        for x in R + W_[:2]: A(x)
        for x in N[:2]: A(x)
        if 0 <= i-2: A(proj(i-2, 1))
        for x in W_[2:]: A(x)
        for x in N[2:6]: A(x)
        if 0 <= i-2: A(proj(i-2, 0))
        for x in N[6:]: A(x)
    stamp()
    for g in range(4): A(f"ds_write_b128 v6, v[{ACC[1]+4*g}:{ACC[1]+4*g+3}] offset:{g*1024}")
    A("s_waitcnt vmcnt(0)")
    A("v_sub_f32 v14, 1.0, v13")
    for i in range(16): A(f"v_mul_f32 v{BB+i}, v14, v{BB+i}")
    for i in range(16): A(f"v_fma_f32 v{BB+i}, v13, v{ACC[0]+i}, v{BB+i}")
    A("s_waitcnt lgkmcnt(0)\ns_barrier")
    for g in range(4): A(f"ds_read_b128 v[{16+4*g}:{19+4*g}], v7 offset:{g*1024}")
    for p in range(2):
        A(f"s_waitcnt lgkmcnt({2-2*p})")
        for i in range(8*p, 8*p+8): A(f"v_fma_f32 v{16+i}, v13, v{16+i}, v{BB+i}")
        for i in range(4*p, 4*p+4): A(f"v_cvt_pk_bf16_f32 v{32+i}, v{16+2*i}, v{17+2*i}")
        A(f"v_permlane32_swap_b32 v{32+4*p}, v{34+4*p}")
        A(f"v_permlane32_swap_b32 v{33+4*p}, v{35+4*p}")
        A(f"buffer_store_dwordx4 v[{32+4*p}:{35+4*p}], v12, s[{OUT}:{OUT+3}], 0 offen offset:{32*p}")
    if STAMP: A("s_waitcnt vmcnt(0)")
    stamp()
    stamp_flush(1, WS, 100)
    A("s_endpgm")

k1()
k2()
lines, errs = hazard_pass(A.lines)
for e in errs: print(e, file=sys.stderr)
hdr = open("gated_mix__linear_attn_block__ssm_conv_s4__prompt.s.ref").read().split("; Override launch")[0]
out = hdr
if FUSE:
    out += "; @launch grid=(256,1,1) block=(512,1,1) lds=163840\n"
    out += f'.amdgcn_target "amdgcn-amd-amdhsa--gfx950"\n.text\n.globl {KN}\n.type {KN},@function\n'
else:
    out += "; @launch kernel=k1_kernel grid=(256,1,1) block=(512,1,1) lds=163840\n"
    out += f"; @launch kernel=k2_kernel grid=(256,1,1) block=(512,1,1) lds={K2_LDS}\n"
    out += '.amdgcn_target "amdgcn-amd-amdhsa--gfx950"\n.text\n.globl k1_kernel\n.type k1_kernel,@function\n.globl k2_kernel\n.type k2_kernel,@function\n'
out += "\n".join(lines) + "\n"
T = ssm_tables()
out += ".p2align 8\n.type K1_TABLE,@object\nK1_TABLE:\n"
for i in range(0, len(T), 8):
    out += ".long " + ", ".join(hex(x) for x in T[i:i+8]) + "\n"
out += f".size K1_TABLE, {4*len(T)}\n"
out += '.section .rodata,"a"\n' + (kernel_desc(KN, 256, 102, 256) if FUSE else kernel_desc("k1_kernel", 256, 102, 256) + kernel_desc("k2_kernel", 256, 102, 256))
fn = [x for x in sys.argv[1:] if not x.startswith("--")][0]
open(fn, "w").write(out)
```

```python
import sys
from asmlib import kernel_desc
src, dst, mode, a, b = sys.argv[1], sys.argv[2], sys.argv[3], int(sys.argv[4], 0), int(sys.argv[5], 0)
s = open(src).read()
lines = s.split("\n")
li = max(i for i, l in enumerate(lines) if l.startswith("; @launch"))
lines.insert(li+1, "; @launch kernel=k3_kernel grid=(1,1,1) block=(64,1,1) lds=0")
s = "\n".join(lines)
if mode == "diff":
    f = "s_sub_u32 s10, s10, s11\n s_min_u32 s10, s10, 100000\n"
elif mode == "eq":
    f = "s_xor_b32 s10, s10, s11\n s_and_b32 s10, s10, 15\n s_cmp_eq_u32 s10, 0\n s_cselect_b32 s10, 10000, 0\n"
body = f"""
    s_cmp_ge_u32 s2, 1
    s_cbranch_scc1 K3_END
    s_memrealtime s[8:9]
    s_load_dwordx2 s[4:5], s[0:1], 120
    s_waitcnt lgkmcnt(0)
    v_mov_b32 v1, {a}
    v_mov_b32 v3, {b}
    global_load_dword v2, v1, s[4:5]
    global_load_dword v4, v3, s[4:5]
    s_waitcnt vmcnt(0)
    v_readfirstlane_b32 s10, v2
    v_readfirstlane_b32 s11, v4
    {f}
K3_LOOP:
    s_memrealtime s[12:13]
    s_waitcnt lgkmcnt(0)
    s_sub_u32 s12, s12, s8
    s_cmp_lt_u32 s12, s10
    s_cbranch_scc1 K3_LOOP
K3_END:
"""
k3 = ".p2align 8\n.globl k3_kernel\n.type k3_kernel,@function\nk3_kernel:\n" + body + "    s_endpgm\n"
s = s.replace(".p2align 8\n.type K1_TABLE,@object", k3 + ".p2align 8\n.type K1_TABLE,@object")
s += kernel_desc("k3_kernel", 8, 32, 8)
open(dst, "w").write(s)
```

```python
import sys, struct
from asmlib import *

PQ_OFF = 0x0
BT_OFF = 0x200000
KV_OFF = 0x400000
HS = 2048
G_OFF = 0x410000
TS_OFF = 0x500000
WS_SIZE = 0x600000
STAMP = "--stamp" in sys.argv
def opt(name, default):
    for x in sys.argv:
        if x.startswith(f"--{name}="): return type(default)(x.split("=")[1])
    return default

LOG2E = 0x3fb8aa3b
EPS = 0x358637bd
def f2u(x): return struct.unpack("<I", struct.pack("<f", x))[0]

A = Asm()

def srd(base, ptr, size):
    A(f"s_mov_b32 s{base}, s{ptr}\ns_mov_b32 s{base+1}, s{ptr+1}\ns_mov_b32 s{base+2}, {hex(size)}\ns_mov_b32 s{base+3}, 0x20000")

stamp_n = [0]
def stamp():
    if not STAMP: return
    n = stamp_n[0]; stamp_n[0] += 1
    assert n < 14
    A(f"s_memtime s[{64+2*n}:{65+2*n}]")
def stamp_dyn(idx_s, base):
    if not STAMP: return
    A(f"s_memtime s[94:95]\ns_add_u32 s93, {idx_s}, {base}\ns_waitcnt lgkmcnt(0)\ns_mov_b32 m0, s93\nv_writelane_b32 v254, s94, m0")
def stamp_flush(kern, wsrd, skip=()):
    if not STAMP: return
    n = stamp_n[0]
    A("s_memrealtime s[98:99]")
    A("s_waitcnt lgkmcnt(0)")
    A(f"s_lshl_b32 s60, s2, 3\ns_add_u32 s60, s60, s3\ns_lshl_b32 s60, s60, 6\ns_add_u32 s60, s60, {hex(TS_OFF + kern*0x40000)}")
    A("s_mov_b64 exec, -1")
    for i in range(14):
        if i in skip: continue
        A(f"v_writelane_b32 v254, {f's{64+2*i}' if i < n else '0'}, {i}")
    A("v_writelane_b32 v254, s96, 14\nv_writelane_b32 v254, s98, 15")
    A(f"v_lshlrev_b32 v255, 2, v0\ns_mov_b64 exec, 0xffff")
    A(f"buffer_store_dword v254, v255, s[{wsrd}:{wsrd+3}], s60 offen")
    A("s_mov_b64 exec, -1")

P_X, P_W, P_WO, P_ARE, P_AIM, P_BRE, P_BIM, P_CRE, P_CIM, P_LDT, P_DSK, P_GW, P_OUT, P_DBG, P_WS = 16,18,20,24,26,28,30,32,34,36,38,40,42,44,46

def common_prologue(endlabel):
    stamp_n[0] = 0
    if STAMP: A("s_memrealtime s[96:97]")
    stamp()
    A(f"""
    s_cmp_ge_u32 s2, 256
    s_cbranch_scc1 {endlabel}
    s_load_dwordx16 s[16:31], s[0:1], 0
    s_load_dwordx16 s[32:47], s[0:1], 64
    v_lshrrev_b32 v1, 6, v0
    v_and_b32 v0, 63, v0
    v_readfirstlane_b32 s3, v1
    s_and_b32 s4, s2, 7          ; xcd
    s_lshr_b32 s5, s2, 3         ; j
    """)

def interleave(M, V, budget=24):
    V = list(V)
    for m in M:
        A(m)
        c = 0
        while V and c < budget:
            x = V.pop(0)
            A(x)
            c += 8 if x.split()[0].replace("_e64","") in TRANS else 4
    return V

SLOT = 40960
NSLOT = 3
XCH = NSLOT*SLOT
def k1():
    A(".p2align 8\nk1_kernel:")
    common_prologue("K1_END")
    A("""
    s_getpc_b64 s[62:63]
K1_PC0:
    s_lshl_b32 s6, s5, 3
    s_add_u32 s6, s6, s3
    s_lshl_b32 s6, s6, 7
    s_min_u32 s6, s6, CODE_END-K1_PC0-4
    v_mov_b32 v1, s6
    global_load_dword v253, v1, s[62:63]
    s_cmp_ge_u32 s5, 16
    s_cbranch_scc1 K1_SSM
    s_and_b32 s6, s4, 3
    s_lshl_b32 s6, s6, 2
    s_and_b32 s14, s5, 3         ; ml
    s_add_u32 s6, s6, s14        ; mi
    s_lshr_b32 s7, s4, 2
    s_lshl_b32 s7, s7, 2
    s_lshr_b32 s15, s5, 2        ; nl
    s_add_u32 s7, s7, s15        ; ni
    s_cmp_lt_u32 s3, 4
    s_cbranch_scc1 K1_GEMM
    """)
    gemm_loader()
    A("K1_SSM:")
    A("""
    s_sub_u32 s5, s5, 16         ; js
    s_cmp_lt_u32 s3, 4
    s_cbranch_scc1 K1_SSMC
    """)
    ssm_helper()
    A("K1_SSMC:")
    ssm_compute()
    A("K1_GEMM:")
    gemm_compute()
    A("K1_END:\ns_endpgm")

def gemm_loader():
    stamp_n[0] = 1
    X, W, WS = 48, 52, 56
    G = opt("G", 2)
    A("""
    s_sub_u32 s9, s3, 4          ; w
    v_lshrrev_b32 v2, 3, v0      ; lane>>3
    v_and_b32 v3, 7, v0
    v_lshrrev_b32 v4, 4, v0      ; lane>>4
    s_and_b32 s10, s9, 1
    s_lshl_b32 s10, s10, 2
    v_or_b32 v5, s10, v4
    v_xor_b32 v5, v5, v3
    s_lshl_b32 s10, s6, 7
    s_lshl_b32 s11, s9, 3
    s_add_u32 s10, s10, s11
    v_add_u32 v6, s10, v2        ; row
    v_lshlrev_b32 v6, 10, v6
    v_lshl_add_u32 v6, v5, 4, v6 ; vXsrc
    v_and_b32 v4, 1, v4
    v_lshlrev_b32 v4, 2, v4
    v_xor_b32 v4, v4, v3
    v_add_u32 v7, s11, v2
    v_mul_u32_u24 v7, 3072, v7
    v_lshl_add_u32 v7, v4, 4, v7
    s_lshl_b32 s10, s7, 7
    v_add_u32 v7, s10, v7        ; vWsrc
    s_lshl_b32 s12, s9, 10
    s_mul_i32 s13, s9, 3072
    s_add_u32 s13, s13, 16384
    """)
    for n in range(4):
        A(f"s_add_u32 s60, s15, {n}\ns_and_b32 s60, s60, 3\ns_lshl_b32 s{80+n}, s60, 15\ns_lshl_b32 s60, s60, 12\ns_add_u32 s{84+n}, s60, s12")
    for h in range(2):
        A(f"s_lshr_b32 s60, s14, 1\ns_add_u32 s60, s60, {h}\ns_and_b32 s60, s60, 1\ns_mul_i32 s{88+h}, s60, {32*3072}\ns_mul_i32 s60, s60, {4*3072}\ns_add_u32 s{90+h}, s60, s13")
    A(f"""
    s_add_u32 s15, s14, s15
    s_and_b32 s15, s15, {G-1}     ; phase
    s_mov_b32 s4, 0
    s_mov_b32 s5, 0
    s_lshl_b32 s10, s15, 7
    s_mul_i32 s11, s15, {64*3072}
    s_mov_b32 s50, 0x200000
    s_mov_b32 s51, 0x20000
    s_mov_b32 s54, 0x180000
    s_mov_b32 s55, 0x20000
    s_waitcnt lgkmcnt(0)
    s_mov_b64 s[48:49], s[{P_X}:{P_X+1}]
    s_mov_b64 s[52:53], s[{P_W}:{P_W+1}]
    """)
    stamp()
    def ldx(n):
        A(f"s_add_u32 m0, s5, s{84+n}")
        A(f"s_add_u32 s63, s10, s{80+n}")
        A(f"buffer_load_dwordx4 v6, s[{X}:{X+3}], s63 offen lds")
    def ldw(h):
        A(f"s_add_u32 m0, s5, s{90+h}")
        A(f"s_add_u32 s63, s11, s{88+h}")
        for p in range(3):
            A(f"buffer_load_dwordx4 v7, s[{W}:{W+3}], s63 offen offset:{p*1024} lds")
    A("K1_LD_LOOP:")
    ldx(0); ldw(0); ldx(1); ldx(2)
    A("s_cmp_eq_u32 s4, 0\ns_cbranch_scc1 K1_LD_SKIP")
    A("s_waitcnt vmcnt(6)")
    stamp_dyn("s4", 2)
    A("s_barrier")
    A("K1_LD_SKIP:")
    ldw(1); ldx(3)
    A(f"""
    s_add_u32 s4, s4, 1
    s_add_u32 s5, s5, {SLOT}
    s_cmp_eq_u32 s5, {NSLOT*SLOT}
    s_cselect_b32 s5, 0, s5
    s_add_u32 s60, s4, s15
    s_and_b32 s60, s60, {G-1}
    s_cmp_lt_u32 s4, {G}
    s_cselect_b32 s60, s60, s4
    s_lshl_b32 s10, s60, 7
    s_mul_i32 s11, s60, {64*3072}
    s_cmp_lt_u32 s4, 8
    s_cbranch_scc1 K1_LD_LOOP
    s_waitcnt vmcnt(0)
    """)
    stamp()
    A("s_barrier")
    if STAMP: srd(WS, P_WS, WS_SIZE)
    stamp_flush(0, WS, skip=range(3, 10))
    A("s_endpgm")

def phi_ops(base, dst, tmp):
    L = []
    for i in range(0, 16, 2):
        L.append(f"v_pk_mul_f32 v[{tmp+i}:{tmp+i+1}], v[{base+i}:{base+i+1}], s[10:11]")
    for i in range(16):
        L.append(f"v_exp_f32_e64 v{tmp+i}, v{tmp+i} clamp")
        L.append(f"v_max_f32 v{base+i}, s12, v{base+i}")
    for i in range(0, 16, 2):
        L.append(f"v_pk_add_f32 v[{base+i}:{base+i+1}], v[{base+i}:{base+i+1}], v[{tmp+i}:{tmp+i+1}]")
    for i in range(8):
        L.append(f"v_cvt_pk_bf16_f32 v{dst+i}, v{base+2*i}, v{base+2*i+1}")
    return L

def gemm_compute():
    stamp_n[0] = 1
    WS = 56
    ACC = {"q": (64, 80), "k": (96, 112), "v": (128, 144)}
    SET = (16, 36, 160, 180)
    A("""
    s_and_b32 s8, s3, 1          ; mw
    s_lshr_b32 s9, s3, 1         ; nw
    v_and_b32 v1, 31, v0
    v_lshrrev_b32 v2, 5, v0      ; hf
    v_bfe_u32 v3, v0, 1, 3       ; f
    v_xor_b32 v3, v3, v2         ; hf^f
    s_lshl_b32 s10, s8, 6
    v_add_u32 v1, s10, v1
    v_lshlrev_b32 v1, 7, v1      ; row*128
    """)
    for ks in range(4):
        A(f"v_xor_b32 v{4+ks}, {2*ks}, v3")
        A(f"v_lshl_add_u32 v{4+ks}, v{4+ks}, 4, v1")
    A("""
    v_mul_u32_u24 v8, 3072, v2   ; (g>>1)*3072
    v_bfe_u32 v1, v0, 2, 2       ; l'>>2
    v_lshl_add_u32 v8, v1, 7, v8
    v_bfe_u32 v1, v0, 4, 1       ; g&1
    v_lshlrev_b32 v1, 5, v1
    v_and_b32 v3, 3, v0
    v_lshl_add_u32 v1, v3, 3, v1
    s_lshl_b32 s10, s9, 6
    v_add_u32 v1, s10, v1
    v_bfe_u32 v3, v0, 3, 1
    v_lshlrev_b32 v3, 6, v3
    v_xor_b32 v1, v1, v3
    v_add_u32 v8, v8, v1
    v_add_u32 v8, 16384, v8      ; vWa
    """)
    for r in range(64, 160, 2):
        A(f"v_mov_b64 v[{r}:{r+1}], 0")
    A(f"""
    s_lshl_b32 s14, s7, 2
    s_lshl_b32 s13, s9, 1
    s_add_u32 s14, s14, s13      ; head0
    v_bfe_u32 v14, v0, 4, 1
    v_add_u32 v14, s14, v14
    v_mul_u32_u24 v14, {HS}, v14
    v_and_b32 v1, 3, v0
    v_bfe_u32 v3, v0, 2, 1
    v_lshl_add_u32 v1, v3, 3, v1
    v_bfe_u32 v3, v0, 3, 1
    v_lshl_add_u32 v1, v3, 2, v1 ; p
    v_lshl_add_u32 v14, v1, 2, v14
    v_add_u32 v14, {hex(KV_OFF)}, v14
    v_lshl_add_u32 v15, v2, 8, v14      ; + hf*256
    s_lshl_b32 s13, s8, 9
    v_add_u32 v15, s13, v15
    s_lshl_b32 s13, s6, 2
    s_lshl_b32 s15, s8, 1
    s_add_u32 s13, s13, s15
    s_lshl_b32 s13, s13, 5
    s_add_u32 s13, s13, s14
    s_lshl_b32 s13, s13, 10
    v_lshlrev_b32 v56, 4, v0
    v_add_u32 v57, s13, v56
    s_mul_i32 s13, s3, 1280
    s_add_u32 s13, s13, {XCH}
    v_add_u32 v58, s13, v56
    s_xor_b32 s15, s3, 1
    s_mul_i32 s15, s15, 1280
    s_add_u32 s15, s15, {XCH}
    v_add_u32 v59, s15, v56
    v_lshlrev_b32 v1, 2, v0
    v_add_u32 v60, s13, v1
    v_add_u32 v61, s15, v1
    s_lshl_b32 s13, s7, 2
    v_mov_b32 v62, s13
    s_mov_b32 s10, {hex(LOG2E)}
    s_mov_b32 s11, {hex(LOG2E)}
    s_mov_b32 s12, {hex(EPS)}
    s_mov_b32 s14, 0xffff0000
    s_mov_b32 s15, 0xffff0000
    s_mov_b32 s61, 32768
    s_waitcnt lgkmcnt(0)
    """)
    srd(WS, P_WS, WS_SIZE)
    def rx(ks, st):
        b = SET[st]
        return [f"ds_read_b128 v[{b}:{b+3}], v{9+ks}", f"ds_read_b128 v[{b+4}:{b+7}], v{9+ks} offset:4096"]
    def rw(ks, st, p):
        b = SET[st]
        return [f"ds_read_b64_tr_b16 v[{b+8+4*p+2*t}:{b+9+4*p+2*t}], v13 offset:{ks*6144+p*1024+t*512}" for t in range(2)]
    def reads(ks, st): return rx(ks, st) + rw(ks, st, 1) + rw(ks, st, 2) + rw(ks, st, 0)
    def mf(st, nm, mb):
        b = SET[st]; p = "qkv".index(nm); d = ACC[nm][mb]
        xf = f"v[{b+4*mb}:{b+4*mb+3}]"; wf = f"v[{b+8+4*p}:{b+11+4*p}]"
        if nm == "q": return f"v_mfma_f32_32x32x16_bf16 v[{d}:{d+15}], {wf}, {xf}, v[{d}:{d+15}]"
        return f"v_mfma_f32_32x32x16_bf16 v[{d}:{d+15}], {xf}, {wf}, v[{d}:{d+15}]"
    def mfmas(st): return [mf(st, nm, mb) for nm in "kvq" for mb in range(2)]
    def setaddr():
        for i in range(5): A(f"v_add_u32 v{9+i}, s5, v{4+i}")
    A("s_mov_b32 s5, 0\ns_mov_b32 s4, 0")
    setaddr()
    stamp()
    A("s_barrier")
    stamp()
    for r in reads(0, 0): A(r)
    A("K1_G_LOOP:")
    for ks in range(4):
        st = ks & 1
        M = mfmas(st)
        A("s_waitcnt lgkmcnt(0)")
        if ks < 3:
            R = reads(ks+1, st ^ 1)
            A(M[0]); [A(r) for r in R[0:3]]
            A(M[1]); [A(r) for r in R[3:6]]
            A(M[2]); [A(r) for r in R[6:8]]
            for m in M[3:]: A(m)
        else:
            A(M[0])
            A(f"""
            s_add_u32 s5, s5, {SLOT}
            s_cmp_eq_u32 s5, {NSLOT*SLOT}
            s_cselect_b32 s5, 0, s5
            s_add_u32 s4, s4, 1
            """)
            setaddr()
            A("s_barrier")
            R = reads(0, 0)
            A(M[1]); [A(r) for r in R[0:3]]
            A(M[2]); [A(r) for r in R[3:6]]
            A(M[3]); [A(r) for r in R[6:8]]
            A("s_cmp_lt_u32 s4, 7")
            for m in M[4:]: A(m)
            A("s_cbranch_scc1 K1_G_LOOP")
    stamp()
    A(f"global_load_dword v63, v62, s[{P_DBG}:{P_DBG+1}] sc1")
    for ks in (2, 3):
        for r in rx(ks, ks)[:1] + rw(ks, ks, 1): A(r)
    A("s_waitcnt lgkmcnt(6)")
    A(mf(0, "k", 0))
    for r in rx(1, 1)[:1] + rw(1, 1, 1): A(r)
    for ks in (2, 3, 1):
        A(rx(ks, ks)[1])
    A("s_waitcnt lgkmcnt(9)")
    A(mf(2, "k", 0))
    A("s_waitcnt lgkmcnt(6)")
    A(mf(3, "k", 0))
    for ks in (2, 3, 1):
        for r in rw(ks, ks, 2): A(r)
    A("s_waitcnt lgkmcnt(9)")
    A(mf(1, "k", 0))
    A(mf(0, "k", 1))
    A("s_waitcnt lgkmcnt(6)")
    for ks in (2, 3, 1):
        for r in rw(ks, ks, 0): A(r)
    A(mf(2, "k", 1))
    A(mf(3, "k", 1))
    TMP = 200
    PK = (216, 224)
    V = phi_ops(ACC["k"][0], PK[0], TMP) + phi_ops(ACC["k"][1], PK[1], TMP)
    V = interleave([mf(1, "k", 1), mf(0, "v", 0)], V)
    A("s_waitcnt lgkmcnt(0)")
    V = interleave([mf(ks, "v", 0) for ks in (2, 3, 1)] + [mf(ks, "v", 1) for ks in (0, 2, 3, 1)], V)
    CV = [f"v_cvt_pk_bf16_f32 v{ACC['v'][mb]+i}, v{ACC['v'][mb]+2*i}, v{ACC['v'][mb]+2*i+1}" for mb in range(2) for i in range(8)]
    V = interleave([mf(ks, "q", mb) for mb in range(2) for ks in (0, 2, 3, 1)], V + CV + [f"v_mov_b32 v{232+i}, 0x3f803f80" for i in range(4)])
    for x in V: A(x)
    KVA = 96; ZA = 112
    M = []
    for mb in range(2):
        for fr in range(2):
            first = (mb == 0 and fr == 0)
            pk = f"v[{PK[mb]+4*fr}:{PK[mb]+4*fr+3}]"; vv = f"v[{ACC['v'][mb]+4*fr}:{ACC['v'][mb]+4*fr+3}]"
            M.append(f"v_mfma_f32_32x32x16_bf16 v[{KVA}:{KVA+15}], {vv}, {pk}, {'0' if first else f'v[{KVA}:{KVA+15}]'}")
    for mb in range(2):
        for fr in range(2):
            first = (mb == 0 and fr == 0)
            pk = f"v[{PK[mb]+4*fr}:{PK[mb]+4*fr+3}]"
            M.append(f"v_mfma_f32_32x32x16_bf16 v[{ZA}:{ZA+15}], v[232:235], {pk}, {'0' if first else f'v[{ZA}:{ZA+15}]'}")
    PQ0 = 16; PQ1 = 24
    V = interleave(M, phi_ops(ACC["q"][0], PQ0, TMP))
    stamp()
    A("s_cmp_eq_u32 s8, 0\ns_cbranch_scc0 K1_SEL1")
    for j in range(4): A(f"v_cndmask_b32_e64 v{40+j}, v{KVA+4+j}, v{KVA+12+j}, s[14:15]")
    for j in range(4): A(f"v_cndmask_b32_e64 v{36+j}, v{KVA+j}, v{KVA+8+j}, s[14:15]")
    A("s_branch K1_SELD\nK1_SEL1:")
    for j in range(4): A(f"v_cndmask_b32_e64 v{40+j}, v{KVA+j}, v{KVA+8+j}, s[14:15]")
    for j in range(4): A(f"v_cndmask_b32_e64 v{36+j}, v{KVA+4+j}, v{KVA+12+j}, s[14:15]")
    A("K1_SELD:")
    A("ds_write_b128 v58, v[40:43]")
    for x in V[:6]: A(x)
    V = V[6:]
    A(f"ds_write_b32 v60, v{ZA} offset:1024")
    for x in V: A(x)
    A("s_waitcnt lgkmcnt(0)\ns_barrier")
    A("ds_read_b128 v[40:43], v59\nds_read_b32 v44, v61 offset:1024")
    A(f"buffer_store_dwordx4 v[{PQ0}:{PQ0+3}], v57, s[{WS}:{WS+3}], 0 offen")
    A(f"buffer_store_dwordx4 v[{PQ0+4}:{PQ0+7}], v57, s[{WS}:{WS+3}], 0 offen offset:1024")
    V = phi_ops(ACC["q"][1], PQ1, TMP)
    for x in V[:8]: A(x)
    V = V[8:]
    A(f"""
    s_waitcnt vmcnt(2)
    s_mov_b32 s13, 0
K1_POLL:
    v_readfirstlane_b32 s60, v63
    s_cmp_lg_u32 s60, 0
    s_cbranch_scc1 K1_POLL_DONE
    s_add_u32 s13, s13, 1
    s_cmp_gt_u32 s13, 0x40000
    s_cbranch_scc1 K1_POLL_DONE
    s_sleep 2
    global_load_dword v63, v62, s[{P_DBG}:{P_DBG+1}] sc1
    s_waitcnt vmcnt(0)
    s_branch K1_POLL
K1_POLL_DONE:
    s_waitcnt lgkmcnt(0)
    """)
    for j in range(4): A(f"v_add_f32 v{36+j}, v{36+j}, v{40+j}")
    A(f"v_add_f32 v44, v44, v{ZA}")
    for j in range(4):
        A(f"buffer_atomic_add_f32 v{36+j}, v15, s[{WS}:{WS+3}], 0 offen offset:{j*64}")
    A(f"""
    s_cmp_eq_u32 s8, 0
    s_cbranch_scc0 K1_NOZ
    s_mov_b32 exec_hi, 0
    buffer_atomic_add_f32 v44, v14, s[{WS}:{WS+3}], 0 offen offset:1024
    s_mov_b32 exec_hi, -1
K1_NOZ:
    """)
    stamp()
    for x in V: A(x)
    A(f"buffer_store_dwordx4 v[{PQ1}:{PQ1+3}], v57, s[{WS}:{WS+3}], s61 offen")
    A(f"buffer_store_dwordx4 v[{PQ1+4}:{PQ1+7}], v57, s[{WS}:{WS+3}], s61 offen offset:1024")
    stamp()
    if STAMP: A("s_waitcnt vmcnt(0)")
    stamp()
    stamp_flush(0, WS)

TROW = 528
L_TA = 0
L_TB = 22*TROW
L_U = 54*TROW
L_KR0 = L_U + 4608
L_KR1 = L_KR0 + 1152 + 64
L_T = L_KR1 + 1152 + 64
TSEQ = 192
TCOPY = 6*TSEQ + 64
CH = L_T + 2*TCOPY
CH = (CH + 255)//256*256
assert 4*CH <= 163840, CH
AROWS = list(range(9)) + [256,258,260,262,264] + [516,520,772,776] + [1032,1288,1544,1800]
HROWS = ([0,1,2,3,4,5,6,7,8,516,520,772,776,0,0,0], [256,256,258,260,260,260,262,264,264,1032,1288,1544,1800,0,0,0])
BOX = [(3,3,-16),(5,6,-16),(3,11,-16),(5,14,-24),(7,5,-16),(9,12,-24)]

def ssm_tables():
    T = []
    for lane in range(64):
        R = lane & 31; hf = lane >> 5
        g = R >> 3; h = (R >> 2) & 1; i = R & 3
        arow = AROWS.index(HROWS[h][4*g+i])
        ta = L_TA + arow*TROW + hf*16
        b = lane & 15; q = lane >> 4
        p0 = 535 - 32*16 - b + 8*q
        kr = (L_KR1 + 2*(p0+1)) if (p0 & 1) else (L_KR0 + 2*p0)
        p0 = 15 - b + 4*q
        tf = (L_T + TCOPY + 2*(p0+1)) if (p0 & 1) else (L_T + 2*p0)
        fr = L_U + 512 - 32 - 64*7 + 32*b + 16*q
        T += [ta, kr, tf, fr]
    for lane in range(64):
        j = lane & 31; h = lane >> 5
        for kap in range(4):
            if h == 0:
                seq = 2*(j & 1) + (kap & 1); kp = 32 + 16*(kap >> 1) + (j >> 1); Q0 = 79
            else:
                seq = 4 + (j & 1); kp = 64 + 16*kap + (j >> 1); Q0 = 127
            T.append(L_T + seq*TSEQ + 2*(Q0 - kp))
    for lane in range(64):
        b = lane & 15; q = lane >> 4
        h = [0xffff if (16 + b - (8*q+i)) in (3, 4) else 0 for i in range(8)]
        T += [h[2*i] | (h[2*i+1] << 16) for i in range(4)]
    for (ln, o, off) in BOX:
        for lane in range(64):
            b = lane & 15; q = lane >> 4
            h = [0x3f80 if (b - o - ln + 1 <= off + 8*q + i <= b - o) else 0 for i in range(8)]
            T += [h[2*i] | (h[2*i+1] << 16) for i in range(4)]
    return T

def ssm_helper():
    stamp_n[0] = 1
    X, W, WS = 48, 52, 56
    G = opt("G", 2)
    A(f"""
    s_sub_u32 s9, s3, 4
    s_lshl_b32 s10, s9, 6
    v_add_u32 v1, s10, v0        ; t = 0..255
    s_lshl_b32 s10, s4, 7
    s_lshl_b32 s11, s5, 3
    s_add_u32 s10, s10, s11
    v_lshlrev_b32 v2, 10, v1
    v_add_u32 v2, s10, v2
    s_and_b32 s6, s4, 3          ; mg
    s_lshr_b32 s7, s4, 2         ; ng
    ; prefetch pattern for a chunk pair: t<160 : chunk = t/80, r = t%80
    v_cmp_le_u32 vcc, 80, v1
    v_cndmask_b32_e64 v6, 0, 1, vcc
    v_mul_u32_u24 v7, 80, v6
    v_sub_u32 v7, v1, v7                 ; r
    s_lshl_b32 s12, s6, 9
    s_lshl_b32 s13, s5, 5
    s_add_u32 s13, s12, s13
    v_add_u32 v8, s13, v7
    v_lshlrev_b32 v8, 10, v8
    v_lshl_add_u32 v8, v6, 7, v8         ; x line
    v_subrev_u32 v9, 32, v7
    v_mul_u32_u24 v10, 43, v9
    v_lshrrev_b32 v10, 9, v10
    v_mul_u32_u24 v11, 12, v10
    v_sub_u32 v11, v9, v11
    s_lshl_b32 s13, s5, 2
    v_add_u32 v10, s13, v10
    v_lshl_add_u32 v10, v6, 6, v10
    v_mul_u32_u24 v10, 3072, v10
    v_lshrrev_b32 v12, 2, v11
    v_lshl_add_u32 v10, v12, 10, v10
    v_and_b32 v12, 3, v11
    v_lshl_add_u32 v10, v12, 7, v10
    s_lshl_b32 s13, s7, 9
    v_add_u32 v10, s13, v10              ; w line
    v_cmp_gt_u32 vcc, 32, v7
    v_cndmask_b32 v8, -1, v8, vcc
    v_cndmask_b32_e64 v10, v10, -1, vcc
    v_cmp_gt_u32 vcc, 160, v1
    v_cndmask_b32 v8, -1, v8, vcc
    v_cndmask_b32 v10, -1, v10, vcc
    s_lshl_b32 s13, s7, 8
    s_add_u32 s12, s12, s13
    s_lshl_b32 s13, s5, 4
    s_add_u32 s12, s12, s13
    s_lshl_b32 s13, s9, 2
    s_add_u32 s14, s12, s13
    s_lshl_b32 s12, s14, 10
    v_lshlrev_b32 v12, 4, v0
    v_add_u32 v13, s12, v12
    v_mov_b32 v40, 0
    v_mov_b32 v41, 0
    v_mov_b32 v42, 0
    v_mov_b32 v43, 0
    s_waitcnt lgkmcnt(0)
    """)
    srd(X, P_X, 0x200000); srd(W, P_W, 0x180000); srd(WS, P_WS, WS_SIZE)
    stamp()
    A("s_barrier")
    A(f"""
    s_cmp_eq_u32 s9, 3
    s_cbranch_scc0 K1_H_PF
    s_cmp_lg_u32 s5, 0
    s_cbranch_scc1 K1_H_PFD
    s_mul_i32 s13, s4, {4*HS}
    s_add_u32 s13, s13, {hex(KV_OFF)}
    """)
    for i in range(4*HS//1024):
        if i and i % 4 == 0: A("s_add_u32 s13, s13, 4096")
        A(f"buffer_store_dwordx4 v[40:43], v12, s[{WS}:{WS+3}], s13 offen offset:{(i%4)*1024} sc0 sc1")
    A(f"""
    s_waitcnt vmcnt(0)
    s_lshl_b32 s13, s4, 2
    v_mov_b32 v3, s13
    v_mov_b32 v4, 1
    s_mov_b64 exec, 1
    global_store_dword v3, v4, s[{P_DBG}:{P_DBG+1}] sc0 sc1
    s_mov_b64 exec, -1
    s_branch K1_H_PFD
K1_H_PF:
    """)
    def P(c):
        A(f"s_movk_i32 s12, {c*128}\ns_mov_b32 s13, {c*64*3072}")
        A(f"buffer_load_dword v44, v8, s[{X}:{X+3}], s12 offen")
        A(f"buffer_load_dword v45, v10, s[{W}:{W+3}], s13 offen")
    first = True
    for c in range(G, 8, 2):
        P(c)
        if first:
            first = False
            A(f"""
            s_cmp_ge_u32 s9, 2
            s_cbranch_scc1 K1_H_NOU
            s_lshl_b32 s12, s5, 17
            buffer_load_dword v46, v2, s[{X}:{X+3}], s12 offen
K1_H_NOU:
            """)
    A("K1_H_PFD:")
    for r in range(4):
        A(f"buffer_load_dwordx4 v[{48+4*r}:{51+4*r}], v13, s[{X}:{X+3}], 0 offen offset:{r*1024}")
    A(f"global_load_dwordx4 v[64:67], v12, s[{P_GW}:{P_GW+1}]")
    for i in range(8):
        A(f"s_mov_b32 s13, {i<<18}")
        A(f"buffer_load_dwordx2 v[{16+2*i}:{17+2*i}], v2, s[{X}:{X+3}], s13 offen")
        if i == 1:
            A("s_waitcnt vmcnt(2)")
            stamp()
            for k in range(4):
                for r in range(4):
                    A(f"v_dot2c_f32_bf16 v{40+r}, v{48+4*r+k}, v{64+k}")
            for m in ("row_shr:1","row_shr:2","row_shr:4","row_shr:8"):
                for r in range(4):
                    A(f"v_add_f32_dpp v{40+r}, v{40+r}, v{40+r} {m} row_mask:0xf bank_mask:0xf bound_ctrl:0")
        if i == 3:
            for m in ("row_bcast:15 row_mask:0xa","row_bcast:31 row_mask:0xc"):
                for r in range(4):
                    A(f"v_add_f32_dpp v{40+r}, v{40+r}, v{40+r} {m} bank_mask:0xf")
            for r in range(4): A(f"v_mul_f32 v{40+r}, {hex(f2u(-1.4426950408889634))}, v{40+r}")
            for r in range(4): A(f"v_exp_f32 v{40+r}, v{40+r}")
            for r in range(4): A(f"v_add_f32 v{40+r}, 1.0, v{40+r}")
            for r in range(4): A(f"v_rcp_f32 v{40+r}, v{40+r}")
    A(f"""
    v_lshlrev_b32 v3, 1, v1
    v_add_u32 v3, {L_U+512}, v3
    v_add_u32 v4, {2*CH}, v3
    """)
    for i in range(8):
        A(f"s_waitcnt vmcnt({7-i})")
        A(f"ds_write_b16 v3, v{16+2*i} offset:{512*i}")
        A(f"ds_write_b16_d16_hi v3, v{16+2*i} offset:{CH+512*i}")
        A(f"ds_write_b16 v4, v{17+2*i} offset:{512*i}")
        A(f"ds_write_b16_d16_hi v4, v{17+2*i} offset:{CH+512*i}")
        A("s_waitcnt lgkmcnt(0)")
        stamp()
        A("s_barrier")
    A(f"""
    s_lshl_b32 s13, s5, 2
    s_add_u32 s13, s13, s9
    s_lshl_b32 s13, s13, 13
    v_lshlrev_b32 v3, 7, v0
    v_add_u32 v3, s13, v3
    global_load_dword v4, v3, s[{P_WO}:{P_WO+1}]
    s_lshl_b32 s10, s14, 2
    s_add_u32 s10, s10, {hex(G_OFF)}
    v_mov_b32 v10, s10
    s_mov_b32 exec_lo, 0
    s_mov_b32 exec_hi, 0x80000000
    buffer_store_dwordx4 v[40:43], v10, s[{WS}:{WS+3}], 0 offen
    """)
    stamp_flush(0, WS)
    A("s_endpgm")

def cmul(d, x, y):
    return [f"v_pk_mul_f32 v[{d}:{d+1}], v[{x}:{x+1}], v[{y}:{y+1}] op_sel:[0,0] op_sel_hi:[1,0]",
            f"v_pk_fma_f32 v[{d}:{d+1}], v[{x}:{x+1}], v[{y}:{y+1}], v[{d}:{d+1}] op_sel:[1,1,0] op_sel_hi:[0,1,1] neg_lo:[1,0,0]"]

def ssm_compute():
    stamp_n[0] = 1
    WS = 56
    A("""
    s_lshl_b32 s6, s4, 6
    s_lshl_b32 s7, s5, 2
    s_add_u32 s6, s6, s7         ; ch0
    s_add_u32 s7, s6, s3         ; ch
    s_lshl_b32 s8, s7, 8
    v_lshlrev_b32 v1, 2, v0
    v_add_u32 v1, s8, v1
    v_lshlrev_b32 v2, 4, v0
    s_add_u32 s10, s62, K1_TABLE-K1_PC0
    s_addc_u32 s11, s63, 0
    s_lshl_b32 s9, s6, 1
    s_waitcnt lgkmcnt(0)
    """)
    stamp()
    for n, p in enumerate((P_ARE, P_AIM, P_BRE, P_BIM, P_CRE, P_CIM)):
        A(f"global_load_dword v{4+n}, v1, s[{p}:{p+1}]")
    A(f"s_load_dwordx2 s[12:13], s[{P_LDT}:{P_LDT+1}], s9")
    A(f"s_load_dwordx2 s[14:15], s[{P_DSK}:{P_DSK+1}], s9")
    MISC, TW, CORR, BOXR = 244, 240, 236, 212
    dst = [MISC, TW, CORR] + [BOXR+4*n for n in range(6)]
    for n in range(9):
        if n in (4, 8): A("v_add_u32 v2, 4096, v2")
        A(f"global_load_dwordx4 v[{dst[n]}:{dst[n]+3}], v2, s[10:11] offset:{(n%4)*1024}")
    A("s_barrier")
    srd(WS, P_WS, WS_SIZE)
    A(f"""
    s_mul_i32 s8, s3, {CH}
    v_mov_b32 v16, 0
    v_mov_b32 v17, 0
    v_mov_b32 v18, 0
    v_mov_b32 v19, 0
    v_lshlrev_b32 v3, 4, v0
    v_add_u32 v3, s8, v3
    """)
    zl = CH - L_KR0
    for o in range(0, zl, 1024):
        A(f"ds_write_b128 v3, v[16:19] offset:{L_KR0+min(o, zl-1024)}")
    A(f"""
    v_lshlrev_b32 v3, 3, v0
    v_add_u32 v3, s8, v3
    ds_write_b64 v3, v[16:17] offset:{L_U}
    s_waitcnt lgkmcnt(0)
    s_lshl_b32 s9, s3, 4
    s_lshr_b64 s[12:13], s[12:13], s9
    s_lshl_b32 s12, s12, 16
    s_lshr_b64 s[14:15], s[14:15], s9
    s_lshl_b32 s14, s14, 16
    v_mov_b32 v10, {hex(LOG2E)}
    v_mul_f32 v10, s12, v10
    v_exp_f32 v10, v10
    v_cvt_pk_bf16_f32 v10, v10, v10
    v_and_b32 v10, 0xffff0000, v10   ; dt
    s_waitcnt vmcnt(9)
    """)
    stamp()
    for n in range(6):
        A(f"v_lshlrev_b32 v{20+2*n}, 16, v{4+n}")
        A(f"v_and_b32 v{21+2*n}, 0xffff0000, v{4+n}")
    for r in range(20, 28): A(f"v_mul_f32 v{r}, v10, v{r}")
    AV = {}
    nxt = [48]
    def alloc():
        r = nxt[0]; nxt[0] += 4; return r
    for r in AROWS: AV[r] = alloc()
    E1, E8, E256 = alloc(), alloc(), alloc()
    BV = [alloc() for _ in range(4)]
    Es = ((E8, 8, -1.0, 32), (E1, 1, 1.0, 36), (E256, 256, 1.0, 40))
    for (E, r, sgn, t) in Es:
        for m in range(2):
            A(f"v_mul_f32 v{t+m}, {hex(f2u(r*1.4426950408889634))}, v{20+m}")
            A(f"v_mul_f32 v{t+2+m}, {hex(f2u(sgn*r*0.15915494309189535))}, v{22+m}")
    for (E, r, sgn, t) in Es:
        for m in range(2):
            A(f"v_exp_f32 v{t+m}, v{t+m}")
            A(f"v_fract_f32 v{t+2+m}, v{t+2+m}")
    for (E, r, sgn, t) in Es:
        for m in range(2):
            A(f"v_cos_f32 v{E+2*m}, v{t+2+m}")
            A(f"v_sin_f32 v{E+2*m+1}, v{t+2+m}")
    for m in range(2):
        d = AV[0] + 2*m
        A(f"v_mul_f32 v{d}, v{28+m}, v{24+m}")
        A(f"v_mul_f32 v{d+1}, v{28+m}, v{26+m}")
        A(f"v_fma_f32 v{d}, -v{30+m}, v{26+m}, v{d}")
        A(f"v_fma_f32 v{d+1}, v{30+m}, v{24+m}, v{d+1}")
    for (E, r, sgn, t) in Es:
        for m in range(2):
            A(f"v_mul_f32 v{E+2*m}, v{t+m}, v{E+2*m}")
            A(f"v_mul_f32 v{E+2*m+1}, v{t+m}, v{E+2*m+1}")
    TMPW = 168
    A(f"v_add_u32 v11, {L_TB}, v3")
    asteps = [(0, None, None)]
    for r in range(1, 9): asteps.append((r, r-1, E1))
    for r in (256,258,260,262,264,516,520,772,776,1032,1288,1544,1800): asteps.append((r, r-256, E256))
    def cv(src, tmp): return [f"v_cvt_pk_bf16_f32 v{tmp}, v{src}, v{src+1}", f"v_cvt_pk_bf16_f32 v{tmp+1}, v{src+2}, v{src+3}"]
    def wr(base, n, tmp):
        L = [f"ds_write2_b64 v{base}, v[{tmp}:{tmp+1}], v[{tmp+2}:{tmp+3}] offset0:{66*((n-1)%4)} offset1:{66*(n%4)}"]
        if n % 4 == 3: L.append(f"v_add_u32 v{base}, {4*TROW}, v{base}")
        return L
    def astep(n):
        r, src, E = asteps[n]
        L = []
        if src is not None:
            c0 = cmul(AV[r], AV[src], E); c1 = cmul(AV[r]+2, AV[src]+2, E+2)
            L = [c0[0], c1[0], c0[1], c1[1]]
        t = TMPW + 4*((n >> 1) & 1)
        return L, cv(AV[r], t + 2*(n & 1)) + (wr(3, n, t) if n & 1 else [])
    def bstep(j):
        t = TMPW + 8 + 4*((j >> 1) & 1)
        if j == 0: return [], [f"v_mov_b32 v{t}, 0x3f80", f"v_mov_b32 v{t+1}, 0x3f80"]
        if j == 1: return [], cv(E8, t+2) + wr(11, 1, t)
        src = E8 if j == 2 else BV[(j-1) & 1]
        dst = BV[j & 1]
        c0 = cmul(dst, src, E8); c1 = cmul(dst+2, src+2, E8+2)
        return [c0[0], c1[0], c0[1], c1[1]], cv(dst, t + 2*(j & 1)) + (wr(11, j, t) if j & 1 else [])
    for j in range(32):
        bm, be = bstep(j)
        am, ae = astep(j) if j < len(asteps) else ([], [])
        for k in range(max(len(bm), len(am))):
            if k < len(bm): A(bm[k])
            if k < len(am): A(am[k])
        for x in be: A(x)
        for x in ae: A(x)
    stamp()
    A("s_waitcnt vmcnt(0)")
    for r in list(range(MISC, MISC+4)) + list(range(TW, TW+4)): A(f"v_add_u32 v{r}, s8, v{r}")
    A(f"""
    v_and_b32 v4, 31, v0
    v_mul_u32_u24 v4, {TROW}, v4
    v_lshrrev_b32 v5, 5, v0
    v_lshl_add_u32 v4, v5, 4, v4
    v_add_u32 v4, s8, v4
    s_waitcnt lgkmcnt(0)
    """)
    KA = 16
    FR = 40
    def kmf(t): return f"v_mfma_f32_32x32x16_bf16 v[{KA}:{KA+15}], v[{FR+8*t}:{FR+8*t+3}], v[{FR+8*t+4}:{FR+8*t+7}], {'0' if t == 0 else f'v[{KA}:{KA+15}]'}"
    for s_ in range(16):
        A(f"ds_read_b128 v[{FR+8*s_}:{FR+8*s_+3}], v{MISC} offset:{32*s_}")
        A(f"ds_read_b128 v[{FR+8*s_+4}:{FR+8*s_+7}], v4 offset:{L_TB+32*s_}")
        if s_ >= 4:
            A(f"s_waitcnt lgkmcnt(8)")
            A(kmf(s_-4))
    A(f"""
    v_mov_b32 v5, 0
    v_writelane_b32 v5, s14, 0
    v_lshlrev_b32 v6, 4, v0
    v_sub_u32 v6, {L_KR0+1088}, v6
    v_add_u32 v6, s8, v6
    v_mov_b32 v7, s8
    """)
    for t in range(12, 16):
        A(f"s_waitcnt lgkmcnt({2*(15-t)})")
        A(kmf(t))
    A(f"""
    s_lshl_b32 s9, s7, 12
    s_add_u32 s9, s9, {hex(BT_OFF)}
    v_and_b32 v1, 15, v0
    v_lshrrev_b32 v2, 4, v0
    v_lshlrev_b32 v1, 5, v1
    v_lshl_add_u32 v1, v2, 3, v1
    v_add_u32 v8, 512, v{MISC+1}
    v_add_u32 v9, 1024, v{MISC+1}
    v_add_u32 v10, 768, v{MISC+2}
    v_add_f32 v{KA}, v{KA}, v5
    """)
    for i in range(4): A(f"v_cvt_pk_bf16_f32 v{40+i}, v{KA+7-2*i}, v{KA+6-2*i}")
    A(f"ds_write_b128 v6, v[40:43]")
    for i in range(4): A(f"v_cvt_pk_bf16_f32 v{44+i}, v{KA+8-2*i}, v{KA+7-2*i}")
    A(f"ds_write_b128 v6, v[44:47] offset:{L_KR1-L_KR0}")
    A(f"v_cvt_pk_bf16_f32 v52, v{KA+8}, v{KA+8}")
    A(f"""
    s_mov_b64 exec, 1
    ds_write_b16_d16_hi v7, v43 offset:{L_KR1+2*552}
    s_mov_b32 exec_lo, 0
    s_mov_b32 exec_hi, 0x80000000
    ds_write_b32 v7, v52 offset:{L_KR0+2*38}
    ds_write_b16 v7, v52 offset:{L_KR0+2*37}
    ds_write_b32 v7, v52 offset:{L_KR1+2*38}
    s_mov_b64 exec, -1
    """)
    for k in range(4): A(f"v_cvt_pk_bf16_f32 v{48+k}, v{KA+9+k}, v{KA+9+k}")
    for k in range(4):
        A(f"ds_write_b16 v{TW+k}, v{48+k}")
        A(f"ds_write_b16 v{TW+k}, v{48+k} offset:{TCOPY+2}")
    A("v_readlane_b32 s15, v51, 31      ; (K1024,K1024)")
    for i in range(4): A(f"v_and_b32 v{CORR+i}, s15, v{CORR+i}")
    stamp()
    AFB = 56; TFB = 124; ACC = 164; FB = 12; GB = 44; TMP = 196; XB = 240
    def af(c): return AFB + 4*c
    cnt = 0
    for c in range(17):
        o = 16*(16-c)
        base, oo = (MISC+1, o) if o < 128 else ((8, o-128) if o < 256 else (9, o-256))
        A(f"ds_read2_b32 v[{af(c)}:{af(c)+1}], v{base} offset0:{oo} offset1:{oo+1}")
        A(f"ds_read2_b32 v[{af(c)+2}:{af(c)+3}], v{base} offset0:{oo+2} offset1:{oo+3}")
    def tf(pair, dl): return TFB + 4*((dl-2) + 3*pair if pair < 2 else 6 + dl - 4)
    for pair in range(3):
        dls = (2,3,4) if pair < 2 else (4,5,6,7)
        for dl in dls:
            r = tf(pair, dl)
            for hh in range(2):
                o = ((2*pair+hh)*TSEQ + 32*(dls[-1]-dl))//4
                base, oo = (MISC+2, o) if o < 192 else (10, o-192)
                A(f"ds_read2_b32 v[{r+2*hh}:{r+2*hh+1}], v{base} offset0:{oo} offset1:{oo+1}")
    BT_ = [TMP, TMP+8, 48]
    XR = [240, 248, 8]
    FA = MISC+3
    started = set()
    def mm(t, a_, b_):
        c = f"v[{ACC+4*t}:{ACC+4*t+3}]" if t in started else "0"
        started.add(t)
        return f"v_mfma_f32_16x16x32_bf16 v[{ACC+4*t}:{ACC+4*t+3}], v[{a_}:{a_+3}], v[{b_}:{b_+3}], {c}"
    def far(tau):
        L = []
        for pair in range(3):
            for dl in ((2,3,4) if pair < 2 else (4,5,6,7)):
                if tau + dl < 8: L.append(mm(tau+dl, XR[pair], tf(pair, dl)))
        return L
    def store(t):
        return [f"v_cvt_pk_bf16_f32 v6, v{ACC+4*t}, v{ACC+4*t+1}", f"v_cvt_pk_bf16_f32 v7, v{ACC+4*t+2}, v{ACC+4*t+3}",
                f"buffer_store_dwordx2 v[6:7], v1, s[{WS}:{WS+3}], s9 offen offset:{512*t}"]
    A("s_waitcnt lgkmcnt(0)")
    for tau in range(8):
        A("s_barrier")
        if tau in (0, 7): stamp()
        npair = 3 if tau < 4 else (2 if tau < 6 else 0)
        A(f"ds_read_b128 v[{FB}:{FB+3}], v{FA} offset:{512*tau+448}")
        if npair: A(f"ds_read_b128 v[{GB}:{GB+3}], v{FA} offset:{512*tau+432}")
        for rho in range(1, 8):
            A(f"ds_read_b128 v[{FB+4*rho}:{FB+4*rho+3}], v{FA} offset:{512*tau+448-64*rho}")
        if tau > 0:
            for m in far(tau-1): A(m)
            for x in store(tau-1): A(x)
        A("s_waitcnt lgkmcnt(7)")
        for pair in range(npair):
            for hh in range(2):
                sq = 2*pair + hh
                src = GB if BOX[sq][2] == -24 else FB
                d = BT_[pair] + 4*hh
                A(f"v_mfma_f32_16x16x32_bf16 v[{d}:{d+3}], v[{src}:{src+3}], v[{BOXR+4*sq}:{BOXR+4*sq+3}], 0")
        if tau + 2 < 8: A(mm(tau+2, af(16), FB))
        if tau + 4 < 8: A(mm(tau+4, CORR, FB))
        CVT = [f"v_cvt_pk_bf16_f32 v{XR[pair]+i}, v{BT_[pair]+2*i}, v{BT_[pair]+2*i+1}" for pair in range(npair) for i in range(4)]
        for rho in range(8):
            if rho > 0: A(f"s_waitcnt lgkmcnt({7-rho})")
            A(mm(tau, af(rho), FB+4*rho))
            if rho >= 2 and CVT: A(CVT.pop(0))
            if tau + 1 < 8: A(mm(tau+1, af(8+rho), FB+4*rho))
            if rho >= 2 and CVT: A(CVT.pop(0))
        assert not CVT
    stamp()
    for x in store(7): A(x)
    if STAMP: A("s_waitcnt vmcnt(0)")
    stamp()
    stamp_flush(0, WS)
    A("s_endpgm")

K2_PQ = 65536
K2_KV = 131072
KVS = 576
K2_B = K2_KV + 32*KVS
K2_LDS = K2_B + 8192
def k2():
    A(".p2align 8\nk2_kernel:")
    common_prologue("K2_END")
    WO, WS, OUT = 48, 52, 56
    A("""
    s_and_b32 s6, s4, 3
    s_lshl_b32 s6, s6, 3
    s_lshr_b32 s7, s4, 2
    s_lshl_b32 s7, s7, 2
    s_add_u32 s6, s6, s7
    s_and_b32 s7, s5, 3
    s_add_u32 s6, s6, s7         ; rt (0..31)
    s_lshr_b32 s7, s5, 2         ; ct (0..7)
    s_and_b32 s8, s3, 1          ; sw
    s_bfe_u32 s9, s3, 0x10001    ; kw
    v_lshlrev_b32 v1, 4, v0
    s_cmp_lt_u32 s3, 4
    s_cbranch_scc1 K2_COMPUTE
    """)
    stamp_n[0] = 1
    A(f"""
    v_lshrrev_b32 v6, 3, v0
    s_lshl_b32 s12, s9, 8
    s_lshl_b32 s13, s8, 5
    s_add_u32 s12, s12, s13
    v_add_u32 v9, s12, v6
    v_lshlrev_b32 v9, 10, v9
    v_bfe_u32 v7, v0, 4, 1
    v_lshlrev_b32 v7, 2, v7
    v_and_b32 v8, 7, v0
    v_xor_b32 v7, v7, v8
    v_lshl_add_u32 v9, v7, 4, v9
    s_lshl_b32 s13, s7, 7
    v_add_u32 v9, s13, v9        ; vWOsrc
    s_sub_u32 s15, s3, 4
    s_lshl_b32 s13, s7, 6
    s_lshl_b32 s14, s15, 4
    s_add_u32 s13, s13, s14
    v_add_u32 v10, s13, v6
    v_lshlrev_b32 v10, 12, v10
    v_lshl_add_u32 v10, v7, 4, v10
    s_lshl_b32 s13, s6, 7
    s_add_u32 s13, s13, {hex(BT_OFF)}
    v_add_u32 v10, s13, v10
    s_lshl_b32 s15, s15, 11
    s_add_u32 s15, s15, {K2_B}
    s_lshl_b32 s12, s12, 7
    s_lshl_b32 s13, s8, 5
    s_lshl_b32 s14, s9, 4
    s_add_u32 s13, s13, s14      ; sw*32+16kw
    s_lshl_b32 s13, s13, 10
    s_lshl_b32 s14, s6, 16
    s_add_u32 s14, s14, s13
    v_add_u32 v7, s14, v1
    s_add_u32 s13, s13, {K2_PQ}
    s_waitcnt lgkmcnt(0)
    """)
    srd(WO, P_WO, 0x80000); srd(WS, P_WS, WS_SIZE)
    stamp()
    A("s_barrier")
    for st in range(4):
        A(f"s_add_u32 s61, s7, {st}\ns_and_b32 s61, s61, 3\ns_lshl_b32 s60, s61, 12\ns_lshl_b32 s61, s61, 16")
        A(f"s_add_u32 m0, s13, {st*4096}")
        for i in range(4):
            A(f"buffer_load_dwordx4 v7, s[{WS}:{WS+3}], s60 offen offset:{i*1024} lds")
        for i in range(4):
            if i == 2 and st > 0:
                A("s_waitcnt vmcnt(6)"); stamp(); A("s_barrier")
            A(f"s_add_u32 m0, s12, {st*8192+i*1024}\ns_add_u32 s60, s61, {i*8192}")
            A(f"buffer_load_dwordx4 v9, s[{WO}:{WO+3}], s60 offen lds")
    for i in range(2):
        A(f"s_add_u32 m0, s15, {i*1024}\ns_mov_b32 s60, {i*32768}")
        A(f"buffer_load_dwordx4 v10, s[{WS}:{WS+3}], s60 offen lds")
    A("s_waitcnt vmcnt(2)"); stamp(); A("s_barrier")
    A("s_waitcnt vmcnt(0)"); stamp(); A("s_barrier")
    stamp_flush(1, WS)
    A("s_endpgm")
    A("K2_COMPUTE:")
    k2_compute(WO, WS, OUT)
    A("K2_END:\ns_endpgm")

def k2_compute(WO, WS, OUT):
    stamp_n[0] = 1
    A(f"""
    s_lshl_b32 s10, s9, 4
    s_lshl_b32 s11, s8, 1
    s_add_u32 s11, s11, s7
    s_and_b32 s12, s11, 3
    s_add_u32 s11, s11, 1
    s_and_b32 s13, s11, 3
    s_mul_i32 s12, s12, {4*HS}
    s_mul_i32 s13, s13, {4*HS}
    s_mul_i32 s11, s10, {HS}
    s_add_u32 s11, s11, {hex(KV_OFF)}
    v_add_u32 v2, s11, v1
    v_bfe_u32 v3, v0, 2, 2
    v_mul_u32_u24 v4, {HS}, v3
    v_and_b32 v5, 3, v0
    v_lshl_add_u32 v4, v5, 4, v4
    v_add_u32 v4, s11, v4
    v_mov_b32 v6, s12
    v_mov_b32 v7, s13
    s_mov_b32 s14, 0xffff0000
    s_mov_b32 s15, 0xffff0000
    v_cndmask_b32_e64 v6, v6, v7, s[14:15]
    v_add_u32 v4, v4, v6
    s_add_u32 s14, s12, {2*HS}
    s_add_u32 s15, s13, {2*HS}
    s_mov_b32 s54, {hex(WS_SIZE)}
    s_mov_b32 s55, 0x20000
    s_waitcnt lgkmcnt(0)
    s_mov_b64 s[52:53], s[{P_WS}:{P_WS+1}]
    """)
    stamp()
    KVR = 16
    for n in range(8):
        so = ("s12", "s14", "s13", "s15")[n >> 1]
        A(f"buffer_load_dwordx4 v[{KVR+4*n}:{KVR+4*n+3}], v2, s[{WS}:{WS+3}], {so} offen offset:{(n&1)*HS}")
    A(f"buffer_load_dwordx4 v[{KVR+32}:{KVR+35}], v4, s[{WS}:{WS+3}], 0 offen offset:1024")
    A("s_barrier")
    A(f"""
    s_lshl_b32 s12, s6, 1
    s_add_u32 s12, s12, s8       ; rb
    s_lshl_b32 s13, s7, 6
    s_lshl_b32 s14, s9, 5
    s_add_u32 s13, s13, s14
    v_and_b32 v8, 31, v0
    s_lshl_b32 s15, s12, 5
    v_add_u32 v8, s15, v8        ; row
    v_lshrrev_b32 v9, 5, v0      ; hf
    v_lshlrev_b32 v11, 2, v8
    v_add_u32 v11, {hex(G_OFF)}, v11
    buffer_load_dword v13, v11, s[{WS}:{WS+3}], 0 offen
    v_lshlrev_b32 v12, 10, v8
    v_lshl_add_u32 v12, v9, 4, v12
    s_lshl_b32 s13, s13, 1
    v_add_u32 v12, s13, v12
    s_lshl_b32 s11, s8, 3
    s_add_u32 s11, s11, s10
    s_mul_i32 s11, s11, {KVS}
    s_add_u32 s11, s11, {K2_KV}
    v_lshlrev_b32 v2, 3, v0
    v_add_u32 v2, s11, v2
    v_bfe_u32 v3, v0, 2, 3
    v_mul_u32_u24 v14, {KVS}, v3
    v_xor_b32 v5, 2, v5
    v_lshl_add_u32 v14, v5, 3, v14
    v_add_u32 v14, s11, v14
    v_and_b32 v10, 31, v0
    v_min_u32 v3, 16, v10
    v_lshrrev_b32 v4, 4, v3      ; is z
    v_xor_b32 v4, v4, v9
    v_lshlrev_b32 v3, 5, v3
    v_lshl_add_u32 v3, v4, 4, v3
    s_mul_i32 s11, s9, {16*KVS}
    s_add_u32 s11, s11, {K2_KV}
    v_add_u32 v3, s11, v3        ; vKVa
    v_bfe_u32 v4, v0, 2, 2
    v_lshl_add_u32 v4, v9, 2, v4
    v_lshlrev_b32 v4, 7, v4
    v_bfe_u32 v5, v0, 4, 1
    v_lshl_add_u32 v4, v5, 5, v4
    v_and_b32 v5, 3, v0
    v_lshl_add_u32 v4, v5, 3, v4
    v_bfe_u32 v5, v0, 3, 1
    v_lshl_add_u32 v4, v5, 6, v4
    s_lshl_b32 s11, s8, 6
    v_xor_b32 v10, s11, v4
    s_lshl_b32 s11, s9, 12
    s_add_u32 s11, s11, {K2_B}
    v_add_u32 v10, s11, v10
    s_lshl_b32 s11, s9, 15
    v_add_u32 v4, s11, v4
    s_lshl_b32 s11, s9, 6
    v_xor_b32 v4, s11, v4
    v_xor_b32 v5, 64, v4
    s_lshl_b32 s11, s8, 5
    s_lshl_b32 s14, s9, 4
    s_add_u32 s11, s11, s14
    s_lshl_b32 s11, s11, 10
    s_add_u32 s11, s11, {K2_PQ}
    v_add_u32 v6, s11, v1
    v_xor_b32 v7, {16*1024}, v6
    """)
    srd(OUT, P_OUT, 0x200000)
    for n in range(9):
        A(f"s_waitcnt vmcnt({9-n})")
        A(f"v_cvt_pk_bf16_f32 v{KVR+4*n}, v{KVR+4*n}, v{KVR+4*n+1}")
        A(f"v_cvt_pk_bf16_f32 v{KVR+4*n+1}, v{KVR+4*n+2}, v{KVR+4*n+3}")
        if n < 8: A(f"ds_write_b64 v2, v[{KVR+4*n}:{KVR+4*n+1}] offset:{n*KVS}")
        else:
            A("s_mov_b32 exec_hi, 0")
            A(f"ds_write_b64 v14, v[{KVR+4*n}:{KVR+4*n+1}] offset:512")
            A("s_mov_b32 exec_hi, -1")
    A("s_waitcnt lgkmcnt(0)")
    stamp()
    ACC = (112, 128)
    OD = (64, 80)
    KF = (16, 20); PF = (24, 28)
    WF = (32, 40)
    OF = (48, 52)
    BB = 144
    def rd_kp(h): return [f"ds_read_b128 v[{KF[h&1]}:{KF[h&1]+3}], v3 offset:{h*KVS}", f"ds_read_b128 v[{PF[h&1]}:{PF[h&1]+3}], v6 offset:{h*1024}"]
    def rd_wo(h):
        b = WF[h & 1]
        return [f"ds_read_b64_tr_b16 v[{b+4*jt+2*t}:{b+4*jt+2*t+1}], v{4+jt} offset:{h*2048+t*1024}" for jt in (1, 0) for t in range(2)]
    def omf(h): return f"v_mfma_f32_32x32x16_bf16 v[{OD[h%2]}:{OD[h%2]+15}], v[{KF[h&1]}:{KF[h&1]+3}], v[{PF[h&1]}:{PF[h&1]+3}], 0"
    def norm(h):
        d = OD[h % 2]; o = OF[h & 1]
        L = [f"v_add_f32 v{d+8}, {hex(EPS)}, v{d+8}", f"v_rcp_f32 v{d+8}, v{d+8}"]
        L += [f"v_pk_mul_f32 v[{d+i}:{d+i+1}], v[{d+i}:{d+i+1}], v[{d+8}:{d+9}] op_sel_hi:[1,0]" for i in range(0, 8, 2)]
        L += [f"v_cvt_pk_bf16_f32 v{o+i}, v{d+2*i}, v{d+2*i+1}" for i in range(4)]
        return L
    def proj(h, jt):
        b = WF[h & 1]; o = OF[h & 1]
        c = "0" if h == 0 else f"v[{ACC[jt]}:{ACC[jt]+15}]"
        return f"v_mfma_f32_32x32x16_bf16 v[{ACC[jt]}:{ACC[jt]+15}], v[{b+4*jt}:{b+4*jt+3}], v[{o}:{o+3}], {c}"
    A("s_barrier")
    stamp()
    for x in rd_kp(0): A(x)
    for i in range(18):
        A("s_waitcnt lgkmcnt(0)")
        N = norm(i-1) if 0 <= i-1 < 16 else []
        if i < 16: A(omf(i))
        if i+1 < 16 and (i+1) % 4 == 0: A("s_barrier")
        if i == 16:
            A("s_barrier")
            for g in range(4): A(f"ds_read_b64_tr_b16 v[{96+2*g}:{97+2*g}], v10 offset:{g*1024}")
        R = (rd_kp(i+1) if i+1 < 16 else [])
        W_ = rd_wo(i-1) if 0 <= i-1 < 16 else []
        for x in R + W_[:2]: A(x)
        for x in N[:2]: A(x)
        if 0 <= i-2: A(proj(i-2, 1))
        for x in W_[2:]: A(x)
        for x in N[2:6]: A(x)
        if i == 17:
            A("s_waitcnt vmcnt(0)\nv_sub_f32 v14, 1.0, v13")
        if 0 <= i-2: A(proj(i-2, 0))
        for x in N[6:]: A(x)
    stamp()
    for i in range(8):
        A(f"v_lshlrev_b32 v{BB+2*i}, 16, v{96+i}")
        A(f"v_and_b32 v{BB+2*i+1}, 0xffff0000, v{96+i}")
    for g in range(4): A(f"ds_write_b128 v6, v[{ACC[1]+4*g}:{ACC[1]+4*g+3}] offset:{g*1024}")
    for i in range(16): A(f"v_mul_f32 v{BB+i}, v14, v{BB+i}")
    A("s_waitcnt lgkmcnt(0)\ns_barrier")
    for g in range(4): A(f"ds_read_b128 v[{16+4*g}:{19+4*g}], v7 offset:{g*1024}")
    for i in range(16): A(f"v_fmac_f32 v{BB+i}, v13, v{ACC[0]+i}")
    for p in range(2):
        A(f"s_waitcnt lgkmcnt({2-2*p})")
        for i in range(8*p, 8*p+8): A(f"v_fmac_f32 v{BB+i}, v13, v{16+i}")
        for i in range(4*p, 4*p+4): A(f"v_cvt_pk_bf16_f32 v{32+i}, v{BB+2*i}, v{BB+2*i+1}")
        A(f"v_permlane32_swap_b32 v{32+4*p}, v{34+4*p}")
        A(f"v_permlane32_swap_b32 v{33+4*p}, v{35+4*p}")
        A(f"buffer_store_dwordx4 v[{32+4*p}:{35+4*p}], v12, s[{OUT}:{OUT+3}], 0 offen offset:{32*p}")
    stamp()
    if STAMP: A("s_waitcnt vmcnt(0)")
    stamp()
    stamp_flush(1, WS)

k1()
k2()
lines, errs = hazard_pass(A.lines)
for e in errs: print(e, file=sys.stderr)
hdr = open("gated_mix__linear_attn_block__ssm_conv_s4__prompt.s.ref").read().split("; Override launch")[0]
out = hdr
out += "; @launch kernel=k1_kernel grid=(256,1,1) block=(512,1,1) lds=163840\n"
out += f"; @launch kernel=k2_kernel grid=(256,1,1) block=(512,1,1) lds={K2_LDS}\n"
out += '.amdgcn_target "amdgcn-amd-amdhsa--gfx950"\n.text\n.globl k1_kernel\n.type k1_kernel,@function\n.globl k2_kernel\n.type k2_kernel,@function\n'
out += "\n".join(lines) + "\n"
T = ssm_tables()
out += ".p2align 8\n.type K1_TABLE,@object\nK1_TABLE:\n"
for i in range(0, len(T), 8):
    out += ".long " + ", ".join(hex(x) for x in T[i:i+8]) + "\n"
out += f".size K1_TABLE, {4*len(T)}\nCODE_END:\n"
out += '.section .rodata,"a"\n' + kernel_desc("k1_kernel", 256, 102, 256) + kernel_desc("k2_kernel", 256, 102, 256)
fn = [x for x in sys.argv[1:] if not x.startswith("--")][0]
open(fn, "w").write(out)
```

```python
import sys, struct
from asmlib import *

PQ_OFF = 0x0
BT_OFF = 0x200000
KV_OFF = 0x400000
HS = 2048
G_OFF = 0x410000
TS_OFF = 0x500000
WS_SIZE = 0x600000
STAMP = "--stamp" in sys.argv
def opt(name, default):
    for x in sys.argv:
        if x.startswith(f"--{name}="): return type(default)(x.split("=")[1])
    return default

LOG2E = 0x3fb8aa3b
EPS = 0x358637bd
def f2u(x): return struct.unpack("<I", struct.pack("<f", x))[0]

A = Asm()

def srd(base, ptr, size):
    A(f"s_mov_b32 s{base}, s{ptr}\ns_mov_b32 s{base+1}, s{ptr+1}\ns_mov_b32 s{base+2}, {hex(size)}\ns_mov_b32 s{base+3}, 0x20000")

stamp_n = [0]
def stamp():
    if not STAMP: return
    n = stamp_n[0]; stamp_n[0] += 1
    assert n < 13
    A(f"s_memtime s[{64+2*n}:{65+2*n}]")
def stamp_dyn(idx_s, base):
    if not STAMP: return
    A(f"s_memtime s[94:95]\ns_add_u32 s93, {idx_s}, {base}\ns_waitcnt lgkmcnt(0)\ns_mov_b32 m0, s93\nv_writelane_b32 v254, s94, m0")
def stamp_flush(kern, wsrd, skip=()):
    if not STAMP: return
    n = stamp_n[0]
    A("s_memrealtime s[98:99]")
    A("s_waitcnt lgkmcnt(0)")
    A(f"s_lshl_b32 s60, s2, 3\ns_add_u32 s60, s60, s3\ns_lshl_b32 s60, s60, 6\ns_add_u32 s60, s60, {hex(TS_OFF + kern*0x40000)}")
    A("s_mov_b64 exec, -1")
    for i in range(14):
        if i in skip: continue
        A(f"v_writelane_b32 v254, {f's{64+2*i}' if i < n else '0'}, {i}")
    A("s_getreg_b32 s61, hwreg(HW_REG_XCC_ID)\nv_writelane_b32 v254, s61, 13")
    A("v_writelane_b32 v254, s96, 14\nv_writelane_b32 v254, s98, 15")
    A(f"v_lshlrev_b32 v255, 2, v0\ns_mov_b64 exec, 0xffff")
    A(f"buffer_store_dword v254, v255, s[{wsrd}:{wsrd+3}], s60 offen")
    A("s_mov_b64 exec, -1")

P_X, P_W, P_WO, P_ARE, P_AIM, P_BRE, P_BIM, P_CRE, P_CIM, P_LDT, P_DSK, P_GW, P_OUT, P_DBG, P_WS = 16,18,20,24,26,28,30,32,34,36,38,40,42,44,46

def common_prologue(endlabel):
    stamp_n[0] = 0
    if STAMP: A("s_memrealtime s[96:97]")
    stamp()
    A(f"""
    s_cmp_ge_u32 s2, 256
    s_cbranch_scc1 {endlabel}
    s_load_dwordx16 s[16:31], s[0:1], 0
    s_load_dwordx16 s[32:47], s[0:1], 64
    v_lshrrev_b32 v1, 6, v0
    v_and_b32 v0, 63, v0
    v_readfirstlane_b32 s3, v1
    s_and_b32 s4, s2, 7          ; xcd
    s_lshr_b32 s5, s2, 3         ; j
    """)

def interleave(M, V, budget=24):
    V = list(V)
    for m in M:
        A(m)
        c = 0
        while V and c < budget:
            x = V.pop(0)
            A(x)
            c += 8 if x.split()[0].replace("_e64","") in TRANS else 4
    return V

SLOT = 40960
NSLOT = 3
XCH = NSLOT*SLOT
def k1():
    A(".p2align 8\nk1_kernel:")
    common_prologue("K1_END")
    A("""
    s_getpc_b64 s[62:63]
K1_PC0:
    s_lshl_b32 s6, s5, 3
    s_add_u32 s6, s6, s3
    s_lshl_b32 s6, s6, 7
    s_min_u32 s6, s6, CODE_END-K1_PC0-4
    v_mov_b32 v1, s6
    global_load_dword v253, v1, s[62:63]
    s_cmp_lt_u32 s5, 16
    s_cbranch_scc1 K1_G
    s_sub_u32 s5, s5, 16         ; js
    s_and_b32 s9, s3, 3          ; w
    s_lshl_b32 s6, s4, 6
    s_lshl_b32 s7, s5, 2
    s_add_u32 s6, s6, s7         ; ch0
    s_add_u32 s7, s6, s9         ; ch
    s_lshl_b32 s8, s7, 8
    v_lshlrev_b32 v1, 2, v0
    v_add_u32 v1, s8, v1
    s_lshl_b32 s10, s7, 1
    v_mov_b32 v2, s10
    v_mov_b32 v10, 0
    v_mov_b32 v252, 0
    s_waitcnt lgkmcnt(0)
    """)
    stamp()
    A(f"global_load_short_d16_hi v10, v2, s[{P_LDT}:{P_LDT+1}]")
    for n, p in enumerate((P_ARE, P_AIM)):
        A(f"global_load_dword v{4+n}, v1, s[{p}:{p+1}]")
    A("s_cmp_ge_u32 s3, 4\ns_cbranch_scc1 K1_HELPER")
    if opt("bcd", 0): A(f"s_sleep {opt('bcd', 0)}")
    for n, p in enumerate((P_BRE, P_BIM, P_CRE, P_CIM)):
        A(f"global_load_dword v{6+n}, v1, s[{p}:{p+1}]")
    A(f"global_load_short_d16_hi v252, v2, s[{P_DSK}:{P_DSK+1}]")
    A("s_branch K1_SSMC")
    A("""
K1_G:
    s_and_b32 s6, s4, 3
    s_lshl_b32 s6, s6, 2
    s_and_b32 s14, s5, 3         ; ml
    s_add_u32 s6, s6, s14        ; mi
    s_lshr_b32 s7, s4, 2
    s_lshl_b32 s7, s7, 2
    s_lshr_b32 s15, s5, 2        ; nl
    s_add_u32 s7, s7, s15        ; ni
    s_cmp_ge_u32 s3, 4
    s_cbranch_scc1 K1_LOADER
    """)
    NPF = opt("npf", 2)
    if NPF:
        A(f"""
        s_cmp_ge_u32 s3, {NPF}
        s_cbranch_scc1 K1_GEMM
        s_and_b32 s8, s4, 3
        s_lshl_b32 s8, s8, 9
        s_lshl_b32 s9, s5, 5
        s_add_u32 s8, s8, s9
        v_add_u32 v2, s8, v0
        v_lshlrev_b32 v2, 10, v2
        s_lshl_b32 s8, s3, 7
        v_add_u32 v2, s8, v2
        s_lshl_b32 s8, s3, 6
        s_lshl_b32 s9, s5, 2
        s_add_u32 s8, s8, s9
        v_bfe_u32 v3, v0, 3, 2
        v_add_u32 v3, s8, v3
        v_mul_u32_u24 v3, 3072, v3
        v_bfe_u32 v4, v0, 2, 1
        v_lshl_add_u32 v3, v4, 10, v3
        v_and_b32 v4, 3, v0
        v_lshl_add_u32 v3, v4, 7, v3
        s_lshr_b32 s8, s4, 2
        s_lshl_b32 s8, s8, 9
        s_add_u32 s8, s8, 1024
        v_add_u32 v3, s8, v3             ; w line
        s_mov_b32 exec_hi, 0
        s_waitcnt lgkmcnt(0)
        {f"s_sleep {opt('ldelay', 0)}" if opt('ldelay', 0) else ""}
        global_load_dword v252, v2, s[{P_X}:{P_X+1}]
        global_load_dword v251, v3, s[{P_W}:{P_W+1}]
        s_mov_b32 exec_hi, -1
        """)
    A("s_branch K1_GEMM\nK1_LOADER:")
    gemm_loader()
    A("K1_HELPER:")
    ssm_helper()
    A("K1_SSMC:")
    ssm_compute()
    A("K1_GEMM:")
    gemm_compute()
    A("K1_END:\ns_endpgm")

WSL = 131072
def frag_addr_setup():
    A("""
    v_and_b32 v1, 31, v0
    v_lshrrev_b32 v2, 5, v0      ; hf
    v_bfe_u32 v3, v0, 1, 3       ; f
    v_xor_b32 v3, v3, v2         ; hf^f
    s_lshl_b32 s60, s8, 6
    v_add_u32 v1, s60, v1
    v_lshlrev_b32 v1, 7, v1      ; row*128
    """)
    for ks in range(4):
        A(f"v_xor_b32 v{4+ks}, {2*ks}, v3")
        A(f"v_lshl_add_u32 v{4+ks}, v{4+ks}, 4, v1")
    A(f"""
    v_bfe_u32 v1, v0, 2, 2
    v_lshlrev_b32 v8, 7, v1
    v_bfe_u32 v1, v0, 4, 1
    v_lshlrev_b32 v1, 5, v1
    v_and_b32 v3, 3, v0
    v_lshl_add_u32 v1, v3, 3, v1
    s_lshl_b32 s60, s9, 6
    v_add_u32 v1, s60, v1
    v_bfe_u32 v3, v0, 3, 1
    v_lshlrev_b32 v3, 6, v3
    v_xor_b32 v1, v1, v3
    v_add_u32 v8, v8, v1
    v_add_u32 v8, {WSL}, v8
    """)

def wsrc_setup(wreg, dst):
    A(f"""
    v_lshrrev_b32 v1, 3, v0
    v_and_b32 v3, 7, v0
    v_bfe_u32 v{dst}, v0, 4, 1
    v_lshlrev_b32 v{dst}, 2, v{dst}
    v_xor_b32 v3, v{dst}, v3
    s_lshl_b32 s60, {wreg}, 3
    v_add_u32 v{dst}, s60, v1
    v_mul_u32_u24 v{dst}, 3072, v{dst}
    v_lshl_add_u32 v{dst}, v3, 4, v{dst}
    s_lshl_b32 s60, s7, 7
    v_add_u32 v{dst}, s60, v{dst}
    """)

def gemm_loader():
    stamp_n[0] = 1
    X, W, WS = 48, 52, 56
    A(f"""
    s_sub_u32 s13, s3, 4         ; w
    v_lshrrev_b32 v2, 3, v0      ; lane>>3
    v_and_b32 v3, 7, v0
    v_lshrrev_b32 v4, 4, v0      ; lane>>4
    s_and_b32 s10, s13, 1
    s_lshl_b32 s10, s10, 2
    v_or_b32 v5, s10, v4
    v_xor_b32 v5, v5, v3
    s_lshl_b32 s10, s6, 7
    s_lshl_b32 s11, s13, 3
    s_add_u32 s10, s10, s11
    v_add_u32 v10, s10, v2       ; row
    v_lshlrev_b32 v10, 10, v10
    v_lshl_add_u32 v10, v5, 4, v10 ; vXsrc
    """)
    wsrc_setup("s13", 11)
    A(f"""
    s_lshl_b32 s12, s13, 10      ; w*1024
    s_lshl_b32 s88, s13, 11
    s_add_u32 s88, s88, {WSL-1024}
    """)
    for n in range(4):
        A(f"s_add_u32 s60, s15, {n}\ns_and_b32 s60, s60, 3\ns_lshl_b32 s{80+n}, s60, 15\ns_lshl_b32 s60, s60, 12\ns_add_u32 s{84+n}, s60, s12")
    A(f"""
    s_add_u32 s15, s14, s15
    s_and_b32 s15, s15, {opt("G", 2)-1}        ; phase
    s_lshl_b32 s10, s15, 7
    s_mul_i32 s11, s15, {64*3072}
    s_mov_b32 s50, 0x200000
    s_mov_b32 s51, 0x20000
    s_mov_b32 s54, 0x180000
    s_mov_b32 s55, 0x20000
    s_waitcnt lgkmcnt(0)
    s_mov_b64 s[48:49], s[{P_X}:{P_X+1}]
    s_mov_b64 s[52:53], s[{P_W}:{P_W+1}]
    """)
    stamp()
    if opt("ldelay", 0): A(f"s_sleep {opt('ldelay', 0)}")
    def ldx(n, lds):
        A(f"s_add_u32 m0, s{84+n}, {lds}")
        A(f"s_add_u32 s63, s10, s{80+n}")
        A(f"buffer_load_dwordx4 v10, s[{X}:{X+3}], s63 offen lds")
    def ldw(lds, goff):
        A(f"s_add_u32 m0, s88, {lds}")
        A(f"s_add_u32 s63, s11, {goff}")
        for p in (1, 2):
            A(f"buffer_load_dwordx4 v11, s[{W}:{W+3}], s63 offen offset:{p*1024} lds")
    ldx(0, 0); ldx(1, 0); ldw(0, 0); ldx(2, 0); ldx(3, 0)
    A(f"s_xor_b32 s10, s10, 128")
    ldx(0, 16384); ldx(1, 16384); ldw(8192, 32*3072)
    A(f"s_xor_b32 s11, s11, {64*3072}")
    ldx(2, 16384); ldx(3, 16384); ldw(16384, 0)
    A("s_and_b32 s8, s13, 1\ns_lshr_b32 s9, s13, 1")
    frag_addr_setup()
    A(f"""
    v_lshl_add_u32 v8, v2, 10, v8
    s_lshl_b32 s14, s7, 2
    s_lshl_b32 s60, s9, 1
    s_add_u32 s14, s14, s60      ; head0
    s_lshl_b32 s60, s6, 2
    s_lshl_b32 s61, s8, 1
    s_add_u32 s60, s60, s61
    s_lshl_b32 s60, s60, 5
    s_add_u32 s60, s60, s14
    s_lshl_b32 s60, s60, 10
    v_lshlrev_b32 v57, 4, v0
    v_add_u32 v57, s60, v57
    s_mov_b32 s4, 2
    s_mov_b32 s5, 32768
    s_movk_i32 s10, 256
    s_movk_i32 s89, 16384
    """)
    srd(WS, P_WS, WS_SIZE)
    A("K1_LD_LOOP:")
    A("s_waitcnt vmcnt(8)")
    stamp_dyn("s4", 0)
    A("s_barrier")
    ldx(0, "s5"); ldx(1, "s5")
    A("s_add_u32 s62, s89, 8192")
    ldw("s62", 32*3072)
    A(f"""
    s_mul_i32 s11, s4, {64*3072}
    s_xor_b32 s89, s89, 16384
    s_waitcnt vmcnt(8)
    s_barrier
    """)
    ldx(2, "s5"); ldx(3, "s5"); ldw("s89", 0)
    A("""
    s_add_u32 s4, s4, 1
    s_add_u32 s5, s5, 16384
    s_add_u32 s10, s10, 128
    s_cmp_lt_u32 s4, 8
    s_cbranch_scc1 K1_LD_LOOP
    """)
    def ldq(slot, goff_s):
        for h in range(2):
            A(f"s_add_u32 m0, s12, {WSL+slot*8192+h*4096}")
            A(f"s_add_u32 s63, {goff_s}, {h*32*3072}")
            A(f"buffer_load_dwordx4 v11, s[{W}:{W+3}], s63 offen lds")
    A("s_waitcnt vmcnt(8)\ns_barrier")
    ldw(3*8192, 32*3072)
    A(f"s_mul_i32 s10, s15, {64*3072}")
    A("s_waitcnt vmcnt(6)\ns_barrier")
    ldq(0, "s10")
    A(f"s_xor_b32 s10, s10, {64*3072}")
    A("s_waitcnt vmcnt(4)\ns_barrier")
    ldq(1, "s10")
    A(f"s_mov_b32 s10, {2*64*3072}")
    A("s_waitcnt vmcnt(4)\ns_barrier")
    ldq(2, "s10")
    A(f"""
    s_mov_b32 s10, {hex(LOG2E)}
    s_mov_b32 s11, {hex(LOG2E)}
    s_mov_b32 s12, {hex(EPS)}
    s_mov_b32 s61, 32768
    """)
    stamp_n[0] = 8
    QA = (64, 80)
    QS = (96, 120, 144, 168)
    def qreads(u):
        b = QS[u & 3]; pos = u >> 1
        L = []
        for j in range(2):
            ks = 2*(u & 1) + j
            xo = (pos & 3)*16384
            wo = (pos & 3)*8192 + ks*2048
            L.append(f"ds_read_b128 v[{b+12*j}:{b+12*j+3}], v{4+ks} offset:{xo}")
            L += [f"ds_read_b64_tr_b16 v[{b+12*j+8+2*t}:{b+12*j+9+2*t}], v8 offset:{wo+t*512}" for t in range(2)]
            L.append(f"ds_read_b128 v[{b+12*j+4}:{b+12*j+7}], v{4+ks} offset:{xo+4096}")
        return L
    def qmf(u, j, mb):
        b = QS[u & 3] + 12*j; d = QA[mb]
        c = "0" if (u == 0 and j == 0) else f"v[{d}:{d+15}]"
        return f"v_mfma_f32_32x32x16_bf16 v[{d}:{d+15}], v[{b+8}:{b+11}], v[{b+4*mb}:{b+4*mb+3}], {c}"
    A("s_waitcnt vmcnt(4)\ns_barrier")
    stamp()
    if opt("qprio", 1): A("s_setprio 1")
    for r in qreads(0) + qreads(1)[:7]: A(r)
    def ldq2(pos):
        return [f"s_add_u32 m0, s13, {WSL+(pos&3)*8192+h*4096}\ns_mov_b32 s63, {pos*64*3072+h*32*3072}\nbuffer_load_dwordx4 v11, s[{W}:{W+3}], s63 offen lds" for h in range(2)]
    A("s_lshl_b32 s13, s13, 10")
    for x in ldq2(3): A(x)
    A(qreads(1)[7])
    DEF = []
    for u in range(16):
        A(f"s_waitcnt lgkmcnt({8 if u < 15 else 0})")
        D = []
        if u % 2 == 0 and u < 14:
            p = u//2 + 1
            issued = max(3, min(p+1, 7))
            A(f"s_waitcnt vmcnt({2*(issued-p)})")
            A("s_barrier")
            if 4 <= p+2 <= 7: D = ldq2(p+2)
        if u == 6:
            for i in range(2): A(f"v_add_u32 v{4+i}, 65536, v{4+i}")
        if u == 7:
            for i in range(2, 4): A(f"v_add_u32 v{4+i}, 65536, v{4+i}")
        R = qreads(u+2) if u < 14 else []
        if u < 13: M = [qmf(u, 0, 0), qmf(u, 0, 1), qmf(u, 1, 0), qmf(u, 1, 1)]
        else:
            M = [qmf(u, 0, 0), qmf(u, 1, 0)]; DEF += [qmf(u, 0, 1), qmf(u, 1, 1)]
        n = 2 if len(M) == 4 else 4
        for k, m in enumerate(M):
            A(m)
            for r in R[:n]: A(r)
            R = R[n:]
            if k in (1, 3) and D: A(D.pop(0))
    stamp()
    TMP = 208; PQ = (16, 24)
    A(DEF.pop(0)); A(DEF.pop(0))
    V0 = phi_ops(QA[0], PQ[0], TMP, False)[:28]
    rest = interleave(DEF, V0, 28)
    for x in rest: A(x)
    V0 = phi_ops(QA[0], PQ[0], TMP, False)[28:36] + [f"buffer_store_dwordx4 v[{PQ[0]}:{PQ[0]+3}], v57, s[{WS}:{WS+3}], 0 offen"]
    V0 += phi_ops(QA[0], PQ[0], TMP, True)[28:] + [f"buffer_store_dwordx4 v[{PQ[0]+4}:{PQ[0]+7}], v57, s[{WS}:{WS+3}], 0 offen offset:1024"]
    for x in V0: A(x)
    V = phi_ops(QA[1], PQ[1], TMP, True)
    for h in range(2):
        for x in V[28*h:28*h+28]: A(x)
        A(f"buffer_store_dwordx4 v[{PQ[1]+4*h}:{PQ[1]+4*h+3}], v57, s[{WS}:{WS+3}], s61 offen offset:{1024*h}")
    stamp()
    if STAMP: A("s_waitcnt vmcnt(0)")
    stamp()
    stamp_flush(0, WS, skip=range(2, 8))
    A("s_endpgm")

def phi_ops(base, dst, tmp, pk=True):
    L = []
    for h in range(2):
        r = range(8*h, 8*h+8)
        if pk: L += [f"v_pk_mul_f32 v[{tmp+i}:{tmp+i+1}], v[{base+i}:{base+i+1}], s[10:11]" for i in r[::2]]
        else: L += [f"v_mul_f32 v{tmp+i}, s10, v{base+i}" for i in r]
        for i in r:
            L.append(f"v_exp_f32_e64 v{tmp+i}, v{tmp+i} clamp")
            L.append(f"v_max_f32 v{base+i}, s12, v{base+i}")
        if pk: L += [f"v_pk_add_f32 v[{base+i}:{base+i+1}], v[{base+i}:{base+i+1}], v[{tmp+i}:{tmp+i+1}]" for i in r[::2]]
        else: L += [f"v_add_f32 v{base+i}, v{base+i}, v{tmp+i}" for i in r]
        L += [f"v_cvt_pk_bf16_f32 v{dst+i//2}, v{base+i}, v{base+i+1}" for i in r[::2]]
    return L

def cost(x):
    op = x.split()[0].replace("_e64", "")
    if op in TRANS: return 8
    if op.startswith("ds_write"): return 16
    if op.startswith("s_"): return 2
    return 4

def gemm_compute():
    stamp_n[0] = 1
    W, WS = 52, 56
    ACC = {"k": (96, 112), "v": (128, 144)}
    A("s_and_b32 s8, s3, 1\ns_lshr_b32 s9, s3, 1")
    frag_addr_setup()
    A("v_lshl_add_u32 v13, v2, 11, v8")
    for r in range(96, 160, 2):
        A(f"v_mov_b64 v[{r}:{r+1}], 0")
    A(f"""
    s_lshl_b32 s14, s7, 2
    s_lshl_b32 s13, s9, 1
    s_add_u32 s14, s14, s13      ; head0
    v_bfe_u32 v14, v0, 4, 1
    v_add_u32 v14, s14, v14
    v_mul_u32_u24 v14, {HS}, v14
    v_and_b32 v1, 3, v0
    v_bfe_u32 v3, v0, 2, 1
    v_lshl_add_u32 v1, v3, 3, v1
    v_bfe_u32 v3, v0, 3, 1
    v_lshl_add_u32 v1, v3, 2, v1 ; p
    v_lshl_add_u32 v14, v1, 2, v14
    v_add_u32 v14, {hex(KV_OFF)}, v14
    v_lshl_add_u32 v15, v2, 8, v14      ; + hf*256
    s_lshl_b32 s13, s8, 9
    v_add_u32 v15, s13, v15
    v_lshlrev_b32 v56, 4, v0
    s_mul_i32 s13, s3, 1280
    v_add_u32 v58, s13, v56
    s_xor_b32 s15, s3, 1
    s_mul_i32 s15, s15, 1280
    v_add_u32 v59, s15, v56
    v_lshlrev_b32 v1, 2, v0
    v_add_u32 v60, s13, v1
    v_add_u32 v61, s15, v1
    s_lshl_b32 s13, s7, 2
    v_mov_b32 v62, s13
    s_mov_b32 s10, {hex(LOG2E)}
    s_mov_b32 s11, {hex(LOG2E)}
    s_mov_b32 s12, {hex(EPS)}
    s_mov_b32 s14, 0xffff0000
    s_mov_b32 s15, 0xffff0000
    s_cmp_eq_u32 s8, 0
    s_cselect_b64 s[80:81], 0, -1
    s_cselect_b32 s82, -1, 0
    s_lshl_b32 s83, s3, 10
    """)
    for i in range(4): A(f"v_mov_b32 v{232+i}, 0x3f803f80")
    A("s_waitcnt lgkmcnt(0)")
    srd(WS, P_WS, WS_SIZE)
    SET = (16, 32)
    def reads(ks, st):
        b = SET[st]
        L = [f"ds_read_b128 v[{b}:{b+3}], v{4+ks}"]
        L += [f"ds_read_b64_tr_b16 v[{b+8+2*t}:{b+9+2*t}], v13 offset:{ks*4096+t*512}" for t in range(2)]
        L += [f"ds_read_b128 v[{b+4}:{b+7}], v{4+ks} offset:4096"]
        L += [f"ds_read_b64_tr_b16 v[{b+12+2*t}:{b+13+2*t}], v13 offset:{ks*4096+1024+t*512}" for t in range(2)]
        return L
    def mf(st, nm, mb):
        b = SET[st]; p = "kv".index(nm); d = ACC[nm][mb]
        return f"v_mfma_f32_32x32x16_bf16 v[{d}:{d+15}], v[{b+4*mb}:{b+4*mb+3}], v[{b+8+4*p}:{b+11+4*p}], v[{d}:{d+15}]"
    A("s_mov_b32 s4, 0")
    stamp()
    A("s_barrier")
    stamp()
    for r in reads(0, 0): A(r)
    A("K1_G_LOOP:")
    for ks in range(4):
        st = ks & 1
        M = [mf(st, "k", 0), mf(st, "k", 1), mf(st, "v", 0), mf(st, "v", 1)]
        A("s_waitcnt lgkmcnt(0)")
        if ks == 1: A("s_barrier")
        if ks == 3: A("s_barrier\ns_cbranch_scc0 K1_G_TAIL")
        R = reads((ks+1) & 3, st ^ 1)
        A(M[0]); [A(r) for r in R[0:3]]
        A(M[1]); [A(r) for r in R[3:6]]
        A(M[2])
        if ks == 2:
            for i in range(4): A(f"v_add_u32 v{4+i}, 16384, v{4+i}")
            A("v_xor_b32 v13, 16384, v13")
            A("s_add_u32 s4, s4, 1\ns_cmp_lt_u32 s4, 8")
        A(M[3])
    A("s_branch K1_G_LOOP")
    A("K1_G_TAIL:")
    for m in M: A(m)
    if opt("kprio", 0): A("s_setprio 2")
    stamp()
    def ldq(pos):
        for h in range(2):
            A(f"s_add_u32 m0, s83, {WSL+(pos&3)*8192+h*4096}")
            A(f"s_mov_b32 s63, {pos*64*3072+h*32*3072}")
            A(f"buffer_load_dwordx4 v11, s[{W}:{W+3}], s63 offen lds")
    TMP = 208; PK = (16, 24); KVA = 96; ZA = 112
    PKM = opt("pkm", 0) == 1
    V = phi_ops(ACC["k"][0], PK[0], TMP, PKM) + phi_ops(ACC["k"][1], PK[1], TMP, PKM)
    V += [f"v_cvt_pk_bf16_f32 v{ACC['v'][mb]+i}, v{ACC['v'][mb]+2*i}, v{ACC['v'][mb]+2*i+1}" for mb in range(2) for i in range(8)]
    KM = []
    for z in range(2):
        for mb in range(2):
            for fr in range(2):
                first = (mb == 0 and fr == 0)
                d = ZA if z else KVA
                pk = f"v[{PK[mb]+4*fr}:{PK[mb]+4*fr+3}]"
                vv = "v[232:235]" if z else f"v[{ACC['v'][mb]+4*fr}:{ACC['v'][mb]+4*fr+3}]"
                KM.append(f"v_mfma_f32_32x32x16_bf16 v[{d}:{d+15}], {vv}, {pk}, {'0' if first else f'v[{d}:{d+15}]'}")
    SEL = [f"v_cndmask_b32_e64 v{KVA+j}, v{KVA+j}, v{KVA+8+j}, s[14:15]" for j in range(8)]
    SEL += [f"v_cndmask_b32_e64 v{40+j}, v{KVA+4+j}, v{KVA+j}, s[80:81]" for j in range(4)]
    SEL += ["ds_write_b128 v58, v[40:43]"]
    SEL += [f"v_cndmask_b32_e64 v{36+j}, v{KVA+j}, v{KVA+4+j}, s[80:81]" for j in range(4)]
    SEL += [f"ds_write_b32 v60, v{ZA} offset:1024"]
    tot = sum(cost(x) for x in V)
    nseg = opt("nseg", 5)
    def drain(bud):
        c = 0
        while V and c < bud:
            x = V.pop(0); A(x); c += cost(x)
    for seg in range(7):
        if seg == 1:
            A(f"s_lshl_b32 s13, s7, 2\ns_load_dword s60, s[{P_DBG}:{P_DBG+1}], s13")
        if 0 < seg < nseg:
            drain(tot // (nseg-1) + 4 if seg < nseg-1 else 100000)
        if seg == nseg - 1:
            for m in KM[:4]: A(m)
        if seg == nseg:
            for m in KM[4:]: A(m)
            for x in SEL: A(x)
            A("s_waitcnt lgkmcnt(0)")
        if seg == nseg + 1:
            A("ds_read_b128 v[40:43], v59\nds_read_b32 v44, v61 offset:1024")
            break
        A("s_barrier")
    assert nseg <= 5
    stamp()
    A(f"""
    s_cmp_lg_u32 s60, 0
    s_cbranch_scc1 K1_POLL_DONE
    s_mov_b32 s13, 0
K1_POLL:
    global_load_dword v63, v62, s[{P_DBG}:{P_DBG+1}] sc1
    s_waitcnt vmcnt(0)
    v_readfirstlane_b32 s60, v63
    s_cmp_lg_u32 s60, 0
    s_cbranch_scc1 K1_POLL_DONE
    s_add_u32 s13, s13, 1
    s_cmp_gt_u32 s13, 0x40000
    s_cbranch_scc1 K1_POLL_DONE
    s_sleep 8
    s_branch K1_POLL
K1_POLL_DONE:
    """)
    A("s_waitcnt lgkmcnt(0)")
    for j in range(4): A(f"v_add_f32 v{36+j}, v{36+j}, v{40+j}")
    A(f"v_add_f32 v44, v44, v{ZA}")
    for j in range(4): A(f"buffer_atomic_add_f32 v{36+j}, v15, s[{WS}:{WS+3}], 0 offen offset:{j*64}")
    A(f"""
    s_cmp_lg_u32 s8, 0
    s_cbranch_scc1 K1_NOZ
    s_mov_b32 exec_hi, 0
    buffer_atomic_add_f32 v44, v14, s[{WS}:{WS+3}], 0 offen offset:1024
K1_NOZ:
    """)
    for _ in range(7 - (nseg+1)): A("s_barrier")
    stamp()
    if STAMP: A("s_waitcnt vmcnt(0)")
    stamp()
    stamp_flush(0, WS)

TROW = 528
L_TA = 0
L_TB = 22*TROW
L_U = 54*TROW
L_KR0 = L_U + 4608
L_KR1 = L_KR0 + 1152 + 64
L_T = L_KR1 + 1152 + 64
TSEQ = 192
TCOPY = 6*TSEQ + 64
CH = L_T + 2*TCOPY
CH = (CH + 255)//256*256
assert 4*CH <= 163840, CH
AROWS = list(range(9)) + [256,258,260,262,264] + [516,520,772,776] + [1032,1288,1544,1800]
HROWS = ([0,1,2,3,4,5,6,7,8,516,520,772,776,0,0,0], [256,256,258,260,260,260,262,264,264,1032,1288,1544,1800,0,0,0])
BOX = [(3,3,-16),(5,6,-16),(3,11,-16),(5,14,-24),(7,5,-16),(9,12,-24)]

def ssm_tables():
    T = []
    for lane in range(64):
        R = lane & 31; hf = lane >> 5
        g = R >> 3; h = (R >> 2) & 1; i = R & 3
        arow = AROWS.index(HROWS[h][4*g+i])
        ta = L_TA + arow*TROW + hf*16
        b = lane & 15; q = lane >> 4
        p0 = 535 - 32*16 - b + 8*q
        kr = (L_KR1 + 2*(p0+1)) if (p0 & 1) else (L_KR0 + 2*p0)
        p0 = 15 - b + 4*q
        tf = (L_T + TCOPY + 2*(p0+1)) if (p0 & 1) else (L_T + 2*p0)
        fr = L_U + 512 - 32 - 64*7 + 32*b + 16*q
        T += [ta, kr, tf, fr]
    for lane in range(64):
        j = lane & 31; h = lane >> 5
        for kap in range(4):
            if h == 0:
                seq = 2*(j & 1) + (kap & 1); kp = 32 + 16*(kap >> 1) + (j >> 1); Q0 = 79
            else:
                seq = 4 + (j & 1); kp = 64 + 16*kap + (j >> 1); Q0 = 127
            T.append(L_T + seq*TSEQ + 2*(Q0 - kp))
    for lane in range(64):
        b = lane & 15; q = lane >> 4
        h = [0xffff if (16 + b - (8*q+i)) in (3, 4) else 0 for i in range(8)]
        T += [h[2*i] | (h[2*i+1] << 16) for i in range(4)]
    for (ln, o, off) in BOX:
        for lane in range(64):
            b = lane & 15; q = lane >> 4
            h = [0x3f80 if (b - o - ln + 1 <= off + 8*q + i <= b - o) else 0 for i in range(8)]
            T += [h[2*i] | (h[2*i+1] << 16) for i in range(4)]
    return T

def exp_setup(Es):
    for (E, r, sgn, t) in Es:
        for m in range(2):
            A(f"v_mul_f32 v{t+m}, {hex(f2u(r*1.4426950408889634))}, v{20+m}")
            A(f"v_mul_f32 v{t+2+m}, {hex(f2u(sgn*r*0.15915494309189535))}, v{22+m}")
    for (E, r, sgn, t) in Es:
        for m in range(2):
            A(f"v_exp_f32 v{t+m}, v{t+m}")
            A(f"v_fract_f32 v{t+2+m}, v{t+2+m}")
    for (E, r, sgn, t) in Es:
        for m in range(2):
            A(f"v_cos_f32 v{E+2*m}, v{t+2+m}")
            A(f"v_sin_f32 v{E+2*m+1}, v{t+2+m}")
    for (E, r, sgn, t) in Es:
        for m in range(2):
            A(f"v_mul_f32 v{E+2*m}, v{t+m}, v{E+2*m}")
            A(f"v_mul_f32 v{E+2*m+1}, v{t+m}, v{E+2*m+1}")

def dt_setup():
    A(f"""
    v_mul_f32 v10, {hex(LOG2E)}, v10
    v_exp_f32 v10, v10
    v_cvt_pk_bf16_f32 v10, v10, v10
    v_and_b32 v10, 0xffff0000, v10   ; dt
    """)

def cv2(src, tmp): return [f"v_cvt_pk_bf16_f32 v{tmp}, v{src}, v{src+1}", f"v_cvt_pk_bf16_f32 v{tmp+1}, v{src+2}, v{src+3}"]
def cm2(d, x, y):
    c0 = cmul(d, x, y); c1 = cmul(d+2, x+2, y+2)
    return [c0[0], c1[0], c0[1], c1[1]]

def ssm_helper():
    stamp_n[0] = 2
    X, WS = 48, 56
    if opt("fine", 0): stamp()
    A(f"""
    s_setprio 2
    s_and_b32 s6, s4, 3          ; mg
    s_lshr_b32 s7, s4, 2         ; ng
    s_lshl_b32 s10, s6, 9
    s_lshl_b32 s11, s5, 4
    s_add_u32 s10, s10, s11
    s_lshl_b32 s11, s7, 8
    s_add_u32 s14, s10, s11
    s_lshl_b32 s15, s9, 2
    s_add_u32 s14, s14, s15
    s_xor_b32 s11, s11, 256
    s_add_u32 s10, s10, s11
    v_add_u32 v6, s10, v0
    v_lshlrev_b32 v6, 10, v6
    v_subrev_u32 v7, 16, v0              ; 0..47
    v_mul_u32_u24 v8, 43, v7
    v_bfe_u32 v8, v8, 9, 3               ; /12
    v_mul_u32_u24 v9, 12, v8
    v_sub_u32 v9, v7, v9                 ; %12
    s_lshl_b32 s10, s5, 2
    v_add_u32 v8, s10, v8
    v_mul_u32_u24 v8, 3072, v8
    v_bfe_u32 v11, v9, 2, 2
    v_lshl_add_u32 v8, v11, 10, v8
    v_and_b32 v11, 3, v9
    v_lshl_add_u32 v8, v11, 7, v8
    s_lshl_b32 s10, s7, 9
    v_add_u32 v8, s10, v8
    s_mov_b64 s[10:11], 0xffff
    v_cndmask_b32_e64 v6, v8, v6, s[10:11]
    v_mov_b32 v7, {64*3072}
    v_mov_b32 v8, 128
    v_cndmask_b32_e64 v7, v7, v8, s[10:11]
    v_mov_b32 v8, s{P_W}
    v_mov_b32 v9, s{P_X}
    v_cndmask_b32_e64 v8, v8, v9, s[10:11]
    v_mov_b32 v9, s{P_W+1}
    v_mov_b32 v11, s{P_X+1}
    v_cndmask_b32_e64 v9, v9, v11, s[10:11]    ; base
    s_lshr_b32 s60, s9, 1
    s_add_u32 s60, s60, 2
    v_mad_u32_u24 v14, v7, s60, v6
    v_add_co_u32 v14, vcc, v8, v14
    v_addc_co_u32 v15, vcc, 0, v9, vcc
    s_bitcmp1_b32 s9, 0
    s_cselect_b32 exec_lo, 0, -1
    s_cselect_b32 exec_hi, -1, 0
    {"v_mov_b64 v[106:107], v[14:15]" if opt("adelay", 0) else "global_load_dword v44, v[14:15], off"}
    s_mov_b64 s[90:91], exec
    s_mov_b64 exec, -1
    s_add_u32 s60, s9, 4
    v_mad_u32_u24 v14, v7, s60, v6
    v_add_co_u32 v14, vcc, v8, v14
    v_addc_co_u32 v15, vcc, 0, v9, vcc
    s_lshr_b32 s60, s9, 1
    s_lshl_b32 s60, s60, 6
    s_and_b32 s61, s9, 1
    s_lshl_b32 s61, s61, 1
    s_add_u32 s60, s60, s61
    s_lshl_b32 s61, s5, 2
    s_add_u32 s60, s60, s61
    v_bfe_u32 v104, v0, 2, 1
    v_add_u32 v104, s60, v104
    v_mul_u32_u24 v104, 3072, v104
    v_and_b32 v105, 3, v0
    v_lshl_add_u32 v104, v105, 7, v104
    s_lshl_b32 s60, s7, 9
    s_add_u32 s60, s60, s{P_W}
    s_addc_u32 s61, s{P_W+1}, 0
    v_mov_b32 v105, s61
    v_add_co_u32 v104, vcc, s60, v104
    v_addc_co_u32 v105, vcc, 0, v105, vcc
    s_lshl_b32 s15, s14, 10
    v_lshlrev_b32 v12, 4, v0
    v_add_u32 v13, s15, v12
    s_lshl_b32 s15, s9, 6
    v_add_u32 v1, s15, v0        ; t = 0..255
    s_lshl_b32 s15, s4, 7
    s_lshl_b32 s60, s5, 3
    s_add_u32 s15, s15, s60
    v_lshlrev_b32 v2, 10, v1
    v_add_u32 v2, s15, v2
    s_lshl_b32 s60, s5, 7
    s_lshl_b32 s61, s9, 5
    s_add_u32 s60, s60, s61
    v_and_b32 v11, 31, v0
    v_add_u32 v11, s60, v11
    v_lshlrev_b32 v11, 10, v11
    v_add_u32 v11, s15, v11
    s_mul_i32 s8, s9, {CH}
    v_lshlrev_b32 v3, 3, v0
    v_add_u32 v3, s8, v3
    v_add_u32 v3, {L_TB}, v3
    """)
    if opt("fine", 0): stamp()
    srd(X, P_X, 0x200000)
    if opt("fine", 0):
        A("s_waitcnt vmcnt(4)"); stamp()
    AD = opt("adelay", 0)
    if AD == 2:
        A(f"s_sleep {opt('asleep', 12)}\ns_mov_b64 exec, s[90:91]\nglobal_load_dword v44, v[106:107], off\ns_mov_b64 exec, -1")
    A(f"s_waitcnt vmcnt({2 if AD == 1 else 3})")
    dt_setup()
    A(f"s_waitcnt vmcnt({0 if AD == 1 else 1})")
    if AD == 1:
        A("s_mov_b64 exec, s[90:91]\nglobal_load_dword v44, v[106:107], off\ns_mov_b64 exec, -1")
    stamp()
    for n in range(2):
        A(f"v_lshlrev_b32 v{20+2*n}, 16, v{4+n}")
        A(f"v_and_b32 v{21+2*n}, 0xffff0000, v{4+n}")
    for r in range(20, 24): A(f"v_mul_f32 v{r}, v10, v{r}")
    E8, E16 = 72, 76
    C = (80, 84, 88, 92)
    exp_setup(((E8, 8, -1.0, 24), (E16, 16, -1.0, 28)))
    srd(WS, P_WS, WS_SIZE)
    for r in range(4): A(f"v_mov_b32 v{40+r}, 0")
    A(f"""
    s_lshl_b32 s61, s5, 2
    s_add_u32 s61, s61, s9       ; 4js + w
    s_cmp_lg_u32 s61, 3
    s_cbranch_scc1 K1_H_NOZ
    s_mul_i32 s13, s4, {4*HS}
    s_add_u32 s13, s13, {hex(KV_OFF)}
    """)
    for i in range(4*HS//1024):
        if i and i % 4 == 0: A("s_add_u32 s13, s13, 4096")
        A(f"buffer_store_dwordx4 v[40:43], v12, s[{WS}:{WS+3}], s13 offen offset:{(i%4)*1024} sc0 sc1")
    A("K1_H_NOZ:")
    for r in range(4):
        A(f"buffer_load_dwordx4 v[{48+4*r}:{51+4*r}], v13, s[{X}:{X+3}], 0 offen offset:{r*1024}")
    A(f"global_load_dwordx4 v[64:67], v12, s[{P_GW}:{P_GW+1}]")
    A("""
    v_mov_b32 v80, 1.0
    v_mov_b32 v81, 0
    v_mov_b32 v82, 1.0
    v_mov_b32 v83, 0
    v_mov_b64 v[88:89], v[72:73]
    v_mov_b64 v[90:91], v[74:75]
    s_mov_b32 s60, 8
K1_H_BL:
    """)
    for half in range(2):
        e, en = C[half], C[half ^ 1]
        o, on = C[2 + half], C[2 + (half ^ 1)]
        me = cm2(en, e, E16); mo = cm2(on, o, E16)
        t = 96 + 4*half
        ce = cv2(e, t); co = cv2(o, t+2)
        for x in (me[0], me[1], mo[0], mo[1], ce[0], ce[1], me[2], me[3], co[0], co[1], mo[2], mo[3]): A(x)
        A(f"ds_write2_b64 v3, v[{t}:{t+1}], v[{t+2}:{t+3}] offset0:{132*half} offset1:{132*half+66}")
    A(f"""
    v_add_u32 v3, {4*TROW}, v3
    s_cmp_lg_u32 s60, {opt("bpos", 5)}
    s_cbranch_scc1 K1_H_NU
    global_load_dword v46, v[14:15], off
K1_H_NU:
    s_cmp_lg_u32 s60, {opt("upos", 3)}
    s_cbranch_scc1 K1_H_NU2
    buffer_load_dword v45, v11, s[{X}:{X+3}], 0 offen
K1_H_NU2:
    s_sub_u32 s60, s60, 1
    s_cmp_lg_u32 s60, 0
    s_cbranch_scc1 K1_H_BL
    s_waitcnt lgkmcnt(0)
    """)
    stamp()
    A("s_barrier")
    A("global_load_dword v47, v[104:105], off")
    A("s_setprio 0")
    A("s_waitcnt vmcnt(3)")
    A(f"""
    s_cmp_lg_u32 s61, 3
    s_cbranch_scc1 K1_H_NOF
    s_lshl_b32 s13, s4, 2
    v_mov_b32 v6, s13
    v_mov_b32 v7, 1
    s_mov_b64 exec, 1
    global_store_dword v6, v7, s[{P_DBG}:{P_DBG+1}] sc0 sc1
    s_mov_b64 exec, -1
K1_H_NOF:
    """)
    for i in range(8):
        A(f"s_mov_b32 s13, {i<<18}")
        A(f"buffer_load_dwordx2 v[{16+2*i}:{17+2*i}], v2, s[{X}:{X+3}], s13 offen")
        if i == 0:
            for r in range(4): A(f"v_mov_b32 v{68+r}, 0")
            for k in range(4):
                for r in range(4):
                    A(f"v_dot2c_f32_bf16 v{68+r}, v{48+4*r+k}, v{64+k}")
        if i == 1:
            for m in ("row_shr:1","row_shr:2","row_shr:4","row_shr:8"):
                for r in range(4):
                    A(f"v_add_f32_dpp v{68+r}, v{68+r}, v{68+r} {m} row_mask:0xf bank_mask:0xf bound_ctrl:0")
        if i == 2:
            for m in ("row_bcast:15 row_mask:0xa","row_bcast:31 row_mask:0xc"):
                for r in range(4):
                    A(f"v_add_f32_dpp v{68+r}, v{68+r}, v{68+r} {m} bank_mask:0xf")
            for r in range(4): A(f"v_mul_f32 v{68+r}, {hex(f2u(-1.4426950408889634))}, v{68+r}")
            for r in range(4): A(f"v_exp_f32 v{68+r}, v{68+r}")
            for r in range(4): A(f"v_add_f32 v{68+r}, 1.0, v{68+r}")
            for r in range(4): A(f"v_rcp_f32 v{68+r}, v{68+r}")
            A(f"""
            v_lshlrev_b32 v3, 1, v1
            v_add_u32 v3, {L_U+512}, v3
            v_add_u32 v4, {2*CH}, v3
            s_lshl_b32 s13, s61, 13
            v_lshlrev_b32 v5, 7, v0
            v_add_u32 v5, s13, v5
            s_lshl_b32 s10, s14, 2
            s_add_u32 s10, s10, {hex(G_OFF)}
            v_mov_b32 v10, s10
            """)
        LA = 3
        for b in ([i-LA] if LA <= i < 7 else (range(7-LA, 8) if i == 7 else [])):
            if i == 7 and b == 7-LA:
                A(f"global_load_dword v46, v5, s[{P_WO}:{P_WO+1}]")
                A(f"""
                s_mov_b32 exec_lo, 0
                s_mov_b32 exec_hi, 0x80000000
                buffer_store_dwordx4 v[68:71], v10, s[{WS}:{WS+3}], 0 offen
                s_mov_b64 exec, -1
                """)
            A(f"s_waitcnt vmcnt({i-b + (2 if i == 7 else 0)})")
            A(f"ds_write_b16 v3, v{16+2*b} offset:{512*b}")
            A(f"ds_write_b16_d16_hi v3, v{16+2*b} offset:{CH+512*b}")
            A(f"ds_write_b16 v4, v{17+2*b} offset:{512*b}")
            A(f"ds_write_b16_d16_hi v4, v{17+2*b} offset:{CH+512*b}")
            A("s_waitcnt lgkmcnt(0)")
            if not opt("fine", 0) or b < 4: stamp()
            A("s_barrier")
    stamp_flush(0, WS)
    A("s_endpgm")

def cmul(d, x, y):
    return [f"v_pk_mul_f32 v[{d}:{d+1}], v[{x}:{x+1}], v[{y}:{y+1}] op_sel:[0,0] op_sel_hi:[1,0]",
            f"v_pk_fma_f32 v[{d}:{d+1}], v[{x}:{x+1}], v[{y}:{y+1}], v[{d}:{d+1}] op_sel:[1,1,0] op_sel_hi:[0,1,1] neg_lo:[1,0,0]"]

def ssm_compute():
    stamp_n[0] = 2
    WS = 56
    A("""
    v_lshlrev_b32 v2, 4, v0
    s_add_u32 s60, s62, K1_TABLE-K1_PC0
    s_addc_u32 s61, s63, 0
    """)
    MISC, TW, CORR, BOXR = 244, 240, 236, 212
    dst = [MISC, TW, CORR] + [BOXR+4*n for n in range(6)]
    def table_loads(lo, hi):
        for n in range(lo, hi):
            if n in (4, 8): A("v_add_u32 v2, 4096, v2")
            A(f"global_load_dwordx4 v[{dst[n]}:{dst[n]+3}], v2, s[60:61] offset:{(n%4)*1024}")
    table_loads(0, 3)
    srd(WS, P_WS, WS_SIZE)
    A(f"""
    s_mul_i32 s8, s3, {CH}
    v_mov_b32 v16, 0
    v_mov_b32 v17, 0
    v_mov_b32 v18, 0
    v_mov_b32 v19, 0
    v_lshlrev_b32 v3, 4, v0
    v_add_u32 v3, s8, v3
    """)
    zl = CH - L_KR0
    for o in range(0, zl, 1024):
        A(f"ds_write_b128 v3, v[16:19] offset:{L_KR0+min(o, zl-1024)}")
    A(f"""
    v_lshlrev_b32 v3, 3, v0
    v_add_u32 v3, s8, v3
    ds_write_b64 v3, v[16:17] offset:{L_U}
    s_waitcnt vmcnt(10)
    """)
    dt_setup()
    A("s_waitcnt vmcnt(8)")
    for n in range(2):
        A(f"v_lshlrev_b32 v{20+2*n}, 16, v{4+n}")
        A(f"v_and_b32 v{21+2*n}, 0xffff0000, v{4+n}")
    for r in range(20, 24): A(f"v_mul_f32 v{r}, v10, v{r}")
    exp_setup(((136, 1, 1.0, 32), (144, 256, 1.0, 36)))
    A("s_waitcnt vmcnt(4)")
    stamp()
    for n in range(2, 6):
        A(f"v_lshlrev_b32 v{20+2*n}, 16, v{4+n}")
        A(f"v_and_b32 v{21+2*n}, 0xffff0000, v{4+n}")
    for r in range(24, 28): A(f"v_mul_f32 v{r}, v10, v{r}")
    AV = {}
    nxt = [48]
    def alloc():
        r = nxt[0]; nxt[0] += 4; return r
    for r in AROWS: AV[r] = alloc()
    E1, E2, E256 = alloc(), alloc(), alloc()
    for m in range(2):
        d = AV[0] + 2*m
        A(f"v_mul_f32 v{d}, v{28+m}, v{24+m}")
        A(f"v_mul_f32 v{d+1}, v{28+m}, v{26+m}")
        A(f"v_fma_f32 v{d}, -v{30+m}, v{26+m}, v{d}")
        A(f"v_fma_f32 v{d+1}, v{30+m}, v{24+m}, v{d+1}")
    assert E1 == 136 and E256 == 144
    TMPW = 168
    steps = [(0, None, None)] + [(r, r-1, E1) for r in range(1, 9)] + [(r, r-256, E256) for r in AROWS[9:]]
    pend = []
    for n in range(0, 22, 2):
        L = []
        for (r, src, E) in steps[n:n+2]:
            if src is not None: L.append(cm2(AV[r], AV[src], E))
        flat = [x for l in L for x in l]
        k = 0
        for x in flat:
            A(x)
            if pend and k % 2 == 1: A(pend.pop(0))
            k += 1
        for x in pend: A(x)
        t = TMPW + 4*((n >> 1) & 1)
        pend = cv2(AV[steps[n][0]], t) + cv2(AV[steps[n+1][0]], t+2) + [f"ds_write2_b64 v3, v[{t}:{t+1}], v[{t+2}:{t+3}] offset0:{66*(n%4)} offset1:{66*(n%4+1)}"]
        if n % 4 == 2: pend.append(f"v_add_u32 v3, {4*TROW}, v3")
    for x in pend: A(x)
    stamp()
    table_loads(3, 9)
    A("s_waitcnt vmcnt(6)")
    for r in list(range(MISC, MISC+4)) + list(range(TW, TW+4)): A(f"v_add_u32 v{r}, s8, v{r}")
    A(f"""
    v_and_b32 v4, 31, v0
    v_mul_u32_u24 v4, {TROW}, v4
    v_lshrrev_b32 v5, 5, v0
    v_lshl_add_u32 v4, v5, 4, v4
    v_add_u32 v4, s8, v4
    s_waitcnt lgkmcnt(0)
    s_barrier
    """)
    KA = 16
    FR = 40
    def kmf(t): return f"v_mfma_f32_32x32x16_bf16 v[{KA}:{KA+15}], v[{FR+8*t}:{FR+8*t+3}], v[{FR+8*t+4}:{FR+8*t+7}], {'0' if t == 0 else f'v[{KA}:{KA+15}]'}"
    for s_ in range(16):
        A(f"ds_read_b128 v[{FR+8*s_}:{FR+8*s_+3}], v{MISC} offset:{32*s_}")
        A(f"ds_read_b128 v[{FR+8*s_+4}:{FR+8*s_+7}], v4 offset:{L_TB+32*s_}")
        if s_ >= 4:
            A(f"s_waitcnt lgkmcnt(8)")
            A(kmf(s_-4))
    A(f"""
    s_mov_b64 s[14:15], 1
    v_cndmask_b32_e64 v5, 0, v252, s[14:15]
    v_lshlrev_b32 v6, 4, v0
    v_sub_u32 v6, {L_KR0+1088}, v6
    v_add_u32 v6, s8, v6
    v_mov_b32 v7, s8
    """)
    for t in range(12, 16):
        A(f"s_waitcnt lgkmcnt({2*(15-t)})")
        A(kmf(t))
    A(f"""
    s_lshl_b32 s9, s7, 12
    s_add_u32 s9, s9, {hex(BT_OFF)}
    v_and_b32 v1, 15, v0
    v_lshrrev_b32 v2, 4, v0
    v_lshlrev_b32 v1, 5, v1
    v_lshl_add_u32 v1, v2, 3, v1
    v_add_u32 v8, 512, v{MISC+1}
    v_add_u32 v9, 1024, v{MISC+1}
    v_add_u32 v2, 768, v{MISC+2}
    v_add_f32 v{KA}, v{KA}, v5
    """)
    for i in range(4): A(f"v_cvt_pk_bf16_f32 v{40+i}, v{KA+7-2*i}, v{KA+6-2*i}")
    A(f"ds_write_b128 v6, v[40:43]")
    for i in range(4): A(f"v_cvt_pk_bf16_f32 v{44+i}, v{KA+8-2*i}, v{KA+7-2*i}")
    A(f"ds_write_b128 v6, v[44:47] offset:{L_KR1-L_KR0}")
    A(f"v_cvt_pk_bf16_f32 v52, v{KA+8}, v{KA+8}")
    A(f"""
    s_mov_b64 exec, 1
    ds_write_b16_d16_hi v7, v43 offset:{L_KR1+2*552}
    s_mov_b32 exec_lo, 0
    s_mov_b32 exec_hi, 0x80000000
    ds_write_b32 v7, v52 offset:{L_KR0+2*38}
    ds_write_b16 v7, v52 offset:{L_KR0+2*37}
    ds_write_b32 v7, v52 offset:{L_KR1+2*38}
    s_mov_b64 exec, -1
    """)
    for k in range(4): A(f"v_cvt_pk_bf16_f32 v{48+k}, v{KA+9+k}, v{KA+9+k}")
    for k in range(4):
        A(f"ds_write_b16 v{TW+k}, v{48+k}")
        A(f"ds_write_b16 v{TW+k}, v{48+k} offset:{TCOPY+2}")
    A("v_readlane_b32 s15, v51, 31      ; (K1024,K1024)")
    for i in range(4): A(f"v_and_b32 v{CORR+i}, s15, v{CORR+i}")
    stamp()
    AFB = 56; TFB = 124; ACC = 164; FB = 12; GB = 44; TMP = 196; XB = 240
    def af(c): return AFB + 4*c
    cnt = 0
    for c in range(17):
        o = 16*(16-c)
        base, oo = (MISC+1, o) if o < 128 else ((8, o-128) if o < 256 else (9, o-256))
        A(f"ds_read2_b32 v[{af(c)}:{af(c)+1}], v{base} offset0:{oo} offset1:{oo+1}")
        A(f"ds_read2_b32 v[{af(c)+2}:{af(c)+3}], v{base} offset0:{oo+2} offset1:{oo+3}")
    def tf(pair, dl): return TFB + 4*((dl-2) + 3*pair if pair < 2 else 6 + dl - 4)
    TR = []
    for pair in range(3):
        dls = (2,3,4) if pair < 2 else (4,5,6,7)
        for dl in dls:
            r = tf(pair, dl)
            for hh in range(2):
                o = ((2*pair+hh)*TSEQ + 32*(dls[-1]-dl))//4
                base, oo = (MISC+2, o) if o < 192 else (2, o-192)
                TR.append(f"ds_read2_b32 v[{r+2*hh}:{r+2*hh+1}], v{base} offset0:{oo} offset1:{oo+1}")
    BT_ = [TMP, TMP+8, 48]
    XR = [240, 248, 8]
    FA = MISC+3
    started = set()
    def mm(t, a_, b_):
        c = f"v[{ACC+4*t}:{ACC+4*t+3}]" if t in started else "0"
        started.add(t)
        return f"v_mfma_f32_16x16x32_bf16 v[{ACC+4*t}:{ACC+4*t+3}], v[{a_}:{a_+3}], v[{b_}:{b_+3}], {c}"
    def far(tau):
        L = []
        for pair in range(3):
            for dl in ((2,3,4) if pair < 2 else (4,5,6,7)):
                if tau + dl < 8: L.append(mm(tau+dl, XR[pair], tf(pair, dl)))
        return L
    def store(t):
        return [f"v_cvt_pk_bf16_f32 v6, v{ACC+4*t}, v{ACC+4*t+1}", f"v_cvt_pk_bf16_f32 v7, v{ACC+4*t+2}, v{ACC+4*t+3}",
                f"buffer_store_dwordx2 v[6:7], v1, s[{WS}:{WS+3}], s9 offen offset:{512*t}"]
    def rdF(tau, rho): return f"ds_read_b128 v[{FB+4*rho}:{FB+4*rho+3}], v{FA} offset:{512*tau+448-64*rho}"
    def rdG(tau): return f"ds_read_b128 v[{GB}:{GB+3}], v{FA} offset:{512*tau+432}"
    npairs = lambda tau: 3 if tau < 4 else (2 if tau < 6 else 0)
    A("s_waitcnt vmcnt(0)")
    stamp()
    A("s_barrier")
    A(rdF(0, 0)); A(rdG(0))
    for rho in range(1, 8): A(rdF(0, rho))
    for tau in range(8):
        if tau < 7: A("s_barrier")
        if tau in (0, 6): stamp()
        npair = npairs(tau)
        full = tau <= 4
        A("s_waitcnt lgkmcnt(0)" if full else "s_waitcnt lgkmcnt(7)")
        for pair in range(npair):
            for hh in range(2):
                sq = 2*pair + hh
                src = GB if BOX[sq][2] == -24 else FB
                d = BT_[pair] + 4*hh
                A(f"v_mfma_f32_16x16x32_bf16 v[{d}:{d+3}], v[{src}:{src+3}], v[{BOXR+4*sq}:{BOXR+4*sq+3}], 0")
        if tau + 2 < 8: A(mm(tau+2, af(16), FB))
        if tau + 4 < 8: A(mm(tau+4, CORR, FB))
        CVT = [f"v_cvt_pk_bf16_f32 v{XR[pair]+i}, v{BT_[pair]+2*i}, v{BT_[pair]+2*i+1}" for pair in range(npair) for i in range(4)]
        ST = store(tau-1) if tau > 0 else []
        nnew = 0
        for rho in range(8):
            if rho > 0 and not full: A(f"s_waitcnt lgkmcnt({7-rho+nnew})")
            A(mm(tau, af(rho), FB+4*rho))
            if rho >= 1 and CVT: A(CVT.pop(0))
            if tau + 1 < 8: A(mm(tau+1, af(8+rho), FB+4*rho))
            if tau < 7:
                A(rdF(tau+1, rho)); nnew += 1
                if rho == 0 and npairs(tau+1): A(rdG(tau+1)); nnew += 1
                if tau == 0 and rho < 5:
                    for x in TR[4*rho:4*rho+4]: A(x)
            if rho >= 1 and CVT: A(CVT.pop(0))
            if rho == 3 and not npair:
                for x in ST: A(x)
                ST = []
        assert not CVT
        if tau == 0: A("s_waitcnt lgkmcnt(3)")
        F_ = far(tau) if npair else []
        for k, m in enumerate(F_):
            A(m)
            if ST: A(ST.pop(0))
        for x in ST: A(x)
    stamp()
    for x in store(7): A(x)
    if STAMP: A("s_waitcnt vmcnt(0)")
    stamp()
    stamp_flush(0, WS)
    A("s_endpgm")

K2_PQ = 65536
K2_KV = 131072
KVS = 576
K2_B = K2_KV + 32*KVS
K2_LDS = K2_B + 8192
def k2():
    A(".p2align 8\nk2_kernel:")
    common_prologue("K2_END")
    WO, WS, OUT = 48, 52, 56
    A("""
    s_and_b32 s6, s4, 3
    s_lshl_b32 s6, s6, 3
    s_lshr_b32 s7, s4, 2
    s_lshl_b32 s7, s7, 2
    s_add_u32 s6, s6, s7
    s_and_b32 s7, s5, 3
    s_add_u32 s6, s6, s7         ; rt (0..31)
    s_lshr_b32 s7, s5, 2         ; ct (0..7)
    s_and_b32 s8, s3, 1          ; sw
    s_bfe_u32 s9, s3, 0x10001    ; kw
    v_lshlrev_b32 v1, 4, v0
    s_cmp_lt_u32 s3, 4
    s_cbranch_scc1 K2_COMPUTE
    """)
    stamp_n[0] = 1
    A(f"""
    v_lshrrev_b32 v6, 3, v0
    s_lshl_b32 s12, s9, 8
    s_lshl_b32 s13, s8, 4
    s_add_u32 s12, s12, s13
    v_add_u32 v9, s12, v6
    v_lshlrev_b32 v9, 10, v9
    v_bfe_u32 v7, v0, 4, 1
    v_lshlrev_b32 v7, 2, v7
    v_and_b32 v8, 7, v0
    v_xor_b32 v7, v7, v8
    v_lshl_add_u32 v9, v7, 4, v9
    s_lshl_b32 s13, s7, 7
    v_add_u32 v9, s13, v9        ; vWOsrc
    s_lshl_b32 s12, s12, 7
    s_mov_b32 s50, 0x80000
    s_mov_b32 s51, 0x20000
    s_mov_b32 s54, {hex(WS_SIZE)}
    s_mov_b32 s55, 0x20000
    s_lshl_b32 s13, s8, 5
    s_lshl_b32 s14, s9, 4
    s_add_u32 s13, s13, s14      ; sw*32+16kw
    s_lshl_b32 s13, s13, 10
    s_lshl_b32 s10, s6, 16
    s_add_u32 s10, s10, s13
    v_add_u32 v11, s10, v1
    s_add_u32 s13, s13, {K2_PQ}
    s_add_u32 s14, s14, s8
    s_mul_i32 s10, s14, {HS}
    s_add_u32 s10, s10, {hex(KV_OFF)}
    v_add_u32 v2, s10, v1
    v_bfe_u32 v3, v0, 2, 3
    v_add_u32 v4, s7, v3
    v_and_b32 v4, 7, v4
    v_mul_u32_u24 v4, {2*HS}, v4
    v_and_b32 v5, 3, v0
    v_lshl_add_u32 v4, v5, 4, v4
    v_add_u32 v4, s10, v4        ; z source (+1024)
    """)
    for st in range(8):
        A(f"s_add_u32 s{64+16+st}, s7, {st}\ns_and_b32 s{64+16+st}, s{64+16+st}, 7")
    A(f"""
    s_waitcnt lgkmcnt(0)
    s_mov_b64 s[48:49], s[{P_WO}:{P_WO+1}]
    s_mov_b64 s[52:53], s[{P_WS}:{P_WS+1}]
    """)
    stamp()
    def wo(st):
        A(f"s_lshl_b32 s61, s{80+st}, 15")
        for i in range(2):
            A(f"s_add_u32 m0, s12, {st*4096+i*1024}\ns_add_u32 s60, s61, {i*8192}")
            A(f"buffer_load_dwordx4 v9, s[{WO}:{WO+3}], s60 offen lds")
    def kvpq(st):
        A(f"s_mul_i32 s60, s{80+st}, {2*HS}")
        A(f"buffer_load_dwordx4 v[{16+4*st}:{19+4*st}], v2, s[{WS}:{WS+3}], s60 offen")
        A(f"s_add_u32 m0, s13, {st*2048}\ns_lshl_b32 s60, s{80+st}, 11")
        for i in range(2):
            A(f"buffer_load_dwordx4 v11, s[{WS}:{WS+3}], s60 offen offset:{i*1024} lds")
    NW0 = opt("nw0", 2)
    for st in range(NW0): wo(st)
    A(f"buffer_load_dwordx4 v[48:51], v4, s[{WS}:{WS+3}], 0 offen offset:1024")
    groups = []
    def group(g):
        n = 0
        if g < 8: kvpq(g); n += 3
        if g >= 1 and g + NW0 - 1 < 8: wo(g + NW0 - 1); n += 2
        if g == 8:
            for i in range(2):
                A(f"s_add_u32 m0, s15, {i*1024}\ns_mov_b32 s60, {i*32768}")
                A(f"buffer_load_dwordx4 v10, s[{WS}:{WS+3}], s60 offen lds")
            n += 2
        groups.append(n)
    LA = opt("k2la", 2)
    for g in range(LA): group(g)
    A(f"""
    s_sub_u32 s15, s3, 4
    s_lshl_b32 s10, s7, 6
    s_lshl_b32 s11, s15, 4
    s_add_u32 s10, s10, s11
    v_add_u32 v10, s10, v6
    v_lshlrev_b32 v10, 12, v10
    v_lshl_add_u32 v10, v7, 4, v10
    s_lshl_b32 s10, s6, 7
    s_add_u32 s10, s10, {hex(BT_OFF)}
    v_add_u32 v10, s10, v10      ; b source
    s_lshl_b32 s15, s15, 11
    s_add_u32 s15, s15, {K2_B}
    s_mul_i32 s10, s14, {KVS}
    s_add_u32 s10, s10, {K2_KV}
    v_lshlrev_b32 v12, 3, v0
    v_add_u32 v12, s10, v12
    v_mul_u32_u24 v13, {2*KVS}, v3
    v_xor_b32 v5, 2, v5
    v_lshl_add_u32 v13, v5, 3, v13
    v_add_u32 v13, s10, v13
    """)
    for st in range(9):
        if st + LA <= 8: group(st + LA)
        A(f"s_waitcnt vmcnt({sum(groups[st+1:])})")
        if st == 0:
            A("v_cvt_pk_bf16_f32 v48, v48, v49\nv_cvt_pk_bf16_f32 v49, v50, v51\ns_mov_b32 exec_hi, 0\nds_write_b64 v13, v[48:49] offset:512\ns_mov_b32 exec_hi, -1")
        if st < 8:
            r = 16 + 4*st
            A(f"v_cvt_pk_bf16_f32 v{r}, v{r}, v{r+1}\nv_cvt_pk_bf16_f32 v{r+1}, v{r+2}, v{r+3}")
            A(f"ds_write_b64 v12, v[{r}:{r+1}] offset:{2*st*KVS}")
            A("s_waitcnt lgkmcnt(0)")
        if st in (0, 1, 3, 5, 7, 8): stamp()
        A("s_barrier")
    stamp_flush(1, WS)
    A("s_endpgm")
    A("K2_COMPUTE:")
    k2_compute(WO, WS, OUT)
    A("K2_END:\ns_endpgm")

def k2_compute(WO, WS, OUT):
    stamp_n[0] = 1
    A(f"""
    s_lshl_b32 s12, s6, 1
    s_add_u32 s12, s12, s8       ; rb
    s_lshl_b32 s13, s7, 6
    s_lshl_b32 s14, s9, 5
    s_add_u32 s13, s13, s14
    v_and_b32 v8, 31, v0
    s_lshl_b32 s15, s12, 5
    v_add_u32 v8, s15, v8        ; row
    v_lshrrev_b32 v9, 5, v0      ; hf
    v_lshlrev_b32 v11, 2, v8
    v_add_u32 v11, {hex(G_OFF)}, v11
    v_lshlrev_b32 v12, 10, v8
    v_lshl_add_u32 v12, v9, 4, v12
    s_lshl_b32 s13, s13, 1
    v_add_u32 v12, s13, v12
    v_and_b32 v10, 31, v0
    v_min_u32 v3, 16, v10
    v_lshrrev_b32 v4, 4, v3      ; is z
    v_xor_b32 v4, v4, v9
    v_lshlrev_b32 v3, 5, v3
    v_lshl_add_u32 v3, v4, 4, v3
    s_mul_i32 s11, s9, {16*KVS}
    s_add_u32 s11, s11, {K2_KV}
    v_add_u32 v3, s11, v3        ; vKVa
    v_bfe_u32 v4, v0, 2, 2
    v_lshl_add_u32 v4, v9, 2, v4
    v_lshlrev_b32 v4, 7, v4
    v_bfe_u32 v5, v0, 4, 1
    v_lshl_add_u32 v4, v5, 5, v4
    v_and_b32 v5, 3, v0
    v_lshl_add_u32 v4, v5, 3, v4
    v_bfe_u32 v5, v0, 3, 1
    v_lshl_add_u32 v4, v5, 6, v4
    s_lshl_b32 s11, s8, 6
    v_xor_b32 v10, s11, v4
    s_lshl_b32 s11, s9, 12
    s_add_u32 s11, s11, {K2_B}
    v_add_u32 v10, s11, v10
    s_lshl_b32 s11, s9, 15
    v_add_u32 v4, s11, v4
    s_lshl_b32 s11, s9, 6
    v_xor_b32 v4, s11, v4
    v_xor_b32 v5, 64, v4
    s_lshl_b32 s11, s8, 5
    s_lshl_b32 s14, s9, 4
    s_add_u32 s11, s11, s14
    s_lshl_b32 s11, s11, 10
    s_add_u32 s11, s11, {K2_PQ}
    v_add_u32 v6, s11, v1
    v_xor_b32 v7, {16*1024}, v6
    """)
    CE = 184
    for i in range(16): A(f"v_mov_b32 v{CE+i}, {hex(EPS) if i >= 8 else 0}")
    A("s_waitcnt lgkmcnt(0)")
    srd(WS, P_WS, WS_SIZE); srd(OUT, P_OUT, 0x200000)
    stamp()
    ACC = (112, 128)
    OD = (64, 80)
    KF = (16, 20, 24, 28); PF = (32, 36, 40, 44)
    WF = (160, 168, 176)
    OF = (48, 52)
    BB = 144
    def rd_kp(h): return [f"ds_read_b128 v[{KF[h%4]}:{KF[h%4]+3}], v3 offset:{h*KVS}", f"ds_read_b128 v[{PF[h%4]}:{PF[h%4]+3}], v6 offset:{h*1024}"]
    def rd_wo(h):
        b = WF[h % 3]
        return [f"ds_read_b64_tr_b16 v[{b+4*jt+2*t}:{b+4*jt+2*t+1}], v{4+jt} offset:{h*2048+t*1024}" for jt in (1, 0) for t in range(2)]
    def omf(h): return f"v_mfma_f32_32x32x16_bf16 v[{OD[h%2]}:{OD[h%2]+15}], v[{KF[h%4]}:{KF[h%4]+3}], v[{PF[h%4]}:{PF[h%4]+3}], v[{CE}:{CE+15}]"
    def norm(h):
        d = OD[h % 2]; o = OF[h & 1]
        L = [f"v_rcp_f32 v{d+8}, v{d+8}"]
        L += [f"v_mul_f32 v{d+i}, v{d+i}, v{d+8}" for i in range(8)]
        L += [f"v_cvt_pk_bf16_f32 v{o+i}, v{d+2*i}, v{d+2*i+1}" for i in range(4)]
        return L
    def proj(h, jt):
        b = WF[h % 3]; o = OF[h & 1]
        c = "0" if h == 0 else f"v[{ACC[jt]}:{ACC[jt]+15}]"
        return f"v_mfma_f32_32x32x16_bf16 v[{ACC[jt]}:{ACC[jt]+15}], v[{b+4*jt}:{b+4*jt+3}], v[{o}:{o+3}], {c}"
    A("s_barrier")
    stamp()
    for x in rd_kp(0) + rd_kp(1): A(x)
    A(f"buffer_load_dword v13, v11, s[{WS}:{WS+3}], 0 offen")
    out = [("kp", 0)]*2 + [("kp", 1)]*2
    def wait_for(tags):
        last = max([k for k, t in enumerate(out) if t in tags], default=-1)
        if last >= 0:
            A(f"s_waitcnt lgkmcnt({len(out)-1-last})")
            del out[:last+1]
    for i in range(18):
        wait_for({("kp", i), ("wo", i-2)})
        N = norm(i-1) if 0 <= i-1 < 16 else []
        if i < 16: A(omf(i))
        R = []
        if i % 2 == 1 and i+1 < 16:
            A("s_barrier")
            R += [(x, ("kp", i+1)) for x in rd_kp(i+1)] + [(x, ("kp", i+2)) for x in rd_kp(i+2)]
        if i == 16:
            A("s_barrier")
            R += [(f"ds_read_b64_tr_b16 v[{96+2*g}:{97+2*g}], v10 offset:{g*1024}", ("b", 0)) for g in range(4)]
        if i < 16: R += [(x, ("wo", i)) for x in rd_wo(i)]
        def emit(n):
            for x, t in R[:n]:
                A(x); out.append(t)
            del R[:n]
        emit(2)
        for x in N[:1]: A(x)
        emit(2)
        if 0 <= i-2: A(proj(i-2, 1))
        emit(2)
        for x in N[1:6]: A(x)
        if 0 <= i-2: A(proj(i-2, 0))
        emit(2)
        for x in N[6:]: A(x)
    stamp()
    A("s_waitcnt vmcnt(0) lgkmcnt(0)\nv_sub_f32 v14, 1.0, v13")
    for i in range(4):
        A(f"v_lshlrev_b32 v{BB+2*i}, 16, v{96+i}")
        A(f"v_and_b32 v{BB+2*i+1}, 0xffff0000, v{96+i}")
    for g in range(4): A(f"ds_write_b128 v6, v[{ACC[1]+4*g}:{ACC[1]+4*g+3}] offset:{g*1024}")
    for i in range(4, 8):
        A(f"v_lshlrev_b32 v{BB+2*i}, 16, v{96+i}")
        A(f"v_and_b32 v{BB+2*i+1}, 0xffff0000, v{96+i}")
    A("s_waitcnt lgkmcnt(0)\ns_barrier")
    for g in range(4): A(f"ds_read_b128 v[{16+4*g}:{19+4*g}], v7 offset:{g*1024}")
    A("v_mov_b32 v15, v14\nv_mov_b32 v56, v13\nv_mov_b32 v57, v13")
    for i in range(0, 16, 2): A(f"v_pk_mul_f32 v[{BB+i}:{BB+i+1}], v[14:15], v[{BB+i}:{BB+i+1}]")
    for i in range(0, 16, 2): A(f"v_pk_fma_f32 v[{BB+i}:{BB+i+1}], v[56:57], v[{ACC[0]+i}:{ACC[0]+i+1}], v[{BB+i}:{BB+i+1}]")
    for p in range(2):
        A(f"s_waitcnt lgkmcnt({2-2*p})")
        for i in range(8*p, 8*p+8, 2): A(f"v_pk_fma_f32 v[{BB+i}:{BB+i+1}], v[56:57], v[{16+i}:{17+i}], v[{BB+i}:{BB+i+1}]")
        for i in range(4*p, 4*p+4): A(f"v_cvt_pk_bf16_f32 v{32+i}, v{BB+2*i}, v{BB+2*i+1}")
        A(f"v_permlane32_swap_b32 v{32+4*p}, v{34+4*p}")
        A(f"v_permlane32_swap_b32 v{33+4*p}, v{35+4*p}")
        A(f"buffer_store_dwordx4 v[{32+4*p}:{35+4*p}], v12, s[{OUT}:{OUT+3}], 0 offen offset:{32*p}")
    stamp()
    if STAMP: A("s_waitcnt vmcnt(0)")
    stamp()
    stamp_flush(1, WS)

k1()
k2()
lines, errs = hazard_pass(A.lines)
for e in errs: print(e, file=sys.stderr)
hdr = open("gated_mix__linear_attn_block__ssm_conv_s4__prompt.s.ref").read().split("; Override launch")[0]
out = hdr
out += "; @launch kernel=k1_kernel grid=(256,1,1) block=(512,1,1) lds=163840\n"
out += f"; @launch kernel=k2_kernel grid=(256,1,1) block=(512,1,1) lds={K2_LDS}\n"
out += '.amdgcn_target "amdgcn-amd-amdhsa--gfx950"\n.text\n.globl k1_kernel\n.type k1_kernel,@function\n.globl k2_kernel\n.type k2_kernel,@function\n'
out += "\n".join(lines) + "\n"
T = ssm_tables()
out += ".p2align 8\n.type K1_TABLE,@object\nK1_TABLE:\n"
for i in range(0, len(T), 8):
    out += ".long " + ", ".join(hex(x) for x in T[i:i+8]) + "\n"
out += f".size K1_TABLE, {4*len(T)}\nCODE_END:\n"
out += '.section .rodata,"a"\n' + kernel_desc("k1_kernel", 256, 102, 256) + kernel_desc("k2_kernel", 256, 102, 256)
fn = [x for x in sys.argv[1:] if not x.startswith("--")][0]
open(fn, "w").write(out)
```

```python
import sys, struct
from asmlib import *

PQ_OFF = 0x0
BT_OFF = 0x200000
KV_OFF = 0x400000
HS = 2048
G_OFF = 0x410000
CT_OFF = 0x420000
KN = "gated_mix__linear_attn_block__ssm_conv_s4__prompt_kernel"
TS_OFF = 0x500000
WS_SIZE = 0x600000
STAMP = "--stamp" in sys.argv
def opt(name, default):
    for x in sys.argv:
        if x.startswith(f"--{name}="): return type(default)(x.split("=")[1])
    return default

LOG2E = 0x3fb8aa3b
EPS = 0x358637bd
def f2u(x): return struct.unpack("<I", struct.pack("<f", x))[0]

A = Asm()

def srd(base, ptr, size):
    A(f"s_mov_b32 s{base}, s{ptr}\ns_mov_b32 s{base+1}, s{ptr+1}\ns_mov_b32 s{base+2}, {hex(size)}\ns_mov_b32 s{base+3}, 0x20000")

stamp_n = [0]
def stamp():
    if not STAMP: return
    n = stamp_n[0]; stamp_n[0] += 1
    assert n < 13
    A(f"s_memtime s[{64+2*n}:{65+2*n}]")
def stamp_dyn(idx_s, base):
    if not STAMP: return
    A(f"s_memtime s[94:95]\ns_add_u32 s93, {idx_s}, {base}\ns_waitcnt lgkmcnt(0)\ns_mov_b32 m0, s93\nv_writelane_b32 v254, s94, m0")
def stamp_flush(kern, wsrd, skip=()):
    if not STAMP: return
    n = stamp_n[0]
    A("s_memrealtime s[98:99]")
    A("s_waitcnt lgkmcnt(0)")
    A(f"s_lshl_b32 s60, s2, 3\ns_add_u32 s60, s60, s3\ns_lshl_b32 s60, s60, 6\ns_add_u32 s60, s60, {hex(TS_OFF + kern*0x40000)}")
    A("s_mov_b64 exec, -1")
    for i in range(14):
        if i in skip: continue
        A(f"v_writelane_b32 v254, {f's{64+2*i}' if i < n else '0'}, {i}")
    A("s_getreg_b32 s61, hwreg(HW_REG_XCC_ID)\nv_writelane_b32 v254, s61, 13")
    A("v_writelane_b32 v254, s96, 14\nv_writelane_b32 v254, s98, 15")
    A(f"v_lshlrev_b32 v255, 2, v0\ns_mov_b64 exec, 0xffff")
    A(f"buffer_store_dword v254, v255, s[{wsrd}:{wsrd+3}], s60 offen")
    A("s_mov_b64 exec, -1")

P_X, P_W, P_WO, P_ARE, P_AIM, P_BRE, P_BIM, P_CRE, P_CIM, P_LDT, P_DSK, P_GW, P_OUT, P_DBG, P_WS = 16,18,20,24,26,28,30,32,34,36,38,40,42,44,46

def common_prologue(endlabel):
    stamp_n[0] = 0
    if STAMP: A("s_memrealtime s[96:97]")
    stamp()
    A(f"""
    s_cmp_ge_u32 s2, 256
    s_cbranch_scc1 {endlabel}
    s_load_dwordx16 s[16:31], s[0:1], 0
    s_load_dwordx16 s[32:47], s[0:1], 64
    v_lshrrev_b32 v1, 6, v0
    v_and_b32 v0, 63, v0
    v_readfirstlane_b32 s3, v1
    s_and_b32 s4, s2, 7          ; xcd
    s_lshr_b32 s5, s2, 3         ; j
    """)

def interleave(M, V, budget=24):
    V = list(V)
    for m in M:
        A(m)
        c = 0
        while V and c < budget:
            x = V.pop(0)
            A(x)
            c += 8 if x.split()[0].replace("_e64","") in TRANS else 4
    return V

SLOT = 40960
NSLOT = 3
XCH = NSLOT*SLOT
def k1():
    A(".p2align 8\n" + KN + ":")
    common_prologue("K2_END")
    A("""
    s_getpc_b64 s[62:63]
K1_PC0:
    s_lshl_b32 s6, s5, 3
    s_add_u32 s6, s6, s3
    s_lshl_b32 s6, s6, 7
    s_min_u32 s6, s6, CODE_END-K1_PC0-4
    v_mov_b32 v1, s6
    global_load_dword v253, v1, s[62:63]
    s_cmp_lt_u32 s5, 16
    s_cbranch_scc1 K1_G
    s_sub_u32 s5, s5, 16         ; js
    s_and_b32 s9, s3, 3          ; w
    s_lshl_b32 s6, s4, 6
    s_lshl_b32 s7, s5, 2
    s_add_u32 s6, s6, s7         ; ch0
    s_add_u32 s7, s6, s9         ; ch
    s_lshl_b32 s8, s7, 8
    v_lshlrev_b32 v1, 2, v0
    v_add_u32 v1, s8, v1
    s_lshl_b32 s10, s7, 1
    v_mov_b32 v2, s10
    v_mov_b32 v10, 0
    v_mov_b32 v252, 0
    s_waitcnt lgkmcnt(0)
    """)
    stamp()
    A(f"global_load_short_d16_hi v10, v2, s[{P_LDT}:{P_LDT+1}]")
    for n, p in enumerate((P_ARE, P_AIM)):
        A(f"global_load_dword v{4+n}, v1, s[{p}:{p+1}]")
    A("s_cmp_ge_u32 s3, 4\ns_cbranch_scc1 K1_HELPER")
    if opt("bcd", 0): A(f"s_sleep {opt('bcd', 0)}")
    for n, p in enumerate((P_BRE, P_BIM, P_CRE, P_CIM)):
        A(f"global_load_dword v{6+n}, v1, s[{p}:{p+1}]")
    A(f"global_load_short_d16_hi v252, v2, s[{P_DSK}:{P_DSK+1}]")
    A("s_branch K1_SSMC")
    A("""
K1_G:
    s_and_b32 s6, s4, 3
    s_lshl_b32 s6, s6, 2
    s_and_b32 s14, s5, 3         ; ml
    s_add_u32 s6, s6, s14        ; mi
    s_lshr_b32 s7, s4, 2
    s_lshl_b32 s7, s7, 2
    s_lshr_b32 s15, s5, 2        ; nl
    s_add_u32 s7, s7, s15        ; ni
    s_cmp_ge_u32 s3, 4
    s_cbranch_scc1 K1_LOADER
    """)
    NPF = opt("npf", 2)
    if NPF:
        A(f"""
        s_cmp_ge_u32 s3, {NPF}
        s_cbranch_scc1 K1_GEMM
        s_and_b32 s8, s4, 3
        s_lshl_b32 s8, s8, 9
        s_lshl_b32 s9, s5, 5
        s_add_u32 s8, s8, s9
        v_add_u32 v2, s8, v0
        v_lshlrev_b32 v2, 10, v2
        s_lshl_b32 s8, s3, 7
        v_add_u32 v2, s8, v2
        s_lshl_b32 s8, s3, 6
        s_lshl_b32 s9, s5, 2
        s_add_u32 s8, s8, s9
        v_bfe_u32 v3, v0, 3, 2
        v_add_u32 v3, s8, v3
        v_mul_u32_u24 v3, 3072, v3
        v_bfe_u32 v4, v0, 2, 1
        v_lshl_add_u32 v3, v4, 10, v3
        v_and_b32 v4, 3, v0
        v_lshl_add_u32 v3, v4, 7, v3
        s_lshr_b32 s8, s4, 2
        s_lshl_b32 s8, s8, 9
        s_add_u32 s8, s8, 1024
        v_add_u32 v3, s8, v3             ; w line
        s_mov_b32 exec_hi, 0
        s_waitcnt lgkmcnt(0)
        {f"s_sleep {opt('ldelay', 0)}" if opt('ldelay', 0) else ""}
        global_load_dword v252, v2, s[{P_X}:{P_X+1}]
        global_load_dword v251, v3, s[{P_W}:{P_W+1}]
        s_mov_b32 exec_hi, -1
        """)
    A("s_branch K1_GEMM\nK1_LOADER:")
    gemm_loader()
    A("K1_HELPER:")
    ssm_helper()
    A("K1_SSMC:")
    ssm_compute()
    A("K1_GEMM:")
    gemm_compute()
    k2()

WSL = 131072
def frag_addr_setup():
    A("""
    v_and_b32 v1, 31, v0
    v_lshrrev_b32 v2, 5, v0      ; hf
    v_bfe_u32 v3, v0, 1, 3       ; f
    v_xor_b32 v3, v3, v2         ; hf^f
    s_lshl_b32 s60, s8, 6
    v_add_u32 v1, s60, v1
    v_lshlrev_b32 v1, 7, v1      ; row*128
    """)
    for ks in range(4):
        A(f"v_xor_b32 v{4+ks}, {2*ks}, v3")
        A(f"v_lshl_add_u32 v{4+ks}, v{4+ks}, 4, v1")
    A(f"""
    v_bfe_u32 v1, v0, 2, 2
    v_lshlrev_b32 v8, 7, v1
    v_bfe_u32 v1, v0, 4, 1
    v_lshlrev_b32 v1, 5, v1
    v_and_b32 v3, 3, v0
    v_lshl_add_u32 v1, v3, 3, v1
    s_lshl_b32 s60, s9, 6
    v_add_u32 v1, s60, v1
    v_bfe_u32 v3, v0, 3, 1
    v_lshlrev_b32 v3, 6, v3
    v_xor_b32 v1, v1, v3
    v_add_u32 v8, v8, v1
    v_add_u32 v8, {WSL}, v8
    """)

def wsrc_setup(wreg, dst):
    A(f"""
    v_lshrrev_b32 v1, 3, v0
    v_and_b32 v3, 7, v0
    v_bfe_u32 v{dst}, v0, 4, 1
    v_lshlrev_b32 v{dst}, 2, v{dst}
    v_xor_b32 v3, v{dst}, v3
    s_lshl_b32 s60, {wreg}, 3
    v_add_u32 v{dst}, s60, v1
    v_mul_u32_u24 v{dst}, 3072, v{dst}
    v_lshl_add_u32 v{dst}, v3, 4, v{dst}
    s_lshl_b32 s60, s7, 7
    v_add_u32 v{dst}, s60, v{dst}
    """)

def init_check(tag, vt):
    A(f"""
    s_and_b64 s[84:85], s[84:85], s[86:87]
    s_and_b64 s[88:89], s[88:89], s[90:91]
    s_and_b64 s[84:85], s[84:85], s[88:89]
    s_and_b32 s84, s84, s85
    s_cbranch_scc1 INIT_OK_{tag}
    v_and_b32 v{vt}, 7, v0
    v_lshlrev_b32 v{vt}, 2, v{vt}
    s_mov_b32 s84, 0
INIT_POLL_{tag}:
    global_load_dword v{vt+1}, v{vt}, s[{P_DBG}:{P_DBG+1}] sc1
    s_waitcnt vmcnt(0)
    v_cmp_eq_u32 vcc, 0, v{vt+1}
    s_cbranch_vccz INIT_OK_{tag}
    s_add_u32 s84, s84, 1
    s_cmp_gt_u32 s84, 0x40000
    s_cbranch_scc1 INIT_OK_{tag}
    s_sleep 8
    s_branch INIT_POLL_{tag}
INIT_OK_{tag}:
    """)

def gemm_loader():
    stamp_n[0] = 1
    X, W, WS = 48, 52, 56
    A(f"""
    s_sub_u32 s13, s3, 4         ; w
    v_lshrrev_b32 v2, 3, v0      ; lane>>3
    v_and_b32 v3, 7, v0
    v_lshrrev_b32 v4, 4, v0      ; lane>>4
    s_and_b32 s10, s13, 1
    s_lshl_b32 s10, s10, 2
    v_or_b32 v5, s10, v4
    v_xor_b32 v5, v5, v3
    s_lshl_b32 s10, s6, 7
    s_lshl_b32 s11, s13, 3
    s_add_u32 s10, s10, s11
    v_add_u32 v10, s10, v2       ; row
    v_lshlrev_b32 v10, 10, v10
    v_lshl_add_u32 v10, v5, 4, v10 ; vXsrc
    """)
    wsrc_setup("s13", 11)
    A(f"""
    s_lshl_b32 s12, s13, 10      ; w*1024
    s_lshl_b32 s88, s13, 11
    s_add_u32 s88, s88, {WSL-1024}
    """)
    for n in range(4):
        A(f"s_add_u32 s60, s15, {n}\ns_and_b32 s60, s60, 3\ns_lshl_b32 s{80+n}, s60, 15\ns_lshl_b32 s60, s60, 12\ns_add_u32 s{84+n}, s60, s12")
    A(f"""
    s_add_u32 s15, s14, s15
    s_and_b32 s15, s15, {opt("G", 1)-1}        ; phase
    s_lshl_b32 s10, s15, 7
    s_mul_i32 s11, s15, {64*3072}
    s_mov_b32 s50, 0x200000
    s_mov_b32 s51, 0x20000
    s_mov_b32 s54, 0x180000
    s_mov_b32 s55, 0x20000
    s_waitcnt lgkmcnt(0)
    s_mov_b64 s[48:49], s[{P_X}:{P_X+1}]
    s_mov_b64 s[52:53], s[{P_W}:{P_W+1}]
    """)
    stamp()
    if opt("ldelay", 0): A(f"s_sleep {opt('ldelay', 0)}")
    def ldx(n, lds):
        A(f"s_add_u32 m0, s{84+n}, {lds}")
        A(f"s_add_u32 s63, s10, s{80+n}")
        A(f"buffer_load_dwordx4 v10, s[{X}:{X+3}], s63 offen lds")
    def ldw(lds, goff):
        A(f"s_add_u32 m0, s88, {lds}")
        A(f"s_add_u32 s63, s11, {goff}")
        for p in (1, 2):
            A(f"buffer_load_dwordx4 v11, s[{W}:{W+3}], s63 offen offset:{p*1024} lds")
    ldx(0, 0); ldx(1, 0); ldw(0, 0); ldx(2, 0); ldx(3, 0)
    A(f"s_xor_b32 s10, s10, 128")
    ldx(0, 16384); ldx(1, 16384); ldw(8192, 32*3072)
    A(f"s_xor_b32 s11, s11, {64*3072}")
    ldx(2, 16384); ldx(3, 16384); ldw(16384, 0)
    A("s_and_b32 s8, s13, 1\ns_lshr_b32 s9, s13, 1")
    frag_addr_setup()
    A(f"""
    v_lshl_add_u32 v8, v2, 10, v8
    s_lshl_b32 s14, s7, 2
    s_lshl_b32 s60, s9, 1
    s_add_u32 s14, s14, s60      ; head0
    s_lshl_b32 s60, s6, 2
    s_lshl_b32 s61, s8, 1
    s_add_u32 s60, s60, s61
    s_lshl_b32 s60, s60, 5
    s_add_u32 s60, s60, s14
    s_lshl_b32 s60, s60, 10
    v_lshlrev_b32 v57, 4, v0
    v_add_u32 v57, s60, v57
    s_mov_b32 s4, 2
    s_mov_b32 s5, 32768
    s_movk_i32 s10, 256
    s_movk_i32 s89, 16384
    """)
    srd(WS, P_WS, WS_SIZE)
    A("K1_LD_LOOP:")
    A("s_waitcnt vmcnt(8)")
    stamp_dyn("s4", 0)
    A("s_barrier")
    ldx(0, "s5"); ldx(1, "s5")
    A("s_add_u32 s62, s89, 8192")
    ldw("s62", 32*3072)
    A(f"""
    s_mul_i32 s11, s4, {64*3072}
    s_xor_b32 s89, s89, 16384
    s_waitcnt vmcnt(8)
    s_barrier
    """)
    ldx(2, "s5"); ldx(3, "s5"); ldw("s89", 0)
    A("""
    s_add_u32 s4, s4, 1
    s_add_u32 s5, s5, 16384
    s_add_u32 s10, s10, 128
    s_cmp_lt_u32 s4, 8
    s_cbranch_scc1 K1_LD_LOOP
    """)
    def ldq(slot, goff_s):
        for h in range(2):
            A(f"s_add_u32 m0, s12, {WSL+slot*8192+h*4096}")
            A(f"s_add_u32 s63, {goff_s}, {h*32*3072}")
            A(f"buffer_load_dwordx4 v11, s[{W}:{W+3}], s63 offen lds")
    A("s_waitcnt vmcnt(8)\ns_barrier")
    ldw(3*8192, 32*3072)
    A(f"s_mul_i32 s10, s15, {64*3072}")
    A("s_waitcnt vmcnt(6)\ns_barrier")
    ldq(0, "s10")
    A(f"s_xor_b32 s10, s10, {64*3072}")
    A("s_waitcnt vmcnt(4)\ns_barrier")
    ldq(1, "s10")
    A(f"s_mov_b32 s10, {2*64*3072}")
    A("s_waitcnt vmcnt(4)\ns_barrier")
    ldq(2, "s10")
    A(f"""
    s_mov_b32 s10, {hex(LOG2E)}
    s_mov_b32 s11, {hex(LOG2E)}
    s_mov_b32 s12, {hex(EPS)}
    s_mov_b32 s61, 32768
    """)
    stamp_n[0] = 8
    QA = (64, 80)
    QS = (96, 120, 144, 168)
    def qreads(u):
        b = QS[u & 3]; pos = u >> 1
        L = []
        for j in range(2):
            ks = 2*(u & 1) + j
            xo = (pos & 3)*16384
            wo = (pos & 3)*8192 + ks*2048
            L.append(f"ds_read_b128 v[{b+12*j}:{b+12*j+3}], v{4+ks} offset:{xo}")
            L += [f"ds_read_b64_tr_b16 v[{b+12*j+8+2*t}:{b+12*j+9+2*t}], v8 offset:{wo+t*512}" for t in range(2)]
            L.append(f"ds_read_b128 v[{b+12*j+4}:{b+12*j+7}], v{4+ks} offset:{xo+4096}")
        return L
    def qmf(u, j, mb):
        b = QS[u & 3] + 12*j; d = QA[mb]
        c = "0" if (u == 0 and j == 0) else f"v[{d}:{d+15}]"
        return f"v_mfma_f32_32x32x16_bf16 v[{d}:{d+15}], v[{b+8}:{b+11}], v[{b+4*mb}:{b+4*mb+3}], {c}"
    A("s_waitcnt vmcnt(4)\ns_barrier")
    stamp()
    if opt("qprio", 0): A("s_setprio 1")
    for r in qreads(0) + qreads(1)[:7]: A(r)
    def ldq2(pos):
        return [f"s_add_u32 m0, s13, {WSL+(pos&3)*8192+h*4096}\ns_mov_b32 s63, {pos*64*3072+h*32*3072}\nbuffer_load_dwordx4 v11, s[{W}:{W+3}], s63 offen lds" for h in range(2)]
    A("s_lshl_b32 s13, s13, 10")
    for x in ldq2(3): A(x)
    A(qreads(1)[7])
    DEF = []
    for u in range(16):
        A(f"s_waitcnt lgkmcnt({8 if u < 15 else 0})")
        D = []
        if u % 2 == 0 and u < 14:
            p = u//2 + 1
            issued = max(3, min(p+1, 7))
            A(f"s_waitcnt vmcnt({2*(issued-p)})")
            A("s_barrier")
            if 4 <= p+2 <= 7: D = ldq2(p+2)
        if u == 6:
            for i in range(2): A(f"v_add_u32 v{4+i}, 65536, v{4+i}")
        if u == 7:
            for i in range(2, 4): A(f"v_add_u32 v{4+i}, 65536, v{4+i}")
        R = qreads(u+2) if u < 14 else []
        if u < 13: M = [qmf(u, 0, 0), qmf(u, 0, 1), qmf(u, 1, 0), qmf(u, 1, 1)]
        else:
            M = [qmf(u, 0, 0), qmf(u, 1, 0)]; DEF += [qmf(u, 0, 1), qmf(u, 1, 1)]
        n = 2 if len(M) == 4 else 4
        for k, m in enumerate(M):
            A(m)
            for r in R[:n]: A(r)
            R = R[n:]
            if k in (1, 3) and D: A(D.pop(0))
    stamp()
    TMP = 208; PQ = (16, 24)
    A(DEF.pop(0)); A(DEF.pop(0))
    V0 = phi_ops(QA[0], PQ[0], TMP, False)[:28]
    rest = interleave(DEF, V0, 28)
    for x in rest: A(x)
    V0 = phi_ops(QA[0], PQ[0], TMP, False)[28:36] + [f"buffer_store_dwordx4 v[{PQ[0]}:{PQ[0]+3}], v57, s[{WS}:{WS+3}], 0 offen sc1"]
    V0 += phi_ops(QA[0], PQ[0], TMP, True)[28:] + [f"buffer_store_dwordx4 v[{PQ[0]+4}:{PQ[0]+7}], v57, s[{WS}:{WS+3}], 0 offen offset:1024 sc1"]
    for x in V0: A(x)
    V = phi_ops(QA[1], PQ[1], TMP, True)
    for h in range(2):
        for x in V[28*h:28*h+28]: A(x)
        A(f"buffer_store_dwordx4 v[{PQ[1]+4*h}:{PQ[1]+4*h+3}], v57, s[{WS}:{WS+3}], s61 offen offset:{1024*h} sc1")
    stamp()
    if STAMP: A("s_waitcnt vmcnt(0)")
    stamp()
    stamp_flush(0, WS, skip=range(2, 8))
    A("s_mov_b32 s92, s7\ns_branch K_SYNC")

def phi_ops(base, dst, tmp, pk=True):
    L = []
    for h in range(2):
        r = range(8*h, 8*h+8)
        if pk: L += [f"v_pk_mul_f32 v[{tmp+i}:{tmp+i+1}], v[{base+i}:{base+i+1}], s[10:11]" for i in r[::2]]
        else: L += [f"v_mul_f32 v{tmp+i}, s10, v{base+i}" for i in r]
        for i in r:
            L.append(f"v_exp_f32_e64 v{tmp+i}, v{tmp+i} clamp")
            L.append(f"v_max_f32 v{base+i}, s12, v{base+i}")
        if pk: L += [f"v_pk_add_f32 v[{base+i}:{base+i+1}], v[{base+i}:{base+i+1}], v[{tmp+i}:{tmp+i+1}]" for i in r[::2]]
        else: L += [f"v_add_f32 v{base+i}, v{base+i}, v{tmp+i}" for i in r]
        L += [f"v_cvt_pk_bf16_f32 v{dst+i//2}, v{base+i}, v{base+i+1}" for i in r[::2]]
    return L

def cost(x):
    op = x.split()[0].replace("_e64", "")
    if op in TRANS: return 8
    if op.startswith("ds_write"): return 16
    if op.startswith("s_"): return 2
    return 4

def gemm_compute():
    stamp_n[0] = 1
    W, WS = 52, 56
    ACC = {"k": (96, 112), "v": (128, 144)}
    A("s_and_b32 s8, s3, 1\ns_lshr_b32 s9, s3, 1")
    frag_addr_setup()
    A("v_lshl_add_u32 v13, v2, 11, v8")
    for r in range(96, 160, 2):
        A(f"v_mov_b64 v[{r}:{r+1}], 0")
    A(f"""
    s_lshl_b32 s14, s7, 2
    s_lshl_b32 s13, s9, 1
    s_add_u32 s14, s14, s13      ; head0
    v_bfe_u32 v14, v0, 4, 1
    v_add_u32 v14, s14, v14
    v_mul_u32_u24 v14, {HS}, v14
    v_and_b32 v1, 3, v0
    v_bfe_u32 v3, v0, 2, 1
    v_lshl_add_u32 v1, v3, 3, v1
    v_bfe_u32 v3, v0, 3, 1
    v_lshl_add_u32 v1, v3, 2, v1 ; p
    v_lshl_add_u32 v14, v1, 2, v14
    v_add_u32 v14, {hex(KV_OFF)}, v14
    v_lshl_add_u32 v15, v2, 8, v14      ; + hf*256
    s_lshl_b32 s13, s8, 9
    v_add_u32 v15, s13, v15
    v_lshlrev_b32 v56, 4, v0
    s_mul_i32 s13, s3, 1280
    v_add_u32 v58, s13, v56
    s_xor_b32 s15, s3, 1
    s_mul_i32 s15, s15, 1280
    v_add_u32 v59, s15, v56
    v_lshlrev_b32 v1, 2, v0
    v_add_u32 v60, s13, v1
    v_add_u32 v61, s15, v1
    s_mov_b32 s10, {hex(LOG2E)}
    s_mov_b32 s11, {hex(LOG2E)}
    s_mov_b32 s12, {hex(EPS)}
    s_mov_b32 s14, 0xffff0000
    s_mov_b32 s15, 0xffff0000
    s_cmp_eq_u32 s8, 0
    s_cselect_b64 s[80:81], 0, -1
    s_cselect_b32 s82, -1, 0
    s_lshl_b32 s83, s3, 10
    """)
    for i in range(4): A(f"v_mov_b32 v{232+i}, 0x3f803f80")
    A("s_waitcnt lgkmcnt(0)")
    srd(WS, P_WS, WS_SIZE)
    SET = (16, 32)
    def reads(ks, st):
        b = SET[st]
        L = [f"ds_read_b128 v[{b}:{b+3}], v{4+ks}"]
        L += [f"ds_read_b64_tr_b16 v[{b+8+2*t}:{b+9+2*t}], v13 offset:{ks*4096+t*512}" for t in range(2)]
        L += [f"ds_read_b128 v[{b+4}:{b+7}], v{4+ks} offset:4096"]
        L += [f"ds_read_b64_tr_b16 v[{b+12+2*t}:{b+13+2*t}], v13 offset:{ks*4096+1024+t*512}" for t in range(2)]
        return L
    def mf(st, nm, mb):
        b = SET[st]; p = "kv".index(nm); d = ACC[nm][mb]
        return f"v_mfma_f32_32x32x16_bf16 v[{d}:{d+15}], v[{b+4*mb}:{b+4*mb+3}], v[{b+8+4*p}:{b+11+4*p}], v[{d}:{d+15}]"
    A("s_mov_b32 s4, 0")
    stamp()
    A("s_barrier")
    stamp()
    for r in reads(0, 0): A(r)
    A("K1_G_LOOP:")
    for ks in range(4):
        st = ks & 1
        M = [mf(st, "k", 0), mf(st, "k", 1), mf(st, "v", 0), mf(st, "v", 1)]
        A("s_waitcnt lgkmcnt(0)")
        if ks == 1: A("s_barrier")
        if ks == 3: A("s_barrier\ns_cbranch_scc0 K1_G_TAIL")
        R = reads((ks+1) & 3, st ^ 1)
        A(M[0]); [A(r) for r in R[0:3]]
        A(M[1]); [A(r) for r in R[3:6]]
        A(M[2])
        if ks == 2:
            for i in range(4): A(f"v_add_u32 v{4+i}, 16384, v{4+i}")
            A("v_xor_b32 v13, 16384, v13")
            A("s_add_u32 s4, s4, 1\ns_cmp_lt_u32 s4, 8")
        A(M[3])
    A("s_branch K1_G_LOOP")
    A("K1_G_TAIL:")
    for m in M: A(m)
    if opt("kprio", 0): A("s_setprio 2")
    stamp()
    def ldq(pos):
        for h in range(2):
            A(f"s_add_u32 m0, s83, {WSL+(pos&3)*8192+h*4096}")
            A(f"s_mov_b32 s63, {pos*64*3072+h*32*3072}")
            A(f"buffer_load_dwordx4 v11, s[{W}:{W+3}], s63 offen lds")
    TMP = 208; PK = (16, 24); KVA = 96; ZA = 112
    PKM = opt("pkm", 0) == 1
    V = phi_ops(ACC["k"][0], PK[0], TMP, PKM) + phi_ops(ACC["k"][1], PK[1], TMP, PKM)
    V += [f"v_cvt_pk_bf16_f32 v{ACC['v'][mb]+i}, v{ACC['v'][mb]+2*i}, v{ACC['v'][mb]+2*i+1}" for mb in range(2) for i in range(8)]
    KM = []
    for z in range(2):
        for mb in range(2):
            for fr in range(2):
                first = (mb == 0 and fr == 0)
                d = ZA if z else KVA
                pk = f"v[{PK[mb]+4*fr}:{PK[mb]+4*fr+3}]"
                vv = "v[232:235]" if z else f"v[{ACC['v'][mb]+4*fr}:{ACC['v'][mb]+4*fr+3}]"
                KM.append(f"v_mfma_f32_32x32x16_bf16 v[{d}:{d+15}], {vv}, {pk}, {'0' if first else f'v[{d}:{d+15}]'}")
    SEL = [f"v_cndmask_b32_e64 v{KVA+j}, v{KVA+j}, v{KVA+8+j}, s[14:15]" for j in range(8)]
    SEL += [f"v_cndmask_b32_e64 v{40+j}, v{KVA+4+j}, v{KVA+j}, s[80:81]" for j in range(4)]
    SEL += ["ds_write_b128 v58, v[40:43]"]
    SEL += [f"v_cndmask_b32_e64 v{36+j}, v{KVA+j}, v{KVA+4+j}, s[80:81]" for j in range(4)]
    SEL += [f"ds_write_b32 v60, v{ZA} offset:1024"]
    tot = sum(cost(x) for x in V)
    nseg = opt("nseg", 5)
    def drain(bud):
        c = 0
        while V and c < bud:
            x = V.pop(0); A(x); c += cost(x)
    for seg in range(7):
        if seg == 1:
            A(f"s_load_dwordx8 s[84:91], s[{P_DBG}:{P_DBG+1}], 0")
        if 0 < seg < nseg:
            drain(tot // (nseg-1) + 4 if seg < nseg-1 else 100000)
        if seg == nseg - 1:
            for m in KM[:4]: A(m)
        if seg == nseg:
            for m in KM[4:]: A(m)
            for x in SEL: A(x)
            A("s_waitcnt lgkmcnt(0)")
        if seg == nseg + 1:
            A("ds_read_b128 v[40:43], v59\nds_read_b32 v44, v61 offset:1024")
            break
        A("s_barrier")
    assert nseg <= 5
    stamp()
    init_check("G", 62)
    A("s_waitcnt lgkmcnt(0)")
    for j in range(4): A(f"v_add_f32 v{36+j}, v{36+j}, v{40+j}")
    A(f"v_add_f32 v44, v44, v{ZA}")
    for j in range(4): A(f"buffer_atomic_add_f32 v{36+j}, v15, s[{WS}:{WS+3}], 0 offen offset:{j*64}")
    A(f"""
    s_cmp_lg_u32 s8, 0
    s_cbranch_scc1 K1_NOZ
    s_mov_b32 exec_hi, 0
    buffer_atomic_add_f32 v44, v14, s[{WS}:{WS+3}], 0 offen offset:1024
    s_mov_b32 exec_hi, -1
K1_NOZ:
    """)
    for _ in range(7 - (nseg+1)): A("s_barrier")
    stamp()
    if STAMP: A("s_waitcnt vmcnt(0)")
    stamp()
    stamp_flush(0, WS)

TROW = 528
L_TA = 0
L_TB = 22*TROW
L_U = 54*TROW
L_KR0 = L_U + 4608
L_KR1 = L_KR0 + 1152 + 64
L_T = L_KR1 + 1152 + 64
TSEQ = 192
TCOPY = 6*TSEQ + 64
CH = L_T + 2*TCOPY
CH = (CH + 255)//256*256
assert 4*CH <= 163840, CH
AROWS = list(range(9)) + [256,258,260,262,264] + [516,520,772,776] + [1032,1288,1544,1800]
HROWS = ([0,1,2,3,4,5,6,7,8,516,520,772,776,0,0,0], [256,256,258,260,260,260,262,264,264,1032,1288,1544,1800,0,0,0])
BOX = [(3,3,-16),(5,6,-16),(3,11,-16),(5,14,-24),(7,5,-16),(9,12,-24)]

def ssm_tables():
    T = []
    for lane in range(64):
        R = lane & 31; hf = lane >> 5
        g = R >> 3; h = (R >> 2) & 1; i = R & 3
        arow = AROWS.index(HROWS[h][4*g+i])
        ta = L_TA + arow*TROW + hf*16
        b = lane & 15; q = lane >> 4
        p0 = 535 - 32*16 - b + 8*q
        kr = (L_KR1 + 2*(p0+1)) if (p0 & 1) else (L_KR0 + 2*p0)
        p0 = 15 - b + 4*q
        tf = (L_T + TCOPY + 2*(p0+1)) if (p0 & 1) else (L_T + 2*p0)
        fr = L_U + 512 - 32 - 64*7 + 32*b + 16*q
        T += [ta, kr, tf, fr]
    for lane in range(64):
        j = lane & 31; h = lane >> 5
        for kap in range(4):
            if h == 0:
                seq = 2*(j & 1) + (kap & 1); kp = 32 + 16*(kap >> 1) + (j >> 1); Q0 = 79
            else:
                seq = 4 + (j & 1); kp = 64 + 16*kap + (j >> 1); Q0 = 127
            T.append(L_T + seq*TSEQ + 2*(Q0 - kp))
    for lane in range(64):
        b = lane & 15; q = lane >> 4
        h = [0xffff if (16 + b - (8*q+i)) in (3, 4) else 0 for i in range(8)]
        T += [h[2*i] | (h[2*i+1] << 16) for i in range(4)]
    for (ln, o, off) in BOX:
        for lane in range(64):
            b = lane & 15; q = lane >> 4
            h = [0x3f80 if (b - o - ln + 1 <= off + 8*q + i <= b - o) else 0 for i in range(8)]
            T += [h[2*i] | (h[2*i+1] << 16) for i in range(4)]
    return T

def exp_setup(Es):
    for (E, r, sgn, t) in Es:
        for m in range(2):
            A(f"v_mul_f32 v{t+m}, {hex(f2u(r*1.4426950408889634))}, v{20+m}")
            A(f"v_mul_f32 v{t+2+m}, {hex(f2u(sgn*r*0.15915494309189535))}, v{22+m}")
    for (E, r, sgn, t) in Es:
        for m in range(2):
            A(f"v_exp_f32 v{t+m}, v{t+m}")
            A(f"v_fract_f32 v{t+2+m}, v{t+2+m}")
    for (E, r, sgn, t) in Es:
        for m in range(2):
            A(f"v_cos_f32 v{E+2*m}, v{t+2+m}")
            A(f"v_sin_f32 v{E+2*m+1}, v{t+2+m}")
    for (E, r, sgn, t) in Es:
        for m in range(2):
            A(f"v_mul_f32 v{E+2*m}, v{t+m}, v{E+2*m}")
            A(f"v_mul_f32 v{E+2*m+1}, v{t+m}, v{E+2*m+1}")

def dt_setup():
    A(f"""
    v_mul_f32 v10, {hex(LOG2E)}, v10
    v_exp_f32 v10, v10
    v_cvt_pk_bf16_f32 v10, v10, v10
    v_and_b32 v10, 0xffff0000, v10   ; dt
    """)

def cv2(src, tmp): return [f"v_cvt_pk_bf16_f32 v{tmp}, v{src}, v{src+1}", f"v_cvt_pk_bf16_f32 v{tmp+1}, v{src+2}, v{src+3}"]
def cm2(d, x, y):
    c0 = cmul(d, x, y); c1 = cmul(d+2, x+2, y+2)
    return [c0[0], c1[0], c0[1], c1[1]]

def ssm_helper():
    stamp_n[0] = 2
    X, WS = 48, 56
    if opt("fine", 0): stamp()
    A(f"""
    s_setprio 2
    s_and_b32 s6, s4, 3          ; mg
    s_lshr_b32 s7, s4, 2         ; ng
    s_lshl_b32 s10, s6, 9
    s_lshl_b32 s11, s5, 4
    s_add_u32 s10, s10, s11
    s_lshl_b32 s11, s7, 8
    s_add_u32 s14, s10, s11
    s_lshl_b32 s15, s9, 2
    s_add_u32 s14, s14, s15
    s_xor_b32 s11, s11, 256
    s_add_u32 s10, s10, s11
    v_add_u32 v6, s10, v0
    v_lshlrev_b32 v6, 10, v6
    v_subrev_u32 v7, 16, v0              ; 0..47
    v_mul_u32_u24 v8, 43, v7
    v_bfe_u32 v8, v8, 9, 3               ; /12
    v_mul_u32_u24 v9, 12, v8
    v_sub_u32 v9, v7, v9                 ; %12
    s_lshl_b32 s10, s5, 2
    v_add_u32 v8, s10, v8
    v_mul_u32_u24 v8, 3072, v8
    v_bfe_u32 v11, v9, 2, 2
    v_lshl_add_u32 v8, v11, 10, v8
    v_and_b32 v11, 3, v9
    v_lshl_add_u32 v8, v11, 7, v8
    s_lshl_b32 s10, s7, 9
    v_add_u32 v8, s10, v8
    s_mov_b64 s[10:11], 0xffff
    v_cndmask_b32_e64 v6, v8, v6, s[10:11]
    v_mov_b32 v7, {64*3072}
    v_mov_b32 v8, 128
    v_cndmask_b32_e64 v7, v7, v8, s[10:11]
    v_mov_b32 v8, s{P_W}
    v_mov_b32 v9, s{P_X}
    v_cndmask_b32_e64 v8, v8, v9, s[10:11]
    v_mov_b32 v9, s{P_W+1}
    v_mov_b32 v11, s{P_X+1}
    v_cndmask_b32_e64 v9, v9, v11, s[10:11]    ; base
    s_lshr_b32 s60, s9, 1
    s_add_u32 s60, s60, 2
    v_mad_u32_u24 v14, v7, s60, v6
    v_add_co_u32 v14, vcc, v8, v14
    v_addc_co_u32 v15, vcc, 0, v9, vcc
    s_bitcmp1_b32 s9, 0
    s_cselect_b32 exec_lo, 0, -1
    s_cselect_b32 exec_hi, -1, 0
    {"v_mov_b64 v[106:107], v[14:15]" if opt("adelay", 0) else "global_load_dword v44, v[14:15], off"}
    s_mov_b64 s[90:91], exec
    s_mov_b64 exec, -1
    s_add_u32 s60, s9, 4
    v_mad_u32_u24 v14, v7, s60, v6
    v_add_co_u32 v14, vcc, v8, v14
    v_addc_co_u32 v15, vcc, 0, v9, vcc
    s_lshr_b32 s60, s9, 1
    s_lshl_b32 s60, s60, 6
    s_and_b32 s61, s9, 1
    s_lshl_b32 s61, s61, 1
    s_add_u32 s60, s60, s61
    s_lshl_b32 s61, s5, 2
    s_add_u32 s60, s60, s61
    v_bfe_u32 v104, v0, 2, 1
    v_add_u32 v104, s60, v104
    v_mul_u32_u24 v104, 3072, v104
    v_and_b32 v105, 3, v0
    v_lshl_add_u32 v104, v105, 7, v104
    s_lshl_b32 s60, s7, 9
    s_add_u32 s60, s60, s{P_W}
    s_addc_u32 s61, s{P_W+1}, 0
    v_mov_b32 v105, s61
    v_add_co_u32 v104, vcc, s60, v104
    v_addc_co_u32 v105, vcc, 0, v105, vcc
    s_lshl_b32 s15, s14, 10
    v_lshlrev_b32 v12, 4, v0
    v_add_u32 v13, s15, v12
    s_lshl_b32 s15, s9, 6
    v_add_u32 v1, s15, v0        ; t = 0..255
    s_lshl_b32 s15, s4, 7
    s_lshl_b32 s60, s5, 3
    s_add_u32 s15, s15, s60
    v_lshlrev_b32 v2, 10, v1
    v_add_u32 v2, s15, v2
    s_lshl_b32 s60, s5, 7
    s_lshl_b32 s61, s9, 5
    s_add_u32 s60, s60, s61
    v_and_b32 v11, 31, v0
    v_add_u32 v11, s60, v11
    v_lshlrev_b32 v11, 10, v11
    v_add_u32 v11, s15, v11
    s_mul_i32 s8, s9, {CH}
    v_lshlrev_b32 v3, 3, v0
    v_add_u32 v3, s8, v3
    v_add_u32 v3, {L_TB}, v3
    """)
    if opt("fine", 0): stamp()
    srd(X, P_X, 0x200000)
    if opt("fine", 0):
        A("s_waitcnt vmcnt(4)"); stamp()
    AD = opt("adelay", 0)
    if AD == 2:
        A(f"s_sleep {opt('asleep', 12)}\ns_mov_b64 exec, s[90:91]\nglobal_load_dword v44, v[106:107], off\ns_mov_b64 exec, -1")
    A(f"s_waitcnt vmcnt({2 if AD == 1 else 3})")
    dt_setup()
    A(f"s_waitcnt vmcnt({0 if AD == 1 else 1})")
    if AD == 1:
        A("s_mov_b64 exec, s[90:91]\nglobal_load_dword v44, v[106:107], off\ns_mov_b64 exec, -1")
    stamp()
    for n in range(2):
        A(f"v_lshlrev_b32 v{20+2*n}, 16, v{4+n}")
        A(f"v_and_b32 v{21+2*n}, 0xffff0000, v{4+n}")
    for r in range(20, 24): A(f"v_mul_f32 v{r}, v10, v{r}")
    E8, E16 = 72, 76
    C = (80, 84, 88, 92)
    exp_setup(((E8, 8, -1.0, 24), (E16, 16, -1.0, 28)))
    srd(WS, P_WS, WS_SIZE)
    for r in range(4): A(f"v_mov_b32 v{40+r}, 0")
    A(f"""
    s_lshl_b32 s61, s5, 2
    s_add_u32 s61, s61, s9       ; 4js + w
    s_cmp_lg_u32 s61, 3
    s_cbranch_scc1 K1_H_NOZ
    s_mul_i32 s13, s4, {4*HS}
    s_add_u32 s13, s13, {hex(KV_OFF)}
    """)
    for i in range(4*HS//1024):
        if i and i % 4 == 0: A("s_add_u32 s13, s13, 4096")
        A(f"buffer_store_dwordx4 v[40:43], v12, s[{WS}:{WS+3}], s13 offen offset:{(i%4)*1024} sc0 sc1")
    A(f"""
    s_lshl_b32 s13, s4, 14
    s_add_u32 s13, s13, {hex(CT_OFF)}
    v_lshlrev_b32 v39, 8, v0
    buffer_store_dword v40, v39, s[{WS}:{WS+3}], s13 offen sc0 sc1
    """)
    A("K1_H_NOZ:")
    for r in range(4):
        A(f"buffer_load_dwordx4 v[{48+4*r}:{51+4*r}], v13, s[{X}:{X+3}], 0 offen offset:{r*1024}")
    A(f"global_load_dwordx4 v[64:67], v12, s[{P_GW}:{P_GW+1}]")
    A("""
    v_mov_b32 v80, 1.0
    v_mov_b32 v81, 0
    v_mov_b32 v82, 1.0
    v_mov_b32 v83, 0
    v_mov_b64 v[88:89], v[72:73]
    v_mov_b64 v[90:91], v[74:75]
    s_mov_b32 s60, 8
K1_H_BL:
    """)
    for half in range(2):
        e, en = C[half], C[half ^ 1]
        o, on = C[2 + half], C[2 + (half ^ 1)]
        me = cm2(en, e, E16); mo = cm2(on, o, E16)
        t = 96 + 4*half
        ce = cv2(e, t); co = cv2(o, t+2)
        for x in (me[0], me[1], mo[0], mo[1], ce[0], ce[1], me[2], me[3], co[0], co[1], mo[2], mo[3]): A(x)
        A(f"ds_write2_b64 v3, v[{t}:{t+1}], v[{t+2}:{t+3}] offset0:{132*half} offset1:{132*half+66}")
    A(f"""
    v_add_u32 v3, {4*TROW}, v3
    s_cmp_lg_u32 s60, {opt("bpos", 5)}
    s_cbranch_scc1 K1_H_NU
    global_load_dword v46, v[14:15], off
K1_H_NU:
    s_cmp_lg_u32 s60, {opt("upos", 3)}
    s_cbranch_scc1 K1_H_NU2
    buffer_load_dword v45, v11, s[{X}:{X+3}], 0 offen
K1_H_NU2:
    s_sub_u32 s60, s60, 1
    s_cmp_lg_u32 s60, 0
    s_cbranch_scc1 K1_H_BL
    s_waitcnt lgkmcnt(0)
    """)
    stamp()
    A("s_barrier")
    A("global_load_dword v47, v[104:105], off")
    A("s_setprio 0")
    A("s_waitcnt vmcnt(3)")
    A(f"""
    s_cmp_lg_u32 s61, 3
    s_cbranch_scc1 K1_H_NOF
    s_lshl_b32 s13, s4, 2
    v_mov_b32 v6, s13
    v_mov_b32 v7, 1
    s_mov_b64 exec, 1
    global_store_dword v6, v7, s[{P_DBG}:{P_DBG+1}] sc0 sc1
    s_mov_b64 exec, -1
K1_H_NOF:
    """)
    for i in range(8):
        A(f"s_mov_b32 s13, {i<<18}")
        A(f"buffer_load_dwordx2 v[{16+2*i}:{17+2*i}], v2, s[{X}:{X+3}], s13 offen")
        if i == 0:
            for r in range(4): A(f"v_mov_b32 v{68+r}, 0")
            for k in range(4):
                for r in range(4):
                    A(f"v_dot2c_f32_bf16 v{68+r}, v{48+4*r+k}, v{64+k}")
        if i == 1:
            for m in ("row_shr:1","row_shr:2","row_shr:4","row_shr:8"):
                for r in range(4):
                    A(f"v_add_f32_dpp v{68+r}, v{68+r}, v{68+r} {m} row_mask:0xf bank_mask:0xf bound_ctrl:0")
        if i == 2:
            for m in ("row_bcast:15 row_mask:0xa","row_bcast:31 row_mask:0xc"):
                for r in range(4):
                    A(f"v_add_f32_dpp v{68+r}, v{68+r}, v{68+r} {m} bank_mask:0xf")
            for r in range(4): A(f"v_mul_f32 v{68+r}, {hex(f2u(-1.4426950408889634))}, v{68+r}")
            for r in range(4): A(f"v_exp_f32 v{68+r}, v{68+r}")
            for r in range(4): A(f"v_add_f32 v{68+r}, 1.0, v{68+r}")
            for r in range(4): A(f"v_rcp_f32 v{68+r}, v{68+r}")
            A(f"""
            v_lshlrev_b32 v3, 1, v1
            v_add_u32 v3, {L_U+512}, v3
            v_add_u32 v4, {2*CH}, v3
            s_lshl_b32 s13, s61, 13
            v_lshlrev_b32 v5, 7, v0
            v_add_u32 v5, s13, v5
            s_lshl_b32 s10, s14, 2
            s_add_u32 s10, s10, {hex(G_OFF)}
            v_mov_b32 v10, s10
            """)
        LA = 3
        for b in ([i-LA] if LA <= i < 7 else (range(7-LA, 8) if i == 7 else [])):
            if i == 7 and b == 7-LA:
                A(f"global_load_dword v46, v5, s[{P_WO}:{P_WO+1}]")
                A(f"""
                s_mov_b32 exec_lo, 0
                s_mov_b32 exec_hi, 0x80000000
                buffer_store_dwordx4 v[68:71], v10, s[{WS}:{WS+3}], 0 offen sc1
                s_mov_b64 exec, -1
                """)
            A(f"s_waitcnt vmcnt({i-b + (2 if i == 7 else 0)})")
            A(f"ds_write_b16 v3, v{16+2*b} offset:{512*b}")
            A(f"ds_write_b16_d16_hi v3, v{16+2*b} offset:{CH+512*b}")
            A(f"ds_write_b16 v4, v{17+2*b} offset:{512*b}")
            A(f"ds_write_b16_d16_hi v4, v{17+2*b} offset:{CH+512*b}")
            A("s_waitcnt lgkmcnt(0)")
            if not opt("fine", 0) or b < 4: stamp()
            A("s_barrier")
    stamp_flush(0, WS)
    A(f"s_load_dwordx8 s[84:91], s[{P_DBG}:{P_DBG+1}], 0\ns_waitcnt lgkmcnt(0)")
    init_check("H", 6)
    A("s_add_u32 s92, s4, 8\ns_branch K_SYNC")

def cmul(d, x, y):
    return [f"v_pk_mul_f32 v[{d}:{d+1}], v[{x}:{x+1}], v[{y}:{y+1}] op_sel:[0,0] op_sel_hi:[1,0]",
            f"v_pk_fma_f32 v[{d}:{d+1}], v[{x}:{x+1}], v[{y}:{y+1}], v[{d}:{d+1}] op_sel:[1,1,0] op_sel_hi:[0,1,1] neg_lo:[1,0,0]"]

def ssm_compute():
    stamp_n[0] = 2
    WS = 56
    A("""
    v_lshlrev_b32 v2, 4, v0
    s_add_u32 s60, s62, K1_TABLE-K1_PC0
    s_addc_u32 s61, s63, 0
    """)
    MISC, TW, CORR, BOXR = 244, 240, 236, 212
    dst = [MISC, TW, CORR] + [BOXR+4*n for n in range(6)]
    def table_loads(lo, hi):
        for n in range(lo, hi):
            if n in (4, 8): A("v_add_u32 v2, 4096, v2")
            A(f"global_load_dwordx4 v[{dst[n]}:{dst[n]+3}], v2, s[60:61] offset:{(n%4)*1024}")
    table_loads(0, 3)
    srd(WS, P_WS, WS_SIZE)
    A(f"""
    s_mul_i32 s8, s3, {CH}
    v_mov_b32 v16, 0
    v_mov_b32 v17, 0
    v_mov_b32 v18, 0
    v_mov_b32 v19, 0
    v_lshlrev_b32 v3, 4, v0
    v_add_u32 v3, s8, v3
    """)
    zl = CH - L_KR0
    for o in range(0, zl, 1024):
        A(f"ds_write_b128 v3, v[16:19] offset:{L_KR0+min(o, zl-1024)}")
    A(f"""
    v_lshlrev_b32 v3, 3, v0
    v_add_u32 v3, s8, v3
    ds_write_b64 v3, v[16:17] offset:{L_U}
    s_waitcnt vmcnt(10)
    """)
    dt_setup()
    A("s_waitcnt vmcnt(8)")
    for n in range(2):
        A(f"v_lshlrev_b32 v{20+2*n}, 16, v{4+n}")
        A(f"v_and_b32 v{21+2*n}, 0xffff0000, v{4+n}")
    for r in range(20, 24): A(f"v_mul_f32 v{r}, v10, v{r}")
    exp_setup(((136, 1, 1.0, 32), (144, 256, 1.0, 36)))
    A("s_waitcnt vmcnt(4)")
    stamp()
    for n in range(2, 6):
        A(f"v_lshlrev_b32 v{20+2*n}, 16, v{4+n}")
        A(f"v_and_b32 v{21+2*n}, 0xffff0000, v{4+n}")
    for r in range(24, 28): A(f"v_mul_f32 v{r}, v10, v{r}")
    AV = {}
    nxt = [48]
    def alloc():
        r = nxt[0]; nxt[0] += 4; return r
    for r in AROWS: AV[r] = alloc()
    E1, E2, E256 = alloc(), alloc(), alloc()
    for m in range(2):
        d = AV[0] + 2*m
        A(f"v_mul_f32 v{d}, v{28+m}, v{24+m}")
        A(f"v_mul_f32 v{d+1}, v{28+m}, v{26+m}")
        A(f"v_fma_f32 v{d}, -v{30+m}, v{26+m}, v{d}")
        A(f"v_fma_f32 v{d+1}, v{30+m}, v{24+m}, v{d+1}")
    assert E1 == 136 and E256 == 144
    TMPW = 168
    steps = [(0, None, None)] + [(r, r-1, E1) for r in range(1, 9)] + [(r, r-256, E256) for r in AROWS[9:]]
    pend = []
    for n in range(0, 22, 2):
        L = []
        for (r, src, E) in steps[n:n+2]:
            if src is not None: L.append(cm2(AV[r], AV[src], E))
        flat = [x for l in L for x in l]
        k = 0
        for x in flat:
            A(x)
            if pend and k % 2 == 1: A(pend.pop(0))
            k += 1
        for x in pend: A(x)
        t = TMPW + 4*((n >> 1) & 1)
        pend = cv2(AV[steps[n][0]], t) + cv2(AV[steps[n+1][0]], t+2) + [f"ds_write2_b64 v3, v[{t}:{t+1}], v[{t+2}:{t+3}] offset0:{66*(n%4)} offset1:{66*(n%4+1)}"]
        if n % 4 == 2: pend.append(f"v_add_u32 v3, {4*TROW}, v3")
    for x in pend: A(x)
    stamp()
    table_loads(3, 9)
    A("s_waitcnt vmcnt(6)")
    for r in list(range(MISC, MISC+4)) + list(range(TW, TW+4)): A(f"v_add_u32 v{r}, s8, v{r}")
    A(f"""
    v_and_b32 v4, 31, v0
    v_mul_u32_u24 v4, {TROW}, v4
    v_lshrrev_b32 v5, 5, v0
    v_lshl_add_u32 v4, v5, 4, v4
    v_add_u32 v4, s8, v4
    s_waitcnt lgkmcnt(0)
    s_barrier
    """)
    KA = 16
    FR = 40
    def kmf(t): return f"v_mfma_f32_32x32x16_bf16 v[{KA}:{KA+15}], v[{FR+8*t}:{FR+8*t+3}], v[{FR+8*t+4}:{FR+8*t+7}], {'0' if t == 0 else f'v[{KA}:{KA+15}]'}"
    for s_ in range(16):
        A(f"ds_read_b128 v[{FR+8*s_}:{FR+8*s_+3}], v{MISC} offset:{32*s_}")
        A(f"ds_read_b128 v[{FR+8*s_+4}:{FR+8*s_+7}], v4 offset:{L_TB+32*s_}")
        if s_ >= 4:
            A(f"s_waitcnt lgkmcnt(8)")
            A(kmf(s_-4))
    A(f"""
    s_mov_b64 s[14:15], 1
    v_cndmask_b32_e64 v5, 0, v252, s[14:15]
    v_lshlrev_b32 v6, 4, v0
    v_sub_u32 v6, {L_KR0+1088}, v6
    v_add_u32 v6, s8, v6
    v_mov_b32 v7, s8
    """)
    for t in range(12, 16):
        A(f"s_waitcnt lgkmcnt({2*(15-t)})")
        A(kmf(t))
    A(f"""
    s_lshl_b32 s9, s7, 12
    s_add_u32 s9, s9, {hex(BT_OFF)}
    v_and_b32 v1, 15, v0
    v_lshrrev_b32 v2, 4, v0
    v_lshlrev_b32 v1, 5, v1
    v_lshl_add_u32 v1, v2, 3, v1
    v_add_u32 v8, 512, v{MISC+1}
    v_add_u32 v9, 1024, v{MISC+1}
    v_add_u32 v2, 768, v{MISC+2}
    v_add_f32 v{KA}, v{KA}, v5
    """)
    for i in range(4): A(f"v_cvt_pk_bf16_f32 v{40+i}, v{KA+7-2*i}, v{KA+6-2*i}")
    A(f"ds_write_b128 v6, v[40:43]")
    for i in range(4): A(f"v_cvt_pk_bf16_f32 v{44+i}, v{KA+8-2*i}, v{KA+7-2*i}")
    A(f"ds_write_b128 v6, v[44:47] offset:{L_KR1-L_KR0}")
    A(f"v_cvt_pk_bf16_f32 v52, v{KA+8}, v{KA+8}")
    A(f"""
    s_mov_b64 exec, 1
    ds_write_b16_d16_hi v7, v43 offset:{L_KR1+2*552}
    s_mov_b32 exec_lo, 0
    s_mov_b32 exec_hi, 0x80000000
    ds_write_b32 v7, v52 offset:{L_KR0+2*38}
    ds_write_b16 v7, v52 offset:{L_KR0+2*37}
    ds_write_b32 v7, v52 offset:{L_KR1+2*38}
    s_mov_b64 exec, -1
    """)
    for k in range(4): A(f"v_cvt_pk_bf16_f32 v{48+k}, v{KA+9+k}, v{KA+9+k}")
    for k in range(4):
        A(f"ds_write_b16 v{TW+k}, v{48+k}")
        A(f"ds_write_b16 v{TW+k}, v{48+k} offset:{TCOPY+2}")
    A("v_readlane_b32 s15, v51, 31      ; (K1024,K1024)")
    for i in range(4): A(f"v_and_b32 v{CORR+i}, s15, v{CORR+i}")
    stamp()
    AFB = 56; TFB = 124; ACC = 164; FB = 12; GB = 44; TMP = 196; XB = 240
    def af(c): return AFB + 4*c
    cnt = 0
    for c in range(17):
        o = 16*(16-c)
        base, oo = (MISC+1, o) if o < 128 else ((8, o-128) if o < 256 else (9, o-256))
        A(f"ds_read2_b32 v[{af(c)}:{af(c)+1}], v{base} offset0:{oo} offset1:{oo+1}")
        A(f"ds_read2_b32 v[{af(c)+2}:{af(c)+3}], v{base} offset0:{oo+2} offset1:{oo+3}")
    def tf(pair, dl): return TFB + 4*((dl-2) + 3*pair if pair < 2 else 6 + dl - 4)
    TR = []
    for pair in range(3):
        dls = (2,3,4) if pair < 2 else (4,5,6,7)
        for dl in dls:
            r = tf(pair, dl)
            for hh in range(2):
                o = ((2*pair+hh)*TSEQ + 32*(dls[-1]-dl))//4
                base, oo = (MISC+2, o) if o < 192 else (2, o-192)
                TR.append(f"ds_read2_b32 v[{r+2*hh}:{r+2*hh+1}], v{base} offset0:{oo} offset1:{oo+1}")
    BT_ = [TMP, TMP+8, 48]
    XR = [240, 248, 8]
    FA = MISC+3
    started = set()
    def mm(t, a_, b_):
        c = f"v[{ACC+4*t}:{ACC+4*t+3}]" if t in started else "0"
        started.add(t)
        return f"v_mfma_f32_16x16x32_bf16 v[{ACC+4*t}:{ACC+4*t+3}], v[{a_}:{a_+3}], v[{b_}:{b_+3}], {c}"
    def far(tau):
        L = []
        for pair in range(3):
            for dl in ((2,3,4) if pair < 2 else (4,5,6,7)):
                if tau + dl < 8: L.append(mm(tau+dl, XR[pair], tf(pair, dl)))
        return L
    def store(t):
        return [f"v_cvt_pk_bf16_f32 v6, v{ACC+4*t}, v{ACC+4*t+1}", f"v_cvt_pk_bf16_f32 v7, v{ACC+4*t+2}, v{ACC+4*t+3}",
                f"buffer_store_dwordx2 v[6:7], v1, s[{WS}:{WS+3}], s9 offen offset:{512*t} sc1"]
    def rdF(tau, rho): return f"ds_read_b128 v[{FB+4*rho}:{FB+4*rho+3}], v{FA} offset:{512*tau+448-64*rho}"
    def rdG(tau): return f"ds_read_b128 v[{GB}:{GB+3}], v{FA} offset:{512*tau+432}"
    npairs = lambda tau: 3 if tau < 4 else (2 if tau < 6 else 0)
    A("s_waitcnt vmcnt(0)")
    stamp()
    A("s_barrier")
    A(rdF(0, 0)); A(rdG(0))
    for rho in range(1, 8): A(rdF(0, rho))
    for tau in range(8):
        if tau < 7: A("s_barrier")
        if tau in (0, 6): stamp()
        npair = npairs(tau)
        full = tau <= 4
        A("s_waitcnt lgkmcnt(0)" if full else "s_waitcnt lgkmcnt(7)")
        for pair in range(npair):
            for hh in range(2):
                sq = 2*pair + hh
                src = GB if BOX[sq][2] == -24 else FB
                d = BT_[pair] + 4*hh
                A(f"v_mfma_f32_16x16x32_bf16 v[{d}:{d+3}], v[{src}:{src+3}], v[{BOXR+4*sq}:{BOXR+4*sq+3}], 0")
        if tau + 2 < 8: A(mm(tau+2, af(16), FB))
        if tau + 4 < 8: A(mm(tau+4, CORR, FB))
        CVT = [f"v_cvt_pk_bf16_f32 v{XR[pair]+i}, v{BT_[pair]+2*i}, v{BT_[pair]+2*i+1}" for pair in range(npair) for i in range(4)]
        ST = store(tau-1) if tau > 0 else []
        nnew = 0
        for rho in range(8):
            if rho > 0 and not full: A(f"s_waitcnt lgkmcnt({7-rho+nnew})")
            A(mm(tau, af(rho), FB+4*rho))
            if rho >= 1 and CVT: A(CVT.pop(0))
            if tau + 1 < 8: A(mm(tau+1, af(8+rho), FB+4*rho))
            if tau < 7:
                A(rdF(tau+1, rho)); nnew += 1
                if rho == 0 and npairs(tau+1): A(rdG(tau+1)); nnew += 1
                if tau == 0 and rho < 5:
                    for x in TR[4*rho:4*rho+4]: A(x)
            if rho >= 1 and CVT: A(CVT.pop(0))
            if rho == 3 and not npair:
                for x in ST: A(x)
                ST = []
        assert not CVT
        if tau == 0: A("s_waitcnt lgkmcnt(3)")
        F_ = far(tau) if npair else []
        for k, m in enumerate(F_):
            A(m)
            if ST: A(ST.pop(0))
        for x in ST: A(x)
    stamp()
    for x in store(7): A(x)
    if STAMP: A("s_waitcnt vmcnt(0)")
    stamp()
    stamp_flush(0, WS)
    A("s_branch K_SYNC")

K2_PQ = 65536
K2_KV = 131072
KVS = 576
K2_B = K2_KV + 32*KVS
K2_LDS = K2_B + 8192
def k2():
    WO, WS, OUT = 48, 56, 52
    A("K_SYNC:")
    stamp_n[0] = 0
    A("s_setprio 0\ns_waitcnt vmcnt(0) lgkmcnt(0)")
    if STAMP: A("s_memrealtime s[96:97]")
    stamp()
    A(f"""
    s_barrier
    s_cmp_lg_u32 s3, 4
    s_cbranch_scc1 K_NOARR
    v_lshlrev_b32 v1, 12, v0
    s_lshl_b32 s92, s92, 8
    s_add_u32 s92, s92, {hex(CT_OFF)}
    v_mov_b32 v2, 1
    s_mov_b32 exec_hi, 0
    buffer_atomic_add v2, v1, s[{WS}:{WS+3}], s92 offen sc1
    s_mov_b32 exec_hi, -1
K_NOARR:
    s_and_b32 s4, s2, 7
    s_lshr_b32 s5, s2, 3
    s_and_b32 s6, s4, 3
    s_lshl_b32 s6, s6, 3
    s_lshr_b32 s7, s4, 2
    s_lshl_b32 s7, s7, 2
    s_add_u32 s6, s6, s7
    s_and_b32 s7, s5, 3
    s_add_u32 s6, s6, s7         ; rt (0..31)
    s_lshr_b32 s7, s5, 2         ; ct (0..7)
    s_and_b32 s8, s3, 1          ; sw
    s_bfe_u32 s9, s3, 0x10001    ; kw
    v_lshlrev_b32 v1, 4, v0
    v_lshrrev_b32 v6, 3, v0
    v_bfe_u32 v7, v0, 4, 1
    v_lshlrev_b32 v7, 2, v7
    v_and_b32 v8, 7, v0
    v_xor_b32 v7, v7, v8
    """)
    for st in range(8):
        A(f"s_add_u32 s{80+st}, s7, {st}\ns_and_b32 s{80+st}, s{80+st}, 7")
    A("s_cmp_lt_u32 s3, 4\ns_cbranch_scc1 K2_COMPUTE")
    stamp()
    A(f"""
    s_lshl_b32 s13, s8, 5
    s_lshl_b32 s14, s9, 4
    s_add_u32 s13, s13, s14      ; sw*32+16kw
    s_lshl_b32 s13, s13, 10
    s_lshl_b32 s10, s6, 16
    s_add_u32 s10, s10, s13
    v_add_u32 v11, s10, v1
    s_add_u32 s13, s13, {K2_PQ}
    s_add_u32 s14, s14, s8
    s_mul_i32 s10, s14, {HS}
    s_add_u32 s10, s10, {hex(KV_OFF)}
    v_add_u32 v2, s10, v1
    v_bfe_u32 v3, v0, 2, 3
    v_add_u32 v4, s7, v3
    v_and_b32 v4, 7, v4
    v_mul_u32_u24 v4, {2*HS}, v4
    v_and_b32 v5, 3, v0
    v_lshl_add_u32 v4, v5, 4, v4
    v_add_u32 v4, s10, v4        ; z source (+1024)
    s_sub_u32 s15, s3, 4
    s_lshl_b32 s10, s7, 6
    s_lshl_b32 s11, s15, 4
    s_add_u32 s10, s10, s11
    v_add_u32 v10, s10, v6
    v_lshlrev_b32 v10, 12, v10
    v_lshl_add_u32 v10, v7, 4, v10
    s_lshl_b32 s10, s6, 7
    s_add_u32 s10, s10, {hex(BT_OFF)}
    v_add_u32 v10, s10, v10      ; b source
    s_lshl_b32 s15, s15, 11
    s_add_u32 s15, s15, {K2_B}
    s_mul_i32 s10, s14, {KVS}
    s_add_u32 s10, s10, {K2_KV}
    v_lshlrev_b32 v12, 3, v0
    v_add_u32 v12, s10, v12
    v_mul_u32_u24 v13, {2*KVS}, v3
    v_xor_b32 v5, 2, v5
    v_lshl_add_u32 v13, v5, 3, v13
    v_add_u32 v13, s10, v13
    v_mov_b32 v14, v0
    s_add_u32 s10, s7, 8
    v_writelane_b32 v14, s10, 8
    s_add_u32 s10, s4, 8
    v_writelane_b32 v14, s10, 9
    v_lshlrev_b32 v14, 8, v14
    s_lshl_b32 s88, s5, 12
    s_add_u32 s88, s88, {hex(CT_OFF)}    ; replica j
    s_mov_b32 s90, 0
    """)
    def poll(tag, mask):
        A(f"""
        s_cmp_lg_u32 s3, 4
        s_cbranch_scc1 K_POLL_DONE_{tag}
        s_and_b32 s89, s90, {mask}
        s_cmp_eq_u32 s89, {mask}
        s_cbranch_scc1 K_POLL_DONE_{tag}
        s_mov_b32 s91, 0
        s_mov_b64 exec, 0x3ff
K_POLL_{tag}:
        v_mov_b32 v15, 0
        buffer_atomic_add v15, v14, s[{WS}:{WS+3}], s88 offen sc0 sc1
        s_add_u32 s91, s91, 1
        s_waitcnt vmcnt(0)
        v_cmp_eq_u32 vcc, 16, v15
        s_mov_b32 s90, vcc_lo
        s_and_b32 s89, s90, {mask}
        s_cmp_eq_u32 s89, {mask}
        s_cbranch_scc1 K_POLL_EXIT_{tag}
        s_cmp_lt_u32 s91, 0x40000
        s_cbranch_scc1 K_POLL_{tag}
K_POLL_EXIT_{tag}:
        s_mov_b64 exec, -1
K_POLL_DONE_{tag}:
        """)
    poll("A", 0xff)
    stamp()
    A("s_barrier")
    def kvpq(st):
        A(f"s_mul_i32 s60, s{80+st}, {2*HS}")
        A(f"buffer_load_dwordx4 v[{16+4*st}:{19+4*st}], v2, s[{WS}:{WS+3}], s60 offen sc1")
        A(f"s_add_u32 m0, s13, {st*2048}\ns_lshl_b32 s60, s{80+st}, 11")
        for i in range(2):
            A(f"buffer_load_dwordx4 v11, s[{WS}:{WS+3}], s60 offen offset:{i*1024} sc1 lds")
    A(f"buffer_load_dwordx4 v[48:51], v4, s[{WS}:{WS+3}], 0 offen offset:1024 sc1")
    groups = []
    LA = opt("k2la", 3)
    BST = 5
    def group(g):
        kvpq(g); groups.append(3)
    for g in range(LA): group(g)
    for st in range(9):
        if st + LA < 8: group(st + LA)
        if st == BST + 1:
            for i in range(2):
                A(f"s_add_u32 m0, s15, {i*1024}\ns_mov_b32 s60, {i*32768}")
                A(f"buffer_load_dwordx4 v10, s[{WS}:{WS+3}], s60 offen sc1 lds")
            groups.append(2)
        A(f"s_waitcnt vmcnt({sum(groups[st+1:])})")
        if st == 0:
            A("v_cvt_pk_bf16_f32 v48, v48, v49\nv_cvt_pk_bf16_f32 v49, v50, v51\ns_mov_b32 exec_hi, 0\nds_write_b64 v13, v[48:49] offset:512\ns_mov_b32 exec_hi, -1")
        if st < 8:
            r = 16 + 4*st
            A(f"v_cvt_pk_bf16_f32 v{r}, v{r}, v{r+1}\nv_cvt_pk_bf16_f32 v{r+1}, v{r+2}, v{r+3}")
            A(f"ds_write_b64 v12, v[{r}:{r+1}] offset:{2*st*KVS}")
            A("s_waitcnt lgkmcnt(0)")
        if st == BST: poll("B", 0x300)
        if st in (0, 1, 3, 7, 8): stamp()
        A("s_barrier")
    assert LA + BST >= 7
    stamp_flush(1, WS)
    A("s_endpgm")
    A("K2_COMPUTE:")
    k2_compute(WO, WS, OUT)
    A("K2_END:\ns_endpgm")

def k2_compute(WO, WS, OUT):
    stamp_n[0] = 1
    A(f"""
    s_lshl_b32 s12, s9, 8
    s_lshl_b32 s13, s8, 4
    s_add_u32 s12, s12, s13
    v_add_u32 v9, s12, v6
    v_lshlrev_b32 v9, 10, v9
    v_lshl_add_u32 v9, v7, 4, v9
    s_lshl_b32 s13, s7, 7
    v_add_u32 v9, s13, v9        ; vWOsrc
    s_lshl_b32 s12, s12, 7
    """)
    srd(WO, P_WO, 0x80000)
    for st in range(8):
        A(f"s_lshl_b32 s61, s{80+st}, 15")
        for i in range(2):
            A(f"s_add_u32 m0, s12, {st*4096+i*1024}\ns_add_u32 s60, s61, {i*8192}")
            A(f"buffer_load_dwordx4 v9, s[{WO}:{WO+3}], s60 offen lds")
    A(f"""
    s_lshl_b32 s12, s6, 1
    s_add_u32 s12, s12, s8       ; rb
    s_lshl_b32 s13, s7, 6
    s_lshl_b32 s14, s9, 5
    s_add_u32 s13, s13, s14
    v_and_b32 v8, 31, v0
    s_lshl_b32 s15, s12, 5
    v_add_u32 v8, s15, v8        ; row
    v_lshrrev_b32 v9, 5, v0      ; hf
    v_lshlrev_b32 v11, 2, v8
    v_add_u32 v11, {hex(G_OFF)}, v11
    v_lshlrev_b32 v12, 10, v8
    v_lshl_add_u32 v12, v9, 4, v12
    s_lshl_b32 s13, s13, 1
    v_add_u32 v12, s13, v12
    v_and_b32 v10, 31, v0
    v_min_u32 v3, 16, v10
    v_lshrrev_b32 v4, 4, v3      ; is z
    v_xor_b32 v4, v4, v9
    v_lshlrev_b32 v3, 5, v3
    v_lshl_add_u32 v3, v4, 4, v3
    s_mul_i32 s11, s9, {16*KVS}
    s_add_u32 s11, s11, {K2_KV}
    v_add_u32 v3, s11, v3        ; vKVa
    v_bfe_u32 v4, v0, 2, 2
    v_lshl_add_u32 v4, v9, 2, v4
    v_lshlrev_b32 v4, 7, v4
    v_bfe_u32 v5, v0, 4, 1
    v_lshl_add_u32 v4, v5, 5, v4
    v_and_b32 v5, 3, v0
    v_lshl_add_u32 v4, v5, 3, v4
    v_bfe_u32 v5, v0, 3, 1
    v_lshl_add_u32 v4, v5, 6, v4
    s_lshl_b32 s11, s8, 6
    v_xor_b32 v10, s11, v4
    s_lshl_b32 s11, s9, 12
    s_add_u32 s11, s11, {K2_B}
    v_add_u32 v10, s11, v10
    s_lshl_b32 s11, s9, 15
    v_add_u32 v4, s11, v4
    s_lshl_b32 s11, s9, 6
    v_xor_b32 v4, s11, v4
    v_xor_b32 v5, 64, v4
    s_lshl_b32 s11, s8, 5
    s_lshl_b32 s14, s9, 4
    s_add_u32 s11, s11, s14
    s_lshl_b32 s11, s11, 10
    s_add_u32 s11, s11, {K2_PQ}
    v_add_u32 v6, s11, v1
    v_xor_b32 v7, {16*1024}, v6
    """)
    CE = 184
    for i in range(16): A(f"v_mov_b32 v{CE+i}, {hex(EPS) if i >= 8 else 0}")
    srd(OUT, P_OUT, 0x200000)
    stamp()
    A("s_barrier")
    stamp()
    A("s_waitcnt vmcnt(0)")
    ACC = (112, 128)
    OD = (64, 80)
    KF = (16, 20, 24, 28); PF = (32, 36, 40, 44)
    WF = (160, 168, 176)
    OF = (48, 52)
    BB = 144
    def rd_kp(h): return [f"ds_read_b128 v[{KF[h%4]}:{KF[h%4]+3}], v3 offset:{h*KVS}", f"ds_read_b128 v[{PF[h%4]}:{PF[h%4]+3}], v6 offset:{h*1024}"]
    def rd_wo(h):
        b = WF[h % 3]
        return [f"ds_read_b64_tr_b16 v[{b+4*jt+2*t}:{b+4*jt+2*t+1}], v{4+jt} offset:{h*2048+t*1024}" for jt in (1, 0) for t in range(2)]
    def omf(h): return f"v_mfma_f32_32x32x16_bf16 v[{OD[h%2]}:{OD[h%2]+15}], v[{KF[h%4]}:{KF[h%4]+3}], v[{PF[h%4]}:{PF[h%4]+3}], v[{CE}:{CE+15}]"
    def norm(h):
        d = OD[h % 2]; o = OF[h & 1]
        L = [f"v_rcp_f32 v{d+8}, v{d+8}"]
        L += [f"v_mul_f32 v{d+i}, v{d+i}, v{d+8}" for i in range(8)]
        L += [f"v_cvt_pk_bf16_f32 v{o+i}, v{d+2*i}, v{d+2*i+1}" for i in range(4)]
        return L
    def proj(h, jt):
        b = WF[h % 3]; o = OF[h & 1]
        c = "0" if h == 0 else f"v[{ACC[jt]}:{ACC[jt]+15}]"
        return f"v_mfma_f32_32x32x16_bf16 v[{ACC[jt]}:{ACC[jt]+15}], v[{b+4*jt}:{b+4*jt+3}], v[{o}:{o+3}], {c}"
    A("s_barrier")
    stamp()
    for x in rd_kp(0) + rd_kp(1): A(x)
    out = [("kp", 0)]*2 + [("kp", 1)]*2
    def wait_for(tags):
        last = max([k for k, t in enumerate(out) if t in tags], default=-1)
        if last >= 0:
            A(f"s_waitcnt lgkmcnt({len(out)-1-last})")
            del out[:last+1]
    for i in range(18):
        wait_for({("kp", i), ("wo", i-2)})
        N = norm(i-1) if 0 <= i-1 < 16 else []
        if i < 16: A(omf(i))
        R = []
        if i % 2 == 1 and i+1 < 16:
            A("s_barrier")
            R += [(x, ("kp", i+1)) for x in rd_kp(i+1)] + [(x, ("kp", i+2)) for x in rd_kp(i+2)]
        if i == 12:
            A(f"buffer_load_dword v13, v11, s[{WS}:{WS+3}], 0 offen sc1")
        if i == 16:
            A("s_barrier")
            R += [(f"ds_read_b64_tr_b16 v[{96+2*g}:{97+2*g}], v10 offset:{g*1024}", ("b", 0)) for g in range(4)]
        if i < 16: R += [(x, ("wo", i)) for x in rd_wo(i)]
        def emit(n):
            for x, t in R[:n]:
                A(x); out.append(t)
            del R[:n]
        emit(2)
        for x in N[:1]: A(x)
        emit(2)
        if 0 <= i-2: A(proj(i-2, 1))
        emit(2)
        for x in N[1:6]: A(x)
        if 0 <= i-2: A(proj(i-2, 0))
        emit(2)
        for x in N[6:]: A(x)
    stamp()
    A("s_waitcnt vmcnt(0) lgkmcnt(0)\nv_sub_f32 v14, 1.0, v13")
    for i in range(4):
        A(f"v_lshlrev_b32 v{BB+2*i}, 16, v{96+i}")
        A(f"v_and_b32 v{BB+2*i+1}, 0xffff0000, v{96+i}")
    for g in range(4): A(f"ds_write_b128 v6, v[{ACC[1]+4*g}:{ACC[1]+4*g+3}] offset:{g*1024}")
    for i in range(4, 8):
        A(f"v_lshlrev_b32 v{BB+2*i}, 16, v{96+i}")
        A(f"v_and_b32 v{BB+2*i+1}, 0xffff0000, v{96+i}")
    A("s_waitcnt lgkmcnt(0)\ns_barrier")
    for g in range(4): A(f"ds_read_b128 v[{16+4*g}:{19+4*g}], v7 offset:{g*1024}")
    A("v_mov_b32 v15, v14\nv_mov_b32 v56, v13\nv_mov_b32 v57, v13")
    for i in range(0, 16, 2): A(f"v_pk_mul_f32 v[{BB+i}:{BB+i+1}], v[14:15], v[{BB+i}:{BB+i+1}]")
    for i in range(0, 16, 2): A(f"v_pk_fma_f32 v[{BB+i}:{BB+i+1}], v[56:57], v[{ACC[0]+i}:{ACC[0]+i+1}], v[{BB+i}:{BB+i+1}]")
    for p in range(2):
        A(f"s_waitcnt lgkmcnt({2-2*p})")
        for i in range(8*p, 8*p+8, 2): A(f"v_pk_fma_f32 v[{BB+i}:{BB+i+1}], v[56:57], v[{16+i}:{17+i}], v[{BB+i}:{BB+i+1}]")
        for i in range(4*p, 4*p+4): A(f"v_cvt_pk_bf16_f32 v{32+i}, v{BB+2*i}, v{BB+2*i+1}")
        A(f"v_permlane32_swap_b32 v{32+4*p}, v{34+4*p}")
        A(f"v_permlane32_swap_b32 v{33+4*p}, v{35+4*p}")
        A(f"buffer_store_dwordx4 v[{32+4*p}:{35+4*p}], v12, s[{OUT}:{OUT+3}], 0 offen offset:{32*p}")
    stamp()
    if STAMP: A("s_waitcnt vmcnt(0)")
    stamp()
    stamp_flush(1, WS)

k1()
lines, errs = hazard_pass(A.lines)
for e in errs: print(e, file=sys.stderr)
hdr = open("gated_mix__linear_attn_block__ssm_conv_s4__prompt.s.ref").read().split("; Override launch")[0]
out = hdr
out += "; @launch grid=(256,1,1) block=(512,1,1) lds=163840\n"
out += f'.amdgcn_target "amdgcn-amd-amdhsa--gfx950"\n.text\n.globl {KN}\n.type {KN},@function\n'
out += "\n".join(lines) + "\n"
T = ssm_tables()
out += ".p2align 8\n.type K1_TABLE,@object\nK1_TABLE:\n"
for i in range(0, len(T), 8):
    out += ".long " + ", ".join(hex(x) for x in T[i:i+8]) + "\n"
out += f".size K1_TABLE, {4*len(T)}\nCODE_END:\n"
out += '.section .rodata,"a"\n' + kernel_desc(KN, 256, 102, 256)
fn = [x for x in sys.argv[1:] if not x.startswith("--")][0]
open(fn, "w").write(out)
```

```python
import sys, struct
from asmlib import *

KN = "gated_mix__linear_attn_block__ssm_conv_s4__prompt_kernel"
PQ_OFF = 0x0
BT_OFF = 0x200000
KV_OFF = 0x400000
G_OFF = 0x4c0000
CT_OFF = 0x4d0000
TS_OFF = 0x500000
WS_SIZE = 0x600000
STAMP = "--stamp" in sys.argv
def opt(name, default):
    for x in sys.argv:
        if x.startswith(f"--{name}="): return type(default)(x.split("=")[1])
    return default
HS = opt('hs', 1280)
assert 32*HS <= G_OFF - KV_OFF
LOG2E = 0x3fb8aa3b
EPS = 0x358637bd
def f2u(x): return struct.unpack("<I", struct.pack("<f", x))[0]
A = Asm()
KF_ = opt('kf', 'sc1')
PF_ = opt('pf', 'sc1')
SA, SB, WS = 48, 52, 56
P_X, P_W, P_WO, P_ARE, P_AIM, P_BRE, P_BIM, P_CRE, P_CIM, P_LDT, P_DSK, P_GW, P_OUT, P_DBG, P_WS = 16,18,20,24,26,28,30,32,34,36,38,40,42,44,46

def srd(base, ptr, size):
    A(f"s_mov_b64 s[{base}:{base+1}], s[{ptr}:{ptr+1}]\ns_mov_b32 s{base+2}, {hex(size)}\ns_mov_b32 s{base+3}, 0x20000")

class St: lane = 0; pend = []
def st_set(lane): St.lane = lane; St.pend = []
def stamp():
    if not STAMP: return
    k = len(St.pend); assert k < 10
    A(f"s_memtime s[{72+2*k}:{73+2*k}]"); St.pend.append(St.lane); St.lane += 1
def commit():
    if not STAMP: return
    A("s_waitcnt lgkmcnt(0)")
    for k, l in enumerate(St.pend): A(f"v_writelane_b32 v254, s{72+2*k}, {l}")
    St.pend = []
def stamp_dyn(idx_s):
    if not STAMP: return
    A(f"s_memtime s[94:95]\ns_waitcnt lgkmcnt(0)\ns_mov_b32 m0, {idx_s}\nv_writelane_b32 v254, s94, m0")
def flush():
    if not STAMP: return
    A("s_memrealtime s[98:99]")
    commit()
    A("s_waitcnt lgkmcnt(0)")
    A(f"s_lshl_b32 s60, s2, 3\ns_add_u32 s60, s60, s3\ns_lshl_b32 s60, s60, 7\ns_add_u32 s60, s60, {hex(TS_OFF)}")
    A("v_writelane_b32 v254, s96, 30\nv_writelane_b32 v254, s98, 31")
    A(f"s_mov_b64 exec, -1\nv_lshlrev_b32 v255, 2, v0\ns_mov_b32 exec_hi, 0")
    A(f"buffer_store_dword v254, v255, s[{WS}:{WS+3}], s60 offen")

def cost(x):
    op = x.split()[0].replace("_e64", "")
    if op in TRANS: return 8
    if op.startswith("ds_write"): return 16
    if op.startswith("s_"): return 2
    return 4
def interleave(M, V, budget=24):
    V = list(V)
    for m in M:
        A(m); c = 0
        while V and c < budget:
            x = V.pop(0); A(x); c += cost(x)
    return V

def main():
    A(".p2align 8\n" + KN + ":")
    if STAMP: A("s_memrealtime s[96:97]\ns_memtime s[92:93]\nv_mov_b32 v254, 0")
    A(f"""
    s_cmp_ge_u32 s2, 256
    s_cbranch_scc1 K_END
    s_load_dwordx16 s[16:31], s[0:1], 0
    s_load_dwordx16 s[32:47], s[0:1], 64
    v_lshrrev_b32 v1, 6, v0
    v_and_b32 v0, 63, v0
    v_readfirstlane_b32 s3, v1
    s_and_b32 s4, s2, 7          ; xcd
    s_lshr_b32 s5, s2, 3         ; j
    s_getpc_b64 s[62:63]
K_PC0:
    s_lshl_b32 s6, s5, 3
    s_add_u32 s6, s6, s3
    s_lshl_b32 s6, s6, 7
    s_min_u32 s6, s6, CODE_END-K_PC0-4
    v_mov_b32 v1, s6
    global_load_dword v253, v1, s[62:63]
    s_cmp_lt_u32 s5, 16
    s_cbranch_scc1 K_G
    s_sub_u32 s5, s5, 16         ; js
    s_cmp_ge_u32 s3, 4
    s_cbranch_scc1 K_HELPER
    s_lshl_b32 s6, s4, 6
    s_lshl_b32 s7, s5, 2
    s_add_u32 s6, s6, s7
    s_add_u32 s7, s6, s3         ; ch
    s_lshl_b32 s8, s7, 8
    v_lshlrev_b32 v1, 2, v0
    v_add_u32 v1, s8, v1
    s_lshl_b32 s10, s7, 1
    v_mov_b32 v2, s10
    v_mov_b32 v10, 0
    v_mov_b32 v252, 0
    s_waitcnt lgkmcnt(0)
    global_load_short_d16_hi v10, v2, s[{P_LDT}:{P_LDT+1}]
    """)
    for n, p in enumerate((P_ARE, P_AIM, P_BRE, P_BIM, P_CRE, P_CIM)):
        A(f"global_load_dword v{4+n}, v1, s[{p}:{p+1}]")
    A(f"global_load_short_d16_hi v252, v2, s[{P_DSK}:{P_DSK+1}]")
    A("s_branch K_SSM")
    A(f"""
K_G:
    s_and_b32 s6, s4, 3
    s_lshl_b32 s6, s6, 2
    s_and_b32 s14, s5, 3         ; ml
    s_add_u32 s6, s6, s14        ; mi
    s_lshr_b32 s7, s4, 2
    s_lshl_b32 s7, s7, 2
    s_lshr_b32 s15, s5, 2        ; nl
    s_add_u32 s7, s7, s15        ; ni
    s_cmp_ge_u32 s3, 4
    s_cbranch_scc1 K_LOADER
    s_cmp_ge_u32 s3, 2
    s_cbranch_scc1 K_KV
    ; waves 0,1 touch this workgroup's share of k-chunks 0,1 (x rows and k/v weights of the XCD)
    s_and_b32 s8, s4, 3
    s_lshl_b32 s8, s8, 9
    s_lshl_b32 s9, s5, 5
    s_add_u32 s8, s8, s9
    v_add_u32 v2, s8, v0
    v_lshlrev_b32 v2, 10, v2
    s_lshl_b32 s8, s3, 7
    v_add_u32 v2, s8, v2
    s_lshl_b32 s8, s3, 6
    s_lshl_b32 s9, s5, 2
    s_add_u32 s8, s8, s9
    v_bfe_u32 v3, v0, 3, 2
    v_add_u32 v3, s8, v3
    v_mul_u32_u24 v3, 3072, v3
    v_bfe_u32 v4, v0, 2, 1
    v_lshl_add_u32 v3, v4, 10, v3
    v_and_b32 v4, 3, v0
    v_lshl_add_u32 v3, v4, 7, v3
    s_lshr_b32 s8, s4, 2
    s_lshl_b32 s8, s8, 9
    s_add_u32 s8, s8, 1024
    v_add_u32 v3, s8, v3             ; w line
    s_mov_b32 exec_hi, 0
    s_waitcnt lgkmcnt(0)
    global_load_dword v252, v2, s[{P_X}:{P_X+1}]
    global_load_dword v251, v3, s[{P_W}:{P_W+1}]
    s_mov_b32 exec_hi, -1
    s_branch K_KV
K_LOADER:
    """)
    q_wave()
    A("K_HELPER:"); ssm_helper()
    p2_loader()
    A("K_SSM:"); ssm_compute()
    A("K_KV:"); kv_wave()
    p2_compute()
    A("K_END:\ns_endpgm")

def first_stamp():
    st_set(1)
    if STAMP: A("v_writelane_b32 v254, s92, 0")
    stamp()

WSL = 131072
def frag_addr_setup():
    A("""
    v_and_b32 v1, 31, v0
    v_lshrrev_b32 v2, 5, v0      ; hf
    v_bfe_u32 v3, v0, 1, 3
    v_xor_b32 v3, v3, v2
    s_lshl_b32 s60, s8, 6
    v_add_u32 v1, s60, v1
    v_lshlrev_b32 v1, 7, v1      ; row*128
    """)
    for ks in range(4):
        A(f"v_xor_b32 v{4+ks}, {2*ks}, v3")
        A(f"v_lshl_add_u32 v{4+ks}, v{4+ks}, 4, v1")
    A(f"""
    v_bfe_u32 v1, v0, 2, 2
    v_lshlrev_b32 v8, 7, v1
    v_bfe_u32 v1, v0, 4, 1
    v_lshlrev_b32 v1, 5, v1
    v_and_b32 v3, 3, v0
    v_lshl_add_u32 v1, v3, 3, v1
    s_lshl_b32 s60, s9, 6
    v_add_u32 v1, s60, v1
    v_bfe_u32 v3, v0, 3, 1
    v_lshlrev_b32 v3, 6, v3
    v_xor_b32 v1, v1, v3
    v_add_u32 v8, v8, v1
    v_add_u32 v8, {WSL}, v8
    """)

def init_check(tag, vt):
    A(f"""
    s_and_b64 s[64:65], s[64:65], s[66:67]
    s_and_b64 s[68:69], s[68:69], s[70:71]
    s_and_b64 s[64:65], s[64:65], s[68:69]
    s_and_b32 s64, s64, s65
    s_cbranch_scc1 INIT_OK_{tag}
    v_and_b32 v{vt}, 7, v0
    v_lshlrev_b32 v{vt}, 2, v{vt}
INIT_POLL_{tag}:
    global_load_dword v{vt+1}, v{vt}, s[{P_DBG}:{P_DBG+1}] sc1
    s_waitcnt vmcnt(0)
    v_cmp_eq_u32 vcc, 0, v{vt+1}
    s_cbranch_vccz INIT_OK_{tag}
    s_add_u32 s64, s64, 1
    s_cmp_gt_u32 s64, 0x40000
    s_cbranch_scc1 INIT_OK_{tag}
    s_sleep 8
    s_branch INIT_POLL_{tag}
INIT_OK_{tag}:
    """)

def phi_ops(base, dst, tmp, pk=True):
    L = []
    for h in range(2):
        r = range(8*h, 8*h+8)
        if pk: L += [f"v_pk_mul_f32 v[{tmp+i}:{tmp+i+1}], v[{base+i}:{base+i+1}], s[10:11]" for i in r[::2]]
        else: L += [f"v_mul_f32 v{tmp+i}, s10, v{base+i}" for i in r]
        for i in r:
            L.append(f"v_exp_f32_e64 v{tmp+i}, v{tmp+i} clamp")
            L.append(f"v_max_f32 v{base+i}, s12, v{base+i}")
        if pk: L += [f"v_pk_add_f32 v[{base+i}:{base+i+1}], v[{base+i}:{base+i+1}], v[{tmp+i}:{tmp+i+1}]" for i in r[::2]]
        else: L += [f"v_add_f32 v{base+i}, v{base+i}, v{tmp+i}" for i in r]
        L += [f"v_cvt_pk_bf16_f32 v{dst+i//2}, v{base+i}, v{base+i+1}" for i in r[::2]]
    return L

def q_wave():
    X, W = SA, SB
    A(f"""
    s_sub_u32 s13, s3, 4         ; w
    v_lshrrev_b32 v2, 3, v0
    v_and_b32 v3, 7, v0
    v_lshrrev_b32 v4, 4, v0
    s_and_b32 s10, s13, 1
    s_lshl_b32 s10, s10, 2
    v_or_b32 v5, s10, v4
    v_xor_b32 v5, v5, v3
    s_lshl_b32 s10, s6, 7
    s_lshl_b32 s11, s13, 3
    s_add_u32 s10, s10, s11
    v_add_u32 v10, s10, v2
    v_lshlrev_b32 v10, 10, v10
    v_lshl_add_u32 v10, v5, 4, v10   ; x source
    v_and_b32 v4, 1, v4
    v_lshlrev_b32 v4, 2, v4
    v_xor_b32 v4, v4, v3
    v_add_u32 v11, s11, v2
    v_mul_u32_u24 v11, 3072, v11
    v_lshl_add_u32 v11, v4, 4, v11
    s_lshl_b32 s10, s7, 7
    v_add_u32 v11, s10, v11          ; w source
    s_lshl_b32 s12, s13, 10
    s_lshl_b32 s14, s13, 11
    s_add_u32 s14, s14, {WSL-1024}
    """)
    for n in range(4):
        A(f"s_add_u32 s60, s15, {n}\ns_and_b32 s60, s60, 3\ns_lshl_b32 s{64+n}, s60, 15\ns_lshl_b32 s60, s60, 12\ns_add_u32 s{68+n}, s60, s12")
    A(f"""
    s_mov_b32 s10, 0
    s_mov_b32 s11, 0
    s_mov_b32 s50, 0x200000
    s_mov_b32 s51, 0x20000
    s_mov_b32 s54, 0x180000
    s_mov_b32 s55, 0x20000
    s_waitcnt lgkmcnt(0)
    s_mov_b64 s[48:49], s[{P_X}:{P_X+1}]
    s_mov_b64 s[52:53], s[{P_W}:{P_W+1}]
    """)
    first_stamp()
    def ldx(n, lds):
        A(f"s_add_u32 m0, s{68+n}, {lds}\ns_add_u32 s63, s10, s{64+n}")
        A(f"buffer_load_dwordx4 v10, s[{X}:{X+3}], s63 offen lds")
    def ldw(lds, goff):
        A(f"s_add_u32 m0, s14, {lds}\ns_add_u32 s63, s11, {goff}")
        for p in (1, 2): A(f"buffer_load_dwordx4 v11, s[{W}:{W+3}], s63 offen offset:{p*1024} lds")
    ldx(0, 0); ldx(1, 0); ldw(0, 0); ldx(2, 0); ldx(3, 0)
    A("s_movk_i32 s10, 128")
    ldx(0, 16384); ldx(1, 16384); ldw(8192, 32*3072)
    A(f"s_mov_b32 s11, {64*3072}")
    ldx(2, 16384); ldx(3, 16384); ldw(16384, 0)
    A("s_and_b32 s8, s13, 1\ns_lshr_b32 s9, s13, 1")
    frag_addr_setup()
    A(f"""
    v_lshl_add_u32 v8, v2, 10, v8
    s_lshl_b32 s61, s7, 2
    s_lshl_b32 s60, s9, 1
    s_add_u32 s61, s61, s60      ; head0
    s_lshl_b32 s60, s6, 2
    s_lshl_b32 s62, s8, 1
    s_add_u32 s60, s60, s62
    s_lshl_b32 s60, s60, 5
    s_add_u32 s60, s60, s61
    s_lshl_b32 s60, s60, 10
    v_lshlrev_b32 v57, 4, v0
    v_add_u32 v57, s60, v57
    s_mov_b32 s4, 2
    s_mov_b32 s5, 32768
    s_movk_i32 s10, 256
    s_movk_i32 s15, 16384
    """)
    srd(WS, P_WS, WS_SIZE)
    commit()
    A("K_LD_LOOP:")
    A("s_waitcnt vmcnt(8)")
    stamp_dyn("s4")
    A("s_barrier")
    ldx(0, "s5"); ldx(1, "s5")
    A("s_add_u32 s62, s15, 8192")
    ldw("s62", 32*3072)
    A(f"s_mul_i32 s11, s4, {64*3072}\ns_xor_b32 s15, s15, 16384\ns_waitcnt vmcnt(8)\ns_barrier")
    ldx(2, "s5"); ldx(3, "s5"); ldw("s15", 0)
    A("""
    s_add_u32 s4, s4, 1
    s_add_u32 s5, s5, 16384
    s_add_u32 s10, s10, 128
    s_cmp_lt_u32 s4, 8
    s_cbranch_scc1 K_LD_LOOP
    """)
    def ldq(pos):
        return [f"s_add_u32 m0, s12, {WSL+(pos&3)*8192+h*4096}\ns_mov_b32 s63, {pos*64*3072+h*32*3072}\nbuffer_load_dwordx4 v11, s[{W}:{W+3}], s63 offen lds" for h in range(2)]
    A("s_waitcnt vmcnt(8)\ns_barrier")
    ldw(3*8192, 32*3072)
    A("s_waitcnt vmcnt(6)\ns_barrier")
    for x in ldq(0): A(x)
    A("s_waitcnt vmcnt(4)\ns_barrier")
    for x in ldq(1): A(x)
    A("s_waitcnt vmcnt(4)\ns_barrier")
    for x in ldq(2): A(x)
    st_set(8)
    QA = (64, 80)
    NS = 6
    QS = [96 + 24*i for i in range(NS)]
    def qreads(u):
        b = QS[u % NS]; pos = u >> 1
        L = []
        for j in range(2):
            ks = 2*(u & 1) + j
            xo = (pos & 3)*16384
            wo = (pos & 3)*8192 + ks*2048
            L.append(f"ds_read_b128 v[{b+12*j}:{b+12*j+3}], v{4+ks} offset:{xo}")
            L += [f"ds_read_b64_tr_b16 v[{b+12*j+8+2*t}:{b+12*j+9+2*t}], v8 offset:{wo+t*512}" for t in range(2)]
            L.append(f"ds_read_b128 v[{b+12*j+4}:{b+12*j+7}], v{4+ks} offset:{xo+4096}")
        return L
    def qmf(u, j, mb):
        b = QS[u % NS] + 12*j; d = QA[mb]
        c = "0" if (u == 0 and j == 0) else f"v[{d}:{d+15}]"
        return f"v_mfma_f32_32x32x16_bf16 v[{d}:{d+15}], v[{b+8}:{b+11}], v[{b+4*mb}:{b+4*mb+3}], {c}"
    A("s_waitcnt vmcnt(4)\ns_barrier")
    stamp()
    for r in qreads(0) + qreads(1)[:7]: A(r)
    for x in ldq(3): A(x)
    A(qreads(1)[7])
    DEF = []
    UD = opt("ud", 12)
    for u in range(16):
        A(f"s_waitcnt lgkmcnt({8 if u < 15 else 0})")
        D = []
        if u % 2 == 0 and u < 14:
            p = u//2 + 1
            issued = max(3, min(p+1, 7))
            A(f"s_waitcnt vmcnt({2*(issued-p)})\ns_barrier")
            if 4 <= p+2 <= 7: D = ldq(p+2)
            if u == opt("qpu", 10): A("s_setprio 2")
        if u in (6, 7):
            for i in range(2*(u-6), 2*(u-6)+2): A(f"v_add_u32 v{4+i}, 65536, v{4+i}")
        R = qreads(u+2) if u < 14 else []
        if u < UD: M = [qmf(u, 0, 0), qmf(u, 0, 1), qmf(u, 1, 0), qmf(u, 1, 1)]
        else:
            M = [qmf(u, 0, 0), qmf(u, 1, 0)]; DEF += [qmf(u, 0, 1), qmf(u, 1, 1)]
        n = 2 if len(M) == 4 else 4
        for k, m in enumerate(M):
            A(m)
            for r in R[:n]: A(r)
            R = R[n:]
            if k in (1, 3) and D: A(D.pop(0))
        if u == 9:
            A(f"s_mov_b32 s10, {hex(LOG2E)}\ns_mov_b32 s11, {hex(LOG2E)}\ns_mov_b32 s12, {hex(EPS)}\ns_mov_b32 s61, 32768")
    stamp()
    TMP = 32; PQ = (16, 24)
    A(DEF.pop(0)); A(DEF.pop(0))
    def pst(mb, h): return f"buffer_store_dwordx4 v[{PQ[mb]+4*h}:{PQ[mb]+4*h+3}], v57, s[{WS}:{WS+3}], {'s61' if mb else '0'} offen offset:{1024*h} sc1"
    V0 = phi_ops(QA[0], PQ[0], TMP, False)[:36] + [pst(0, 0)]
    for x in interleave(DEF, V0, 28): A(x)
    for x in phi_ops(QA[0], PQ[0], TMP, True)[28:] + [pst(0, 1)]: A(x)
    V = phi_ops(QA[1], PQ[1], TMP, True)
    for h in range(2):
        for x in V[28*h:28*h+28] + [pst(1, h)]: A(x)
    stamp()
    A("s_barrier")
    A("s_mov_b32 s62, s7")
    p2_ids()
    p2_loader_setup()
    A("s_waitcnt vmcnt(0)")
    stamp()
    A("s_barrier")
    A("s_cmp_lg_u32 s3, 4\ns_cbranch_scc1 K_P2L")
    arrive("s62")
    A("s_branch K_P2L")

def arrive(shard):
    A(f"""
    v_lshlrev_b32 v60, 12, v0
    s_lshl_b32 s60, {shard}, 8
    s_add_u32 s60, s60, {hex(CT_OFF)}
    v_mov_b32 v61, 1
    s_mov_b32 exec_hi, 0
    buffer_atomic_add v61, v60, s[{WS}:{WS+3}], s60 offen sc1
    s_mov_b32 exec_hi, -1
    """)

def kv_wave():
    ACC = {"k": (96, 112), "v": (128, 144)}
    A("s_and_b32 s8, s3, 1\ns_lshr_b32 s9, s3, 1")
    frag_addr_setup()
    A("v_lshl_add_u32 v13, v2, 11, v8")
    for r in range(96, 160, 2): A(f"v_mov_b64 v[{r}:{r+1}], 0")
    A(f"""
    s_lshl_b32 s14, s7, 2
    s_lshl_b32 s13, s9, 1
    s_add_u32 s14, s14, s13      ; head0
    v_bfe_u32 v14, v0, 4, 1
    v_add_u32 v14, s14, v14
    v_mul_u32_u24 v14, {HS}, v14
    v_and_b32 v1, 3, v0
    v_bfe_u32 v3, v0, 2, 1
    v_lshl_add_u32 v1, v3, 3, v1
    v_bfe_u32 v3, v0, 3, 1
    v_lshl_add_u32 v1, v3, 2, v1
    v_lshl_add_u32 v14, v1, 2, v14
    v_add_u32 v14, {hex(KV_OFF)}, v14
    v_lshl_add_u32 v15, v2, 8, v14
    s_lshl_b32 s13, s8, 9
    v_add_u32 v15, s13, v15
    v_lshlrev_b32 v56, 4, v0
    s_mul_i32 s13, s3, 1280
    v_add_u32 v58, s13, v56
    s_xor_b32 s15, s3, 1
    s_mul_i32 s15, s15, 1280
    v_add_u32 v59, s15, v56
    v_lshlrev_b32 v1, 2, v0
    v_add_u32 v60, s13, v1
    v_add_u32 v61, s15, v1
    s_mov_b32 s10, {hex(LOG2E)}
    s_mov_b32 s11, {hex(LOG2E)}
    s_mov_b32 s12, {hex(EPS)}
    s_mov_b32 s14, 0xffff0000
    s_mov_b32 s15, 0xffff0000
    s_cmp_eq_u32 s8, 0
    s_cselect_b64 s[62:63], 0, -1
    """)
    for i in range(4): A(f"v_mov_b32 v{232+i}, 0x3f803f80")
    A("s_waitcnt lgkmcnt(0)")
    srd(WS, P_WS, WS_SIZE)
    SET = (16, 32)
    def reads(ks, st):
        b = SET[st]
        L = [f"ds_read_b128 v[{b}:{b+3}], v{4+ks}"]
        L += [f"ds_read_b64_tr_b16 v[{b+8+2*t}:{b+9+2*t}], v13 offset:{ks*4096+t*512}" for t in range(2)]
        L += [f"ds_read_b128 v[{b+4}:{b+7}], v{4+ks} offset:4096"]
        L += [f"ds_read_b64_tr_b16 v[{b+12+2*t}:{b+13+2*t}], v13 offset:{ks*4096+1024+t*512}" for t in range(2)]
        return L
    def mf(st, nm, mb):
        b = SET[st]; p = "kv".index(nm); d = ACC[nm][mb]
        return f"v_mfma_f32_32x32x16_bf16 v[{d}:{d+15}], v[{b+4*mb}:{b+4*mb+3}], v[{b+8+4*p}:{b+11+4*p}], v[{d}:{d+15}]"
    A("s_mov_b32 s4, 0")
    first_stamp()
    A("s_barrier")
    stamp()
    for r in reads(0, 0): A(r)
    A("K_G_LOOP:")
    for ks in range(4):
        st = ks & 1
        M = [mf(st, "k", 0), mf(st, "k", 1), mf(st, "v", 0), mf(st, "v", 1)]
        A("s_waitcnt lgkmcnt(0)")
        if ks == 1: A("s_barrier")
        if ks == 3: A("s_barrier\ns_cbranch_scc0 K_G_TAIL")
        R = reads((ks+1) & 3, st ^ 1)
        A(M[0]); [A(r) for r in R[0:3]]
        A(M[1]); [A(r) for r in R[3:6]]
        A(M[2])
        if ks == 2:
            for i in range(4): A(f"v_add_u32 v{4+i}, 16384, v{4+i}")
            A("v_xor_b32 v13, 16384, v13")
            A("s_add_u32 s4, s4, 1\ns_cmp_lt_u32 s4, 8")
        A(M[3])
    A("s_branch K_G_LOOP")
    A("K_G_TAIL:")
    for m in M: A(m)
    stamp()
    TMP = 208; PK = (16, 24); KVA = 96; ZA = 112
    V = phi_ops(ACC["k"][0], PK[0], TMP, False) + phi_ops(ACC["k"][1], PK[1], TMP, False)
    V += [f"v_cvt_pk_bf16_f32 v{ACC['v'][mb]+i}, v{ACC['v'][mb]+2*i}, v{ACC['v'][mb]+2*i+1}" for mb in range(2) for i in range(8)]
    KM = []
    for z in range(2):
        for mb in range(2):
            for fr in range(2):
                d = ZA if z else KVA
                pk = f"v[{PK[mb]+4*fr}:{PK[mb]+4*fr+3}]"
                vv = "v[232:235]" if z else f"v[{ACC['v'][mb]+4*fr}:{ACC['v'][mb]+4*fr+3}]"
                KM.append(f"v_mfma_f32_32x32x16_bf16 v[{d}:{d+15}], {vv}, {pk}, {'0' if mb+fr == 0 else f'v[{d}:{d+15}]'}")
    SEL = [f"v_cndmask_b32_e64 v{KVA+j}, v{KVA+j}, v{KVA+8+j}, s[14:15]" for j in range(8)]
    SEL += [f"v_cndmask_b32_e64 v{40+j}, v{KVA+4+j}, v{KVA+j}, s[62:63]" for j in range(4)]
    SEL += ["ds_write_b128 v58, v[40:43]"]
    SEL += [f"v_cndmask_b32_e64 v{36+j}, v{KVA+j}, v{KVA+4+j}, s[62:63]" for j in range(4)]
    SEL += [f"ds_write_b32 v60, v{ZA} offset:1024"]
    tot = sum(cost(x) for x in V)
    for seg in range(6):
        if seg == 1: A(f"s_load_dwordx8 s[64:71], s[{P_DBG}:{P_DBG+1}], 0")
        if 1 <= seg <= 4:
            c = 0
            while V and (c < tot//4 + 4 or seg == 4):
                x = V.pop(0); A(x); c += cost(x)
        if seg == 4:
            for m in KM[:4]: A(m)
        if seg == 5:
            for m in KM[4:]: A(m)
            for x in SEL: A(x)
            A("s_waitcnt lgkmcnt(0)")
        A("s_barrier")
    A("ds_read_b128 v[40:43], v59\nds_read_b32 v44, v61 offset:1024")
    stamp()
    init_check("G", 62)
    A("s_waitcnt lgkmcnt(0)")
    for j in range(4): A(f"v_add_f32 v{36+j}, v{36+j}, v{40+j}")
    A(f"v_add_f32 v44, v44, v{ZA}")
    for j in range(4): A(f"buffer_atomic_add_f32 v{36+j}, v15, s[{WS}:{WS+3}], 0 offen offset:{j*64}")
    A(f"""
    s_cmp_lg_u32 s8, 0
    s_cbranch_scc1 K_NOZ
    s_mov_b32 exec_hi, 0
    buffer_atomic_add_f32 v44, v14, s[{WS}:{WS+3}], 0 offen offset:1024
    s_mov_b32 exec_hi, -1
K_NOZ:
    s_barrier
    """)
    p2_ids()
    p2_compute_setup()
    wo_setup()
    A("s_waitcnt vmcnt(0)")
    stamp()
    A("s_barrier")
    NE = opt("woe", 3)
    for st in range(NE): wo_dma(st)
    A("s_barrier")
    for st in range(NE, 8): wo_dma(st)

TROW = 528
TCH = 28672
AOFF = [r*TROW + (48 if r >= 16 else 0) + (64 if r == 21 else 0) for r in range(22)]
L_TB = 22*TROW + 128
assert L_TB + 32*TROW <= TCH
UB = 4*TCH
L_U = 0
L_KR0 = L_U + 4608
L_KR1 = L_KR0 + 1152 + 64
L_T = L_KR1 + 1152 + 64
TSEQ = 192
TCOPY = 6*TSEQ + 64
CH = (L_T + 2*TCOPY + 255)//256*256
L_CNT = UB + 4*CH
assert L_CNT + 64 <= 163840
AROWS = list(range(9)) + [256,258,260,262,264] + [516,520,772,776] + [1032,1288,1544,1800]
HROWS = ([0,1,2,3,4,5,6,7,8,516,520,772,776,0,0,0], [256,256,258,260,260,260,262,264,264,1032,1288,1544,1800,0,0,0])
BOX = [(3,3,-16),(5,6,-16),(3,11,-16),(5,14,-24),(7,5,-16),(9,12,-24)]

def ssm_tables():
    T = []
    for lane in range(64):
        R = lane & 31; hf = lane >> 5
        g = R >> 3; h = (R >> 2) & 1; i = R & 3
        ta = AOFF[AROWS.index(HROWS[h][4*g+i])] + hf*16
        b = lane & 15; q = lane >> 4
        p0 = 535 - 32*16 - b + 8*q
        kr = (L_KR1 + 2*(p0+1)) if (p0 & 1) else (L_KR0 + 2*p0)
        p0 = 15 - b + 4*q
        tf = (L_T + TCOPY + 2*(p0+1)) if (p0 & 1) else (L_T + 2*p0)
        fr = L_U + 512 - 32 - 64*7 + 32*b + 16*q
        T += [ta, kr, tf, fr]
    for lane in range(64):
        j = lane & 31; h = lane >> 5
        for kap in range(4):
            if h == 0:
                seq = 2*(j & 1) + (kap & 1); kp = 32 + 16*(kap >> 1) + (j >> 1); Q0 = 79
            else:
                seq = 4 + (j & 1); kp = 64 + 16*kap + (j >> 1); Q0 = 127
            T.append(L_T + seq*TSEQ + 2*(Q0 - kp))
    for lane in range(64):
        b = lane & 15; q = lane >> 4
        h = [0xffff if (16 + b - (8*q+i)) in (3, 4) else 0 for i in range(8)]
        T += [h[2*i] | (h[2*i+1] << 16) for i in range(4)]
    for (ln, o, off) in BOX:
        for lane in range(64):
            b = lane & 15; q = lane >> 4
            h = [0x3f80 if (b - o - ln + 1 <= off + 8*q + i <= b - o) else 0 for i in range(8)]
            T += [h[2*i] | (h[2*i+1] << 16) for i in range(4)]
    return T

def ssm_helper():
    X = SA
    A(f"""
    s_sub_u32 s9, s3, 4          ; w
    s_and_b32 s6, s4, 3          ; mg
    s_lshr_b32 s7, s4, 2         ; ng
    s_lshl_b32 s10, s6, 9
    s_lshl_b32 s11, s5, 4
    s_add_u32 s10, s10, s11
    s_lshl_b32 s11, s7, 8
    s_add_u32 s14, s10, s11
    s_lshl_b32 s15, s9, 2
    s_add_u32 s14, s14, s15
    s_xor_b32 s11, s11, 256
    s_add_u32 s10, s10, s11
    v_add_u32 v6, s10, v0
    v_lshlrev_b32 v6, 10, v6
    v_subrev_u32 v7, 16, v0
    v_mul_u32_u24 v8, 43, v7
    v_bfe_u32 v8, v8, 9, 3               ; /12
    v_mul_u32_u24 v9, 12, v8
    v_sub_u32 v9, v7, v9                 ; %12
    s_lshl_b32 s10, s5, 2
    v_add_u32 v8, s10, v8
    v_mul_u32_u24 v8, 3072, v8
    v_bfe_u32 v11, v9, 2, 2
    v_lshl_add_u32 v8, v11, 10, v8
    v_and_b32 v11, 3, v9
    v_lshl_add_u32 v8, v11, 7, v8
    s_lshl_b32 s10, s7, 9
    v_add_u32 v8, s10, v8
    s_mov_b64 s[10:11], 0xffff
    v_cndmask_b32_e64 v6, v8, v6, s[10:11]
    v_mov_b32 v7, {64*3072}
    v_mov_b32 v8, 128
    v_cndmask_b32_e64 v7, v7, v8, s[10:11]
    s_lshl_b32 s15, s14, 10
    v_lshlrev_b32 v12, 4, v0
    v_add_u32 v13, s15, v12
    s_waitcnt lgkmcnt(0)
    v_mov_b32 v8, s{P_W}
    v_mov_b32 v9, s{P_X}
    v_cndmask_b32_e64 v8, v8, v9, s[10:11]
    v_mov_b32 v9, s{P_W+1}
    v_mov_b32 v11, s{P_X+1}
    v_cndmask_b32_e64 v9, v9, v11, s[10:11]
    """)
    first_stamp()
    srd(X, P_X, 0x200000)
    def pf_half(c0, dst):
        A(f"""
        s_lshr_b32 s60, s9, 1
        s_add_u32 s60, s60, {c0}
        v_mad_u32_u24 v14, v7, s60, v6
        v_add_co_u32 v14, vcc, v8, v14
        v_addc_co_u32 v15, vcc, 0, v9, vcc
        s_bitcmp1_b32 s9, 0
        s_cselect_b32 exec_lo, 0, -1
        s_cselect_b32 exec_hi, -1, 0
        global_load_dword v{dst}, v[14:15], off
        s_mov_b64 exec, -1
        """)
    def gate_loads():
        for r in range(4):
            A(f"buffer_load_dwordx4 v[{48+4*r}:{51+4*r}], v13, s[{X}:{X+3}], 0 offen offset:{r*1024}")
        A(f"global_load_dwordx4 v[64:67], v12, s[{P_GW}:{P_GW+1}]")
    A("s_barrier")
    pf_half(2, 44)
    gate_loads()
    srd(WS, P_WS, WS_SIZE)
    for r in range(4): A(f"v_mov_b32 v{40+r}, 0")
    A(f"""
    v_mov_b32 v39, {L_CNT}
    ds_write_b32 v39, v40
    s_lshl_b32 s61, s5, 2
    s_add_u32 s61, s61, s9       ; 4js + w
    s_cmp_lg_u32 s61, 3
    s_cbranch_scc1 K_H_NOZ
    s_mul_i32 s13, s4, {4*HS}
    s_add_u32 s13, s13, {hex(KV_OFF)}
    """)
    A(f"""
    v_bfe_u32 v39, v0, 2, 2
    v_mul_u32_u24 v39, {HS}, v39
    v_and_b32 v36, 3, v0
    v_lshl_add_u32 v39, v36, 4, v39
    s_mov_b64 exec, 0xffff
    buffer_store_dwordx4 v[40:43], v39, s[{WS}:{WS+3}], s13 offen offset:1024 sc0 sc1
    s_mov_b64 exec, -1
    """)
    for i in range(4):
        A(f"buffer_store_dwordx4 v[40:43], v12, s[{WS}:{WS+3}], s13 offen sc0 sc1")
        if i < 3: A(f"s_add_u32 s13, s13, {HS}")
    A(f"""
    s_lshl_b32 s13, s4, 14
    s_add_u32 s13, s13, {hex(CT_OFF)}
    v_lshlrev_b32 v39, 8, v0
    buffer_store_dword v40, v39, s[{WS}:{WS+3}], s13 offen sc0 sc1
K_H_NOZ:
    """)
    pf_half(4, 45)
    A(f"""
    s_lshl_b32 s15, s9, 6
    v_add_u32 v1, s15, v0        ; t = 0..255
    s_lshl_b32 s15, s4, 7
    s_lshl_b32 s60, s5, 3
    s_add_u32 s15, s15, s60
    v_lshlrev_b32 v2, 10, v1
    v_add_u32 v2, s15, v2
    s_lshl_b32 s60, s5, 7
    s_lshl_b32 s62, s9, 5
    s_add_u32 s60, s60, s62
    v_and_b32 v11, 31, v0
    v_add_u32 v11, s60, v11
    v_lshlrev_b32 v11, 10, v11
    v_add_u32 v11, s15, v11      ; this workgroup's share of the u slab
    """)
    UF = opt("ufirst", 1)
    if UF: A(f"buffer_load_dword v47, v11, s[{X}:{X+3}], 0 offen")
    pf_half(6, 46)
    if not UF: A(f"buffer_load_dword v47, v11, s[{X}:{X+3}], 0 offen")
    A(f"""
    s_lshr_b32 s60, s9, 1
    s_lshl_b32 s60, s60, 6
    s_and_b32 s62, s9, 1
    s_lshl_b32 s62, s62, 1
    s_add_u32 s60, s60, s62
    s_lshl_b32 s62, s5, 2
    s_add_u32 s60, s60, s62
    v_bfe_u32 v14, v0, 2, 1
    v_add_u32 v14, s60, v14
    v_mul_u32_u24 v14, 3072, v14
    v_and_b32 v15, 3, v0
    v_lshl_add_u32 v14, v15, 7, v14
    s_lshl_b32 s60, s7, 9
    v_add_u32 v14, s60, v14
    global_load_dword v38, v14, s[{P_W}:{P_W+1}]
    s_waitcnt vmcnt(4)
    s_cmp_lg_u32 s61, 3
    s_cbranch_scc1 K_H_NOF
    s_lshl_b32 s13, s4, 2
    v_mov_b32 v6, s13
    v_mov_b32 v7, 1
    s_mov_b64 exec, 1
    global_store_dword v6, v7, s[{P_DBG}:{P_DBG+1}] sc0 sc1
    s_mov_b64 exec, -1
K_H_NOF:
    """)
    stamp()
    for r in range(4): A(f"v_mov_b32 v{68+r}, 0")
    for k in range(4):
        for r in range(4): A(f"v_dot2c_f32_bf16 v{68+r}, v{48+4*r+k}, v{64+k}")
    for m in ("row_shr:1","row_shr:2","row_shr:4","row_shr:8"):
        for r in range(4): A(f"v_add_f32_dpp v{68+r}, v{68+r}, v{68+r} {m} row_mask:0xf bank_mask:0xf bound_ctrl:0")
    for m in ("row_bcast:15 row_mask:0xa","row_bcast:31 row_mask:0xc"):
        for r in range(4): A(f"v_add_f32_dpp v{68+r}, v{68+r}, v{68+r} {m} bank_mask:0xf")
    for r in range(4): A(f"v_mul_f32 v{68+r}, {hex(f2u(-1.4426950408889634))}, v{68+r}")
    for r in range(4): A(f"v_exp_f32 v{68+r}, v{68+r}")
    for r in range(4): A(f"v_add_f32 v{68+r}, 1.0, v{68+r}")
    for r in range(4): A(f"v_rcp_f32 v{68+r}, v{68+r}")
    A(f"""
    s_lshl_b32 s10, s14, 2
    s_add_u32 s10, s10, {hex(G_OFF)}
    v_mov_b32 v10, s10
    s_mov_b32 exec_lo, 0
    s_mov_b32 exec_hi, 0x80000000
    buffer_store_dwordx4 v[68:71], v10, s[{WS}:{WS+3}], 0 offen sc1
    s_mov_b64 exec, -1
    v_lshlrev_b32 v3, 1, v1
    v_add_u32 v3, {UB+L_U+512}, v3
    """)
    WOP = opt("wop", 5)
    commit()
    p2_ids()
    seq = []
    def stage_block(b):
        younger = len(seq) - 1 - seq.index(("g", b))
        A(f"s_waitcnt vmcnt({younger})")
        A(f"ds_write_b16 v3, v{16+2*b} offset:{512*b}")
        A(f"ds_write_b16_d16_hi v3, v{16+2*b} offset:{CH+512*b}")
        A(f"ds_write_b16 v3, v{17+2*b} offset:{2*CH+512*b}")
        A(f"ds_write_b16_d16_hi v3, v{17+2*b} offset:{3*CH+512*b}")
        A("s_waitcnt lgkmcnt(0)")
        stamp()
        A("s_barrier")
    LA = opt("gla", 2)
    for i in range(8):
        if i == WOP:
            wo_touch(37); seq.append(("p", 0))
        A(f"s_mov_b32 s13, {i<<18}")
        A(f"buffer_load_dwordx2 v[{16+2*i}:{17+2*i}], v2, s[{X}:{X+3}], s13 offen"); seq.append(("g", i))
        if i >= LA: stage_block(i-LA)
    wo_setup()
    st = 0
    for b in range(8-LA, 8):
        for _ in range(2):
            wo_dma(st); seq += [("w", st)]*2; st += 1
        stage_block(b)
    while st < 8:
        wo_dma(st); st += 1
    commit()
    A(f"s_load_dwordx8 s[64:71], s[{P_DBG}:{P_DBG+1}], 0")
    p2_loader_setup()
    A("s_waitcnt lgkmcnt(0)")
    init_check("H", 62)
    A("s_waitcnt vmcnt(0)")
    st_set(11)
    stamp()

def cmul(d, x, y):
    return [f"v_pk_mul_f32 v[{d}:{d+1}], v[{x}:{x+1}], v[{y}:{y+1}] op_sel:[0,0] op_sel_hi:[1,0]",
            f"v_pk_fma_f32 v[{d}:{d+1}], v[{x}:{x+1}], v[{y}:{y+1}], v[{d}:{d+1}] op_sel:[1,1,0] op_sel_hi:[0,1,1] neg_lo:[1,0,0]"]
def cv2(src, tmp): return [f"v_cvt_pk_bf16_f32 v{tmp}, v{src}, v{src+1}", f"v_cvt_pk_bf16_f32 v{tmp+1}, v{src+2}, v{src+3}"]
def cm2(d, x, y):
    c0 = cmul(d, x, y); c1 = cmul(d+2, x+2, y+2)
    return [c0[0], c1[0], c0[1], c1[1]]

def ssm_compute():
    first_stamp()
    A("""
    v_lshlrev_b32 v2, 4, v0
    s_add_u32 s60, s62, K_TABLE-K_PC0
    s_addc_u32 s61, s63, 0
    """)
    MISC, TW, CORR, BOXR = 244, 240, 236, 212
    dst = [MISC, TW, CORR] + [BOXR+4*n for n in range(6)]
    def table_loads(lo, hi):
        for n in range(lo, hi):
            if n in (4, 8): A("v_add_u32 v2, 4096, v2")
            A(f"global_load_dwordx4 v[{dst[n]}:{dst[n]+3}], v2, s[60:61] offset:{(n%4)*1024}")
    table_loads(0, 9)
    A("s_barrier")
    srd(WS, P_WS, WS_SIZE)
    A(f"""
    s_mul_i32 s8, s3, {CH}
    s_add_u32 s8, s8, {UB}
    s_mul_i32 s11, s3, {TCH}
    v_mov_b32 v16, 0
    v_mov_b32 v17, 0
    v_mov_b32 v18, 0
    v_mov_b32 v19, 0
    v_lshlrev_b32 v3, 4, v0
    v_add_u32 v3, s8, v3
    """)
    zl = CH - L_KR0
    for o in range(0, zl, 1024): A(f"ds_write_b128 v3, v[16:19] offset:{L_KR0+min(o, zl-1024)}")
    A(f"""
    v_lshlrev_b32 v3, 3, v0
    v_add_u32 v11, s8, v3
    ds_write_b64 v11, v[16:17] offset:{L_U}
    v_add_u32 v3, s11, v3
    v_add_u32 v11, {L_TB}, v3
    s_waitcnt vmcnt(16)
    v_mul_f32 v10, {hex(LOG2E)}, v10
    v_exp_f32 v10, v10
    v_cvt_pk_bf16_f32 v10, v10, v10
    v_and_b32 v10, 0xffff0000, v10   ; dt
    s_waitcnt vmcnt(14)
    """)
    stamp()
    for n in range(2):
        A(f"v_lshlrev_b32 v{20+2*n}, 16, v{4+n}")
        A(f"v_and_b32 v{21+2*n}, 0xffff0000, v{4+n}")
    for r in range(20, 24): A(f"v_mul_f32 v{r}, v10, v{r}")
    AV = {r: 48 + 4*n for n, r in enumerate(AROWS)}
    E1, E256, E8, E16 = 136, 140, 144, 148
    C = (152, 156, 160, 164)
    Es = ((E8, 8, -1.0, 32), (E16, 16, -1.0, 36), (E1, 1, 1.0, 40), (E256, 256, 1.0, 44))
    for (E, r, sgn, t) in Es:
        for m in range(2):
            A(f"v_mul_f32 v{t+m}, {hex(f2u(r*1.4426950408889634))}, v{20+m}")
            A(f"v_mul_f32 v{t+2+m}, {hex(f2u(sgn*r*0.15915494309189535))}, v{22+m}")
    for (E, r, sgn, t) in Es:
        for m in range(2):
            A(f"v_exp_f32 v{t+m}, v{t+m}")
            A(f"v_fract_f32 v{t+2+m}, v{t+2+m}")
    for (E, r, sgn, t) in Es:
        for m in range(2):
            A(f"v_cos_f32 v{E+2*m}, v{t+2+m}")
            A(f"v_sin_f32 v{E+2*m+1}, v{t+2+m}")
    for (E, r, sgn, t) in Es:
        for m in range(2):
            A(f"v_mul_f32 v{E+2*m}, v{t+m}, v{E+2*m}")
            A(f"v_mul_f32 v{E+2*m+1}, v{t+m}, v{E+2*m+1}")
    A(f"""
    v_mov_b32 v{C[0]}, 1.0
    v_mov_b32 v{C[0]+1}, 0
    v_mov_b32 v{C[0]+2}, 1.0
    v_mov_b32 v{C[0]+3}, 0
    v_mov_b64 v[{C[2]}:{C[2]+1}], v[{E8}:{E8+1}]
    v_mov_b64 v[{C[2]+2}:{C[2]+3}], v[{E8+2}:{E8+3}]
    s_mov_b32 s9, 8
K_S_BL:
    """)
    for half in range(2):
        e, en = C[half], C[half ^ 1]
        o, on = C[2 + half], C[2 + (half ^ 1)]
        me = cm2(en, e, E16); mo = cm2(on, o, E16)
        t = 168 + 4*half
        ce = cv2(e, t); co = cv2(o, t+2)
        for x in (me[0], me[1], mo[0], mo[1], ce[0], ce[1], me[2], me[3], co[0], co[1], mo[2], mo[3]): A(x)
        A(f"ds_write2_b64 v11, v[{t}:{t+1}], v[{t+2}:{t+3}] offset0:{132*half} offset1:{132*half+66}")
    A(f"""
    v_add_u32 v11, {4*TROW}, v11
    s_sub_u32 s9, s9, 1
    s_cmp_lg_u32 s9, 0
    s_cbranch_scc1 K_S_BL
    s_waitcnt vmcnt(0)
    """)
    stamp()
    for n in range(2, 6):
        A(f"v_lshlrev_b32 v{20+2*n}, 16, v{4+n}")
        A(f"v_and_b32 v{21+2*n}, 0xffff0000, v{4+n}")
    for r in range(24, 28): A(f"v_mul_f32 v{r}, v10, v{r}")
    for m in range(2):
        d = AV[0] + 2*m
        A(f"v_mul_f32 v{d}, v{28+m}, v{24+m}")
        A(f"v_mul_f32 v{d+1}, v{28+m}, v{26+m}")
        A(f"v_fma_f32 v{d}, -v{30+m}, v{26+m}, v{d}")
        A(f"v_fma_f32 v{d+1}, v{30+m}, v{24+m}, v{d+1}")
    steps = [(0, None, None)] + [(r, r-1, E1) for r in range(1, 9)] + [(r, r-256, E256) for r in AROWS[9:]]
    pend = []; base = 0
    for n in range(0, 22, 2):
        flat = [x for (r, src, E) in steps[n:n+2] if src is not None for x in cm2(AV[r], AV[src], E)]
        for k, x in enumerate(flat):
            A(x)
            if pend and k % 2 == 1: A(pend.pop(0))
        for x in pend: A(x)
        t = 168 + 4*((n >> 1) & 1)
        pend = cv2(AV[steps[n][0]], t) + cv2(AV[steps[n+1][0]], t+2)
        pend.append(f"ds_write2_b64 v3, v[{t}:{t+1}], v[{t+2}:{t+3}] offset0:{(AOFF[n]-base)//8} offset1:{(AOFF[n+1]-base)//8}")
        if n % 4 == 2:
            pend.append(f"v_add_u32 v3, {4*TROW}, v3"); base += 4*TROW
    for x in pend: A(x)
    stamp()
    A(f"v_add_u32 v{MISC}, s11, v{MISC}")
    for r in list(range(MISC+1, MISC+4)) + list(range(TW, TW+4)): A(f"v_add_u32 v{r}, s8, v{r}")
    A(f"""
    v_and_b32 v4, 31, v0
    v_mul_u32_u24 v4, {TROW}, v4
    v_lshrrev_b32 v5, 5, v0
    v_lshl_add_u32 v4, v5, 4, v4
    v_add_u32 v4, s11, v4
    """)
    KA = 16; FR = 40
    def kmf(t): return f"v_mfma_f32_32x32x16_bf16 v[{KA}:{KA+15}], v[{FR+8*t}:{FR+8*t+3}], v[{FR+8*t+4}:{FR+8*t+7}], {'0' if t == 0 else f'v[{KA}:{KA+15}]'}"
    for s_ in range(16):
        A(f"ds_read_b128 v[{FR+8*s_+4}:{FR+8*s_+7}], v4 offset:{L_TB+32*s_}")
        A(f"ds_read_b128 v[{FR+8*s_}:{FR+8*s_+3}], v{MISC} offset:{32*s_}")
        if s_ >= 5:
            A(f"s_waitcnt lgkmcnt(10)")
            A(kmf(s_-5))
    A(f"""
    s_mov_b64 s[14:15], 1
    v_cndmask_b32_e64 v5, 0, v252, s[14:15]
    v_lshlrev_b32 v6, 4, v0
    v_sub_u32 v6, {L_KR0+1088}, v6
    v_add_u32 v6, s8, v6
    v_mov_b32 v7, s8
    """)
    for t in range(11, 16):
        A(f"s_waitcnt lgkmcnt({2*(15-t)})")
        A(kmf(t))
    A(f"""
    s_lshl_b32 s9, s7, 12
    s_add_u32 s9, s9, {hex(BT_OFF)}
    v_and_b32 v1, 15, v0
    v_lshrrev_b32 v2, 4, v0
    v_lshlrev_b32 v1, 5, v1
    v_lshl_add_u32 v1, v2, 3, v1
    v_add_u32 v8, 512, v{MISC+1}
    v_add_u32 v9, 1024, v{MISC+1}
    v_add_u32 v2, 768, v{MISC+2}
    v_add_f32 v{KA}, v{KA}, v5
    """)
    for i in range(4): A(f"v_cvt_pk_bf16_f32 v{40+i}, v{KA+7-2*i}, v{KA+6-2*i}")
    A(f"ds_write_b128 v6, v[40:43]")
    for i in range(4): A(f"v_cvt_pk_bf16_f32 v{44+i}, v{KA+8-2*i}, v{KA+7-2*i}")
    A(f"ds_write_b128 v6, v[44:47] offset:{L_KR1-L_KR0}")
    A(f"""
    v_cvt_pk_bf16_f32 v52, v{KA+8}, v{KA+8}
    s_mov_b64 exec, 1
    ds_write_b16_d16_hi v7, v43 offset:{L_KR1+2*552}
    s_mov_b32 exec_lo, 0
    s_mov_b32 exec_hi, 0x80000000
    ds_write_b32 v7, v52 offset:{L_KR0+2*38}
    ds_write_b16 v7, v52 offset:{L_KR0+2*37}
    ds_write_b32 v7, v52 offset:{L_KR1+2*38}
    s_mov_b64 exec, -1
    """)
    for k in range(4): A(f"v_cvt_pk_bf16_f32 v{48+k}, v{KA+9+k}, v{KA+9+k}")
    for k in range(4):
        A(f"ds_write_b16 v{TW+k}, v{48+k}")
        A(f"ds_write_b16 v{TW+k}, v{48+k} offset:{TCOPY+2}")
    A("v_readlane_b32 s15, v51, 31      ; (K1024,K1024)")
    for i in range(4): A(f"v_and_b32 v{CORR+i}, s15, v{CORR+i}")
    stamp()
    AFB = 56; TFB = 124; ACC = 164; FB = 12; GB = 44; TMP = 196
    def af(c): return AFB + 4*c
    def aread(c):
        o = 16*(16-c)
        base, oo = (MISC+1, o) if o < 128 else ((8, o-128) if o < 256 else (9, o-256))
        return [f"ds_read2_b32 v[{af(c)}:{af(c)+1}], v{base} offset0:{oo} offset1:{oo+1}",
                f"ds_read2_b32 v[{af(c)+2}:{af(c)+3}], v{base} offset0:{oo+2} offset1:{oo+3}"]
    def tf(pair, dl): return TFB + 4*((dl-2) + 3*pair if pair < 2 else 6 + dl - 4)
    TR = []
    for pair in range(3):
        dls = (2,3,4) if pair < 2 else (4,5,6,7)
        for dl in dls:
            r = tf(pair, dl)
            for hh in range(2):
                o = ((2*pair+hh)*TSEQ + 32*(dls[-1]-dl))//4
                base, oo = (MISC+2, o) if o < 192 else (2, o-192)
                TR.append(f"ds_read2_b32 v[{r+2*hh}:{r+2*hh+1}], v{base} offset0:{oo} offset1:{oo+1}")
    BT_ = [TMP, TMP+8, 48]
    XR = [240, 248, 8]
    FA = MISC+3
    started = set()
    def mm(t, a_, b_):
        c = f"v[{ACC+4*t}:{ACC+4*t+3}]" if t in started else "0"
        started.add(t)
        return f"v_mfma_f32_16x16x32_bf16 v[{ACC+4*t}:{ACC+4*t+3}], v[{a_}:{a_+3}], v[{b_}:{b_+3}], {c}"
    def far(tau):
        return [mm(tau+dl, XR[pair], tf(pair, dl)) for pair in range(3) for dl in ((2,3,4) if pair < 2 else (4,5,6,7)) if tau + dl < 8]
    def store(t):
        return [f"v_cvt_pk_bf16_f32 v6, v{ACC+4*t}, v{ACC+4*t+1}", f"v_cvt_pk_bf16_f32 v7, v{ACC+4*t+2}, v{ACC+4*t+3}",
                f"buffer_store_dwordx2 v[6:7], v1, s[{WS}:{WS+3}], s9 offen offset:{512*t} sc1"]
    def rdF(tau, rho): return f"ds_read_b128 v[{FB+4*rho}:{FB+4*rho+3}], v{FA} offset:{512*tau+448-64*rho}"
    def rdG(tau): return f"ds_read_b128 v[{GB}:{GB+3}], v{FA} offset:{512*tau+432}"
    npairs = lambda tau: 3 if tau < 4 else (2 if tau < 6 else 0)
    for c in range(17):
        for x in aread(c): A(x)
    TPRE = opt("tpre", 1)
    if TPRE:
        for x in TR: A(x)
    A("s_barrier")
    A(rdF(0, 0)); A(rdG(0))
    for rho in range(1, 8): A(rdF(0, rho))
    for tau in range(8):
        if tau < 7: A("s_barrier")
        if tau in (0, 6): stamp()
        npair = npairs(tau)
        full = tau <= 4
        A("s_waitcnt lgkmcnt(0)" if full else "s_waitcnt lgkmcnt(7)")
        for pair in range(npair):
            for hh in range(2):
                sq = 2*pair + hh
                src = GB if BOX[sq][2] == -24 else FB
                d = BT_[pair] + 4*hh
                A(f"v_mfma_f32_16x16x32_bf16 v[{d}:{d+3}], v[{src}:{src+3}], v[{BOXR+4*sq}:{BOXR+4*sq+3}], 0")
        if tau + 2 < 8: A(mm(tau+2, af(16), FB))
        if tau + 4 < 8: A(mm(tau+4, CORR, FB))
        CVT = [f"v_cvt_pk_bf16_f32 v{XR[pair]+i}, v{BT_[pair]+2*i}, v{BT_[pair]+2*i+1}" for pair in range(npair) for i in range(4)]
        ST = store(tau-1) if tau > 0 else []
        nnew = 0
        for rho in range(8):
            if rho > 0 and not full: A(f"s_waitcnt lgkmcnt({7-rho+nnew})")
            A(mm(tau, af(rho), FB+4*rho))
            if rho >= 1 and CVT: A(CVT.pop(0))
            if tau + 1 < 8: A(mm(tau+1, af(8+rho), FB+4*rho))
            if tau < 7:
                A(rdF(tau+1, rho)); nnew += 1
                if rho == 0 and npairs(tau+1): A(rdG(tau+1)); nnew += 1
                if tau == 0 and rho < 5 and not TPRE:
                    for x in TR[4*rho:4*rho+4]: A(x)
            if rho >= 1 and CVT: A(CVT.pop(0))
            if rho == 3 and not npair:
                for x in ST: A(x)
                ST = []
        assert not CVT
        if tau == 0 and not TPRE: A("s_waitcnt lgkmcnt(3)")
        for m in (far(tau) if npair else []):
            A(m)
            if ST: A(ST.pop(0))
        for x in ST: A(x)
    for x in store(7): A(x)
    stamp()
    p2_ids()
    p2_compute_setup()
    A(f"s_load_dwordx8 s[64:71], s[{P_DBG}:{P_DBG+1}], 0")
    A(f"""
    s_waitcnt vmcnt(0)
    v_mov_b32 v60, {L_CNT}
    v_mov_b32 v61, 1
    s_mov_b64 exec, 1
    ds_add_rtn_u32 v61, v60, v61
    s_mov_b64 exec, -1
    s_waitcnt lgkmcnt(0)
    v_readfirstlane_b32 s60, v61
    s_cmp_lg_u32 s60, 3
    s_cbranch_scc1 K_P2C
    """)
    init_check("S", 62)
    A("s_add_u32 s62, s4, 8")
    arrive("s62")
    A("s_branch K_P2C")

KVS = 576
L2_KV = 65536
L2_B = L2_KV + 32*KVS
L2_G = L2_B + 8192
L2_X = L2_G + 256
assert L2_X + 16384 <= UB
def p2_ids():
    A("""
    s_and_b32 s4, s2, 7
    s_lshr_b32 s5, s2, 3
    s_and_b32 s6, s4, 3
    s_lshl_b32 s6, s6, 3
    s_lshr_b32 s7, s4, 2
    s_lshl_b32 s7, s7, 2
    s_add_u32 s6, s6, s7
    s_and_b32 s7, s5, 3
    s_add_u32 s6, s6, s7         ; rt (0..31)
    s_lshr_b32 s7, s5, 2         ; ct (0..7)
    s_and_b32 s8, s3, 1          ; sw
    s_bfe_u32 s9, s3, 0x10001    ; kw
    """)
def wo_setup():
    A(f"""
    s_lshl_b32 s12, s9, 8
    s_lshl_b32 s13, s8, 4
    s_add_u32 s12, s12, s13      ; first wo row: 256kw + 16sw
    v_lshrrev_b32 v14, 3, v0
    v_add_u32 v14, s12, v14
    v_lshlrev_b32 v14, 10, v14
    v_bfe_u32 v15, v0, 4, 1
    v_lshlrev_b32 v15, 2, v15
    v_and_b32 v13, 7, v0
    v_xor_b32 v15, v15, v13
    v_lshl_add_u32 v14, v15, 4, v14
    s_lshl_b32 s13, s7, 7
    v_add_u32 v14, s13, v14      ; wo source
    s_lshl_b32 s12, s12, 7       ; wo lds base
    """)
    srd(SA, P_WO, 0x80000)
def wo_touch(dst):
    A(f"""
    s_and_b32 s60, s6, 3
    s_lshl_b32 s60, s60, 2
    s_and_b32 s61, s3, 3
    s_add_u32 s60, s60, s61
    s_lshl_b32 s60, s60, 15
    s_lshl_b32 s61, s7, 7
    s_add_u32 s60, s60, s61
    v_and_b32 v{dst}, 31, v0
    v_lshlrev_b32 v{dst}, 10, v{dst}
    v_add_u32 v{dst}, s60, v{dst}
    v_and_b32 v{dst-1}, 32, v0
    v_lshlrev_b32 v{dst-1}, 4, v{dst-1}
    v_sub_u32 v{dst}, v{dst}, v{dst-1}
    global_load_dword v{dst}, v{dst}, s[{P_WO}:{P_WO+1}]
    """)
def wo_dma(st):
    A(f"s_add_u32 s61, s7, {st}\ns_and_b32 s61, s61, 7\ns_lshl_b32 s61, s61, 15")
    for i in range(2):
        A(f"s_add_u32 m0, s12, {st*4096+i*1024}\ns_add_u32 s60, s61, {i*8192}")
        A(f"buffer_load_dwordx4 v14, s[{SA}:{SA+3}], s60 offen lds")

def p2_loader_setup():
    A(f"""
    v_lshlrev_b32 v1, 4, v0
    s_lshl_b32 s14, s9, 4
    s_add_u32 s14, s14, s8
    s_mul_i32 s10, s14, {HS}
    s_add_u32 s10, s10, {hex(KV_OFF)}
    v_add_u32 v2, s10, v1
    v_bfe_u32 v3, v0, 2, 3
    v_add_u32 v4, s7, v3
    v_and_b32 v4, 7, v4
    v_mul_u32_u24 v4, {2*HS}, v4
    v_and_b32 v5, 3, v0
    v_lshl_add_u32 v4, v5, 4, v4
    v_add_u32 v4, s10, v4        ; z source (+1024)
    s_mul_i32 s10, s14, {KVS}
    s_add_u32 s10, s10, {L2_KV}
    v_lshlrev_b32 v12, 3, v0
    v_add_u32 v12, s10, v12
    v_mul_u32_u24 v13, {2*KVS}, v3
    v_xor_b32 v5, 2, v5
    v_lshl_add_u32 v13, v5, 3, v13
    v_add_u32 v13, s10, v13
    v_lshrrev_b32 v10, 3, v0
    s_lshl_b32 s10, s7, 6
    v_add_u32 v10, s10, v10
    v_lshlrev_b32 v10, 12, v10
    v_bfe_u32 v6, v0, 4, 1
    v_lshlrev_b32 v6, 2, v6
    v_and_b32 v7, 7, v0
    v_xor_b32 v6, v6, v7
    v_lshl_add_u32 v10, v6, 4, v10
    s_lshl_b32 s10, s6, 7
    s_add_u32 s10, s10, {hex(BT_OFF)}
    v_add_u32 v10, s10, v10
    v_lshlrev_b32 v11, 2, v0     ; lane*4
    v_lshlrev_b32 v8, 8, v0
    s_add_u32 s10, s7, 8
    v_mov_b32 v9, s10
    s_add_u32 s10, s4, 8
    v_writelane_b32 v9, s10, 1
    v_lshlrev_b32 v9, 8, v9
    s_lshl_b32 s11, s5, 12
    s_add_u32 s11, s11, {hex(CT_OFF)}    ; replica j
    """)

def p2_loader():
    A("K_P2L:")
    st_set(12)
    if STAMP:
        A("s_waitcnt lgkmcnt(0)")
        for k in range(4): A(f"v_writelane_b32 v254, s{72+2*k}, {26+k}")
    for n in range(8):
        A(f"s_add_u32 s{64+n}, s7, {n}\ns_and_b32 s{64+n}, s{64+n}, 7\ns_mul_i32 s{64+n}, s{64+n}, {2*HS}")
    A(f"""
    s_setprio 3
    s_cmp_lg_u32 s3, 4
    s_cbranch_scc1 K_POLLA_DONE
    s_mov_b32 s13, 0
    s_mov_b64 exec, 0xff
K_POLLA:
    v_mov_b32 v15, 0
    buffer_atomic_add v15, v8, s[{WS}:{WS+3}], s11 offen sc0 sc1
    s_add_u32 s13, s13, 1
    s_waitcnt vmcnt(0)
    v_cmp_ne_u32 vcc, 16, v15
    s_cbranch_vccz K_POLLA_EXIT
    s_cmp_lt_u32 s13, 0x40000
    s_cbranch_scc1 K_POLLA
K_POLLA_EXIT:
    s_mov_b64 exec, -1
K_POLLA_DONE:
    """)
    stamp()
    A("s_barrier")
    NA = opt("na", 3)
    A(f"buffer_load_dwordx4 v[48:51], v4, s[{WS}:{WS+3}], 0 offen offset:1024 {KF_}")
    def ldk(n): A(f"buffer_load_dwordx4 v[{16+4*n}:{19+4*n}], v2, s[{WS}:{WS+3}], s{64+n} offen {KF_}")
    for n in range(NA): ldk(n)
    stamp()
    A(f"s_waitcnt vmcnt({NA})")
    A("v_cvt_pk_bf16_f32 v48, v48, v49\nv_cvt_pk_bf16_f32 v49, v50, v51\ns_mov_b32 exec_hi, 0\nds_write_b64 v13, v[48:49] offset:512\ns_mov_b32 exec_hi, -1")
    def stage(n, cnt):
        r = 16 + 4*n
        A(f"s_waitcnt vmcnt({cnt})")
        A(f"v_cvt_pk_bf16_f32 v{r}, v{r}, v{r+1}\nv_cvt_pk_bf16_f32 v{r+1}, v{r+2}, v{r+3}")
        A(f"ds_write_b64 v12, v[{r}:{r+1}] offset:{2*n*KVS}")
    for n in range(NA): stage(n, NA-1-n)
    ldk(NA); ldk(NA+1)
    A("s_waitcnt lgkmcnt(0)")
    stamp()
    A("s_barrier")
    for n in range(NA+2, 8): ldk(n)
    A(f"""
    s_cmp_eq_u32 s3, 4
    s_cselect_b64 exec, 3, 0
    v_mov_b32 v15, 0
    buffer_atomic_add v15, v9, s[{WS}:{WS+3}], s11 offen sc0 sc1
    s_mov_b64 exec, -1
    """)
    for n in range(NA, 8): stage(n, 8-n)
    A("s_waitcnt lgkmcnt(0)")
    stamp()
    A("s_cmp_lg_u32 s3, 4\ns_cbranch_scc1 K_P2L_OUT")
    A(f"""
    s_barrier
    s_mov_b32 s13, 0
    s_mov_b64 exec, 3
K_POLLB:
    s_waitcnt vmcnt(0)
    v_cmp_ne_u32 vcc, 16, v15
    s_cbranch_vccz K_POLLB_EXIT
    v_mov_b32 v15, 0
    buffer_atomic_add v15, v9, s[{WS}:{WS+3}], s11 offen sc0 sc1
    s_add_u32 s13, s13, 1
    s_cmp_lt_u32 s13, 0x40000
    s_cbranch_scc1 K_POLLB
K_POLLB_EXIT:
    s_mov_b64 exec, -1
    s_lshl_b32 s60, s6, 8
    s_add_u32 s60, s60, {hex(G_OFF)}
    """)
    stamp()
    A(f"buffer_load_dword v48, v11, s[{WS}:{WS+3}], s60 offen sc1")
    for i in range(8):
        A(f"s_mov_b32 s60, {i*32768}")
        A(f"buffer_load_dwordx4 v[{16+4*i}:{19+4*i}], v10, s[{WS}:{WS+3}], s60 offen sc1")
    A(f"v_add_u32 v1, {L2_B}, v1\nv_add_u32 v11, {L2_G}, v11\ns_waitcnt vmcnt(8)\nds_write_b32 v11, v48")
    for i in range(8):
        A(f"s_waitcnt vmcnt({7-i})\nds_write_b128 v1, v[{16+4*i}:{19+4*i}] offset:{i*1024}")
    A("s_waitcnt lgkmcnt(0)")
    stamp()
    A("K_P2L_OUT:")
    A("s_barrier")
    flush()
    A("s_endpgm")

CE = 96
def p2_compute_setup():
    A(f"""
    v_lshlrev_b32 v1, 4, v0
    s_lshl_b32 s12, s6, 1
    s_add_u32 s12, s12, s8       ; rb
    s_lshl_b32 s13, s12, 5
    s_lshl_b32 s14, s9, 4
    s_add_u32 s13, s13, s14
    s_lshl_b32 s13, s13, 10
    v_add_u32 v2, s13, v1
    s_lshl_b32 s13, s7, 6
    s_lshl_b32 s14, s9, 5
    s_add_u32 s13, s13, s14
    v_and_b32 v10, 31, v0
    s_lshl_b32 s14, s12, 5
    v_add_u32 v8, s14, v10       ; row
    v_lshrrev_b32 v9, 5, v0      ; hf
    v_lshlrev_b32 v12, 10, v8
    v_lshl_add_u32 v12, v9, 4, v12
    s_lshl_b32 s13, s13, 1
    v_add_u32 v12, s13, v12
    s_lshl_b32 s11, s8, 7
    s_add_u32 s11, s11, {L2_G}
    v_lshlrev_b32 v11, 2, v10
    v_add_u32 v11, s11, v11      ; g read
    v_min_u32 v3, 16, v10
    v_lshrrev_b32 v4, 4, v3
    v_xor_b32 v4, v4, v9
    v_lshlrev_b32 v3, 5, v3
    v_lshl_add_u32 v3, v4, 4, v3
    s_mul_i32 s11, s9, {16*KVS}
    s_add_u32 s11, s11, {L2_KV}
    v_add_u32 v3, s11, v3
    v_bfe_u32 v4, v0, 2, 2
    v_lshl_add_u32 v4, v9, 2, v4
    v_lshlrev_b32 v4, 7, v4
    v_bfe_u32 v5, v0, 4, 1
    v_lshl_add_u32 v4, v5, 5, v4
    v_and_b32 v5, 3, v0
    v_lshl_add_u32 v4, v5, 3, v4
    v_bfe_u32 v5, v0, 3, 1
    v_lshl_add_u32 v4, v5, 6, v4
    s_lshl_b32 s11, s8, 6
    v_xor_b32 v10, s11, v4
    s_lshl_b32 s11, s9, 12
    s_add_u32 s11, s11, {L2_B}
    v_add_u32 v10, s11, v10
    s_lshl_b32 s11, s9, 15
    v_add_u32 v4, s11, v4
    s_lshl_b32 s11, s9, 6
    v_xor_b32 v4, s11, v4        ; wo read, kept tile (jt=kw)
    v_xor_b32 v5, 64, v4         ; wo read, sent tile
    s_lshl_b32 s11, s3, 12
    s_add_u32 s11, s11, {L2_X}
    v_add_u32 v8, s11, v1
    s_xor_b32 s11, s3, 2
    s_lshl_b32 s11, s11, 12
    s_add_u32 s11, s11, {L2_X}
    v_add_u32 v9, s11, v1
    """)
    srd(SB, P_OUT, 0x200000)

def p2_compute():
    A("K_P2C:")
    if STAMP:
        A("s_waitcnt lgkmcnt(0)")
        for k in range(9): A(f"v_writelane_b32 v254, s{72+2*k}, {1+k}")
    st_set(12)
    ACC = (112, 128); OD = (64, 80); KF = (16, 20, 24); WF = (224, 232, 240); OF = (48, 52); BB = 144; PF = 160; BR = 56
    def ldp(h): return f"s_add_u32 s60, s13, {h*1024}\ns_and_b32 s60, s60, 0x3fff\nbuffer_load_dwordx4 v[{PF+4*h}:{PF+4*h+3}], v2, s[{WS}:{WS+3}], s60 offen {PF_}"
    def rd_k(h): return [f"ds_read_b128 v[{KF[h%3]}:{KF[h%3]+3}], v3 offset:{h*KVS}"]
    def rd_wo(h):
        b = WF[h % 3]
        return [f"ds_read_b64_tr_b16 v[{b+4*jt+2*t}:{b+4*jt+2*t+1}], v{4+jt} offset:{h*2048+t*1024}" for jt in (1, 0) for t in range(2)]
    def omf(h): return f"v_mfma_f32_32x32x16_bf16 v[{OD[h%2]}:{OD[h%2]+15}], v[{KF[h%3]}:{KF[h%3]+3}], v[{PF+4*h}:{PF+4*h+3}], v[{CE}:{CE+15}]"
    def norm(h):
        d = OD[h % 2]; o = OF[h & 1]
        return [f"v_rcp_f32 v{d+8}, v{d+8}"] + [f"v_mul_f32 v{d+i}, v{d+i}, v{d+8}" for i in range(8)] + [f"v_cvt_pk_bf16_f32 v{o+i}, v{d+2*i}, v{d+2*i+1}" for i in range(4)]
    def proj(h, jt):
        b = WF[h % 3]; o = OF[h & 1]
        c = "0" if h == 0 else f"v[{ACC[jt]}:{ACC[jt]+15}]"
        return f"v_mfma_f32_32x32x16_bf16 v[{ACC[jt]}:{ACC[jt]+15}], v[{b+4*jt}:{b+4*jt+3}], v[{o}:{o+3}], {c}"
    NP = opt("np", 6); NA = opt("na", 3)
    A("s_lshl_b32 s13, s7, 11")
    stamp()
    A("s_barrier")
    stamp()
    for i in range(16): A(f"v_mov_b32 v{CE+i}, {hex(EPS) if i >= 8 else 0}")
    for h in range(2): A(ldp(h))
    if opt("fine", 0):
        sv = St.lane; St.lane = 20
        stamp(); A("s_waitcnt vmcnt(2)"); stamp(); A("s_waitcnt vmcnt(1)"); stamp()
    A("s_waitcnt vmcnt(1)")
    for h in range(2, NP): A(ldp(h))
    if opt("fine", 0):
        stamp(); St.lane = sv
    A("s_barrier")
    stamp()
    for x in rd_k(0) + rd_k(1): A(x)
    out = [("k", 0), ("k", 1)]
    issued = NP
    for i in range(18):
        last = max([k for k, t in enumerate(out) if t in {("k", i), ("wo", i-2)}], default=-1)
        w = []
        if i < 16: w.append(f"vmcnt({issued-1-i})")
        if last >= 0:
            w.append(f"lgkmcnt({len(out)-1-last})"); del out[:last+1]
        if w: A("s_waitcnt " + " ".join(w))
        N = norm(i-1) if 0 <= i-1 < 16 else []
        if i < 16: A(omf(i))
        if i + 2 == 2*NA: A("s_barrier")
        R = []
        if i+2 < 16: R += [(x, ("k", i+2)) for x in rd_k(i+2)]
        if i == 16:
            A("s_barrier")
            R += [(f"ds_read_b64_tr_b16 v[{BR+2*g}:{BR+2*g+1}], v10 offset:{g*1024}", ("b", 0)) for g in range(4)]
            R += [("ds_read_b32 v13, v11", ("b", 0))]
        if i < 16: R += [(x, ("wo", i)) for x in rd_wo(i)]
        def emit(n):
            for x, t in R[:n]:
                A(x); out.append(t)
            del R[:n]
        for x in N[:1]: A(x)
        emit(2)
        for x in N[1:3]: A(x)
        if 0 <= i-2: A(proj(i-2, 1))
        emit(2)
        for x in N[3:8]: A(x)
        if 0 <= i-2: A(proj(i-2, 0))
        emit(2)
        for x in N[8:]: A(x)
        for _ in range(2 if i < 2 else 1):
            if issued < 16:
                A(ldp(issued)); issued += 1
    stamp()
    A("s_waitcnt lgkmcnt(0)\nv_sub_f32 v14, 1.0, v13")
    for i in range(4):
        A(f"v_lshlrev_b32 v{BB+2*i}, 16, v{BR+i}")
        A(f"v_and_b32 v{BB+2*i+1}, 0xffff0000, v{BR+i}")
    for g in range(4): A(f"ds_write_b128 v8, v[{ACC[1]+4*g}:{ACC[1]+4*g+3}] offset:{g*1024}")
    for i in range(4, 8):
        A(f"v_lshlrev_b32 v{BB+2*i}, 16, v{BR+i}")
        A(f"v_and_b32 v{BB+2*i+1}, 0xffff0000, v{BR+i}")
    A("s_waitcnt lgkmcnt(0)\ns_barrier")
    for g in range(4): A(f"ds_read_b128 v[{16+4*g}:{19+4*g}], v9 offset:{g*1024}")
    A("v_mov_b32 v15, v14\nv_mov_b32 v56, v13\nv_mov_b32 v57, v13")
    for i in range(0, 16, 2): A(f"v_pk_mul_f32 v[{BB+i}:{BB+i+1}], v[14:15], v[{BB+i}:{BB+i+1}]")
    for i in range(0, 16, 2): A(f"v_pk_fma_f32 v[{BB+i}:{BB+i+1}], v[56:57], v[{ACC[0]+i}:{ACC[0]+i+1}], v[{BB+i}:{BB+i+1}]")
    for p in range(2):
        A(f"s_waitcnt lgkmcnt({2-2*p})")
        for i in range(8*p, 8*p+8, 2): A(f"v_pk_fma_f32 v[{BB+i}:{BB+i+1}], v[56:57], v[{16+i}:{17+i}], v[{BB+i}:{BB+i+1}]")
        for i in range(4*p, 4*p+4): A(f"v_cvt_pk_bf16_f32 v{32+i}, v{BB+2*i}, v{BB+2*i+1}")
        A(f"v_permlane32_swap_b32 v{32+4*p}, v{34+4*p}")
        A(f"v_permlane32_swap_b32 v{33+4*p}, v{35+4*p}")
        A(f"buffer_store_dwordx4 v[{32+4*p}:{35+4*p}], v12, s[{SB}:{SB+3}], 0 offen offset:{32*p}")
    stamp()
    if STAMP: A("s_waitcnt vmcnt(0)")
    stamp()
    flush()

main()
lines, errs = hazard_pass(A.lines)
for e in errs: print(e, file=sys.stderr)
out = open("gated_mix__linear_attn_block__ssm_conv_s4__prompt.s.ref").read().split("; Override launch")[0]
out += "; @launch grid=(256,1,1) block=(512,1,1) lds=163840\n"
out += f'.amdgcn_target "amdgcn-amd-amdhsa--gfx950"\n.text\n.globl {KN}\n.type {KN},@function\n'
out += "\n".join(lines) + "\n"
T = ssm_tables()
out += ".p2align 8\n.type K_TABLE,@object\nK_TABLE:\n"
for i in range(0, len(T), 8):
    out += ".long " + ", ".join(hex(x) for x in T[i:i+8]) + "\n"
out += f".size K_TABLE, {4*len(T)}\nCODE_END:\n"
out += '.section .rodata,"a"\n' + kernel_desc(KN, 256, 102, 256)
fn = [x for x in sys.argv[1:] if not x.startswith("--")][0]
open(fn, "w").write(out)
```

```python
import sys, struct
from asmlib import *

KN = "gated_mix__linear_attn_block__ssm_conv_s4__prompt_kernel"
PQ_OFF = 0x0
BT_OFF = 0x200000
KV_OFF = 0x400000
G_OFF = 0x440000
CT_OFF = 0x480000
TS_OFF = 0x500000
WS_SIZE = 0x600000
STAMP = "--stamp" in sys.argv
def opt(name, default):
    for x in sys.argv:
        if x.startswith(f"--{name}="): return type(default)(x.split("=")[1])
    return default
HS = opt('hs', 1280)
assert 32*HS <= G_OFF - KV_OFF
LOG2E = 0x3fb8aa3b
EPS = 0x358637bd
def f2u(x): return struct.unpack("<I", struct.pack("<f", x))[0]
A = Asm()
WOQ = opt('woq', 0)
KF_ = opt('kf', 'sc1')
PF_ = opt('pf', 'sc1')
SA, SB, WS = 48, 52, 56
P_X, P_W, P_WO, P_ARE, P_AIM, P_BRE, P_BIM, P_CRE, P_CIM, P_LDT, P_DSK, P_GW, P_OUT, P_DBG, P_WS = 16,18,20,24,26,28,30,32,34,36,38,40,42,44,46

def srd(base, ptr, size):
    A(f"s_mov_b64 s[{base}:{base+1}], s[{ptr}:{ptr+1}]\ns_mov_b32 s{base+2}, {hex(size)}\ns_mov_b32 s{base+3}, 0x20000")

class St: lane = 0; pend = []
def st_set(lane): St.lane = lane; St.pend = []
def stamp():
    if not STAMP: return
    k = len(St.pend); assert k < 10
    A(f"s_memtime s[{72+2*k}:{73+2*k}]"); St.pend.append(St.lane); St.lane += 1
def commit():
    if not STAMP: return
    A("s_waitcnt lgkmcnt(0)")
    for k, l in enumerate(St.pend): A(f"v_writelane_b32 v254, s{72+2*k}, {l}")
    St.pend = []
def stamp_dyn(idx_s):
    if not STAMP: return
    A(f"s_memtime s[94:95]\ns_waitcnt lgkmcnt(0)\ns_mov_b32 m0, {idx_s}\nv_writelane_b32 v254, s94, m0")
def flush():
    if not STAMP: return
    A("s_memrealtime s[98:99]")
    sv = list(St.pend); commit(); St.pend = sv
    A("s_waitcnt lgkmcnt(0)")
    A(f"s_lshl_b32 s60, s2, 3\ns_add_u32 s60, s60, s3\ns_lshl_b32 s60, s60, 7\ns_add_u32 s60, s60, {hex(TS_OFF)}")
    A("v_writelane_b32 v254, s96, 30\nv_writelane_b32 v254, s98, 31")
    A(f"s_mov_b64 exec, -1\nv_lshlrev_b32 v255, 2, v0\ns_mov_b32 exec_hi, 0")
    A(f"buffer_store_dword v254, v255, s[{WS}:{WS+3}], s60 offen")
    pr = opt("probe", "")
    if pr:
        a_, b_, wg, wv = [int(x) for x in pr.split(",")]
        St.np = getattr(St, "np", 0) + 1
        A(f"""
        s_cmp_lg_u32 s2, {wg}
        s_cbranch_scc1 K_PRE_{St.np}
        s_cmp_lg_u32 s3, {wv}
        s_cbranch_scc1 K_PRE_{St.np}
        v_readlane_b32 s60, v254, {a_}
        v_readlane_b32 s61, v254, {b_}
        s_sub_u32 s60, s60, s61
        s_min_u32 s60, s60, 60000
K_PRL_{St.np}:
        s_memrealtime s[62:63]
        s_waitcnt lgkmcnt(0)
        s_sub_u32 s62, s62, s98
        s_cmp_lt_u32 s62, s60
        s_cbranch_scc1 K_PRL_{St.np}
K_PRE_{St.np}:
        """)

def cost(x):
    op = x.split()[0].replace("_e64", "")
    if op in TRANS: return 8
    if op.startswith("ds_write"): return 16
    if op.startswith("s_"): return 2
    return 4
def interleave(M, V, budget=24):
    V = list(V)
    for m in M:
        A(m); c = 0
        while V and c < budget:
            x = V.pop(0); A(x); c += cost(x)
    return V

def main():
    A(".p2align 8\n" + KN + ":")
    if STAMP: A("s_memrealtime s[96:97]\ns_memtime s[92:93]\nv_mov_b32 v254, 0")
    A(f"""
    s_cmp_ge_u32 s2, 256
    s_cbranch_scc1 K_END
    s_load_dwordx16 s[16:31], s[0:1], 0
    s_load_dwordx16 s[32:47], s[0:1], 64
    v_lshrrev_b32 v1, 6, v0
    v_and_b32 v0, 63, v0
    v_readfirstlane_b32 s3, v1
    s_and_b32 s4, s2, 7          ; xcd
    s_lshr_b32 s5, s2, 3         ; j
    s_getpc_b64 s[62:63]
K_PC0:
    s_lshl_b32 s6, s5, 3
    s_add_u32 s6, s6, s3
    s_lshl_b32 s6, s6, 7
    s_min_u32 s6, s6, K_TABLE-K_PC0-4
    v_mov_b32 v1, s6
    global_load_dword v253, v1, s[62:63]
    s_cmp_lt_u32 s5, 16
    s_cbranch_scc1 K_G
    s_sub_u32 s5, s5, 16         ; js
    s_cmp_ge_u32 s3, 4
    s_cbranch_scc1 K_HELPER
    s_lshl_b32 s6, s4, 6
    s_lshl_b32 s7, s5, 2
    s_add_u32 s6, s6, s7
    s_add_u32 s7, s6, s3         ; ch
    s_lshl_b32 s8, s7, 8
    v_lshlrev_b32 v1, 2, v0
    v_add_u32 v1, s8, v1
    s_lshl_b32 s10, s7, 1
    v_mov_b32 v2, s10
    v_mov_b32 v10, 0
    v_mov_b32 v252, 0
    s_waitcnt lgkmcnt(0)
    global_load_short_d16_hi v10, v2, s[{P_LDT}:{P_LDT+1}]
    """)
    for n, p in enumerate((P_ARE, P_AIM, P_BRE, P_BIM, P_CRE, P_CIM)):
        A(f"global_load_dword v{4+n}, v1, s[{p}:{p+1}]")
    A(f"global_load_short_d16_hi v252, v2, s[{P_DSK}:{P_DSK+1}]")
    A("s_branch K_SSM")
    A(f"""
K_G:
    s_and_b32 s6, s4, 3
    s_lshl_b32 s6, s6, 2
    s_and_b32 s14, s5, 3         ; ml
    s_add_u32 s6, s6, s14        ; mi
    s_lshr_b32 s7, s4, 2
    s_lshl_b32 s7, s7, 2
    s_lshr_b32 s15, s5, 2        ; nl
    s_add_u32 s7, s7, s15        ; ni
    s_cmp_ge_u32 s3, 4
    s_cbranch_scc1 K_LOADER
    s_cmp_ge_u32 s3, 2
    s_cbranch_scc1 K_KV
    ; waves 0,1 touch this workgroup's share of k-chunks 0,1 (x rows and k/v weights of the XCD)
    s_and_b32 s8, s4, 3
    s_lshl_b32 s8, s8, 9
    s_lshl_b32 s9, s5, 5
    s_add_u32 s8, s8, s9
    v_add_u32 v2, s8, v0
    v_lshlrev_b32 v2, 10, v2
    s_lshl_b32 s8, s3, 7
    v_add_u32 v2, s8, v2
    s_lshl_b32 s8, s3, 6
    s_lshl_b32 s9, s5, 2
    s_add_u32 s8, s8, s9
    v_bfe_u32 v3, v0, 3, 2
    v_add_u32 v3, s8, v3
    v_mul_u32_u24 v3, 3072, v3
    v_bfe_u32 v4, v0, 2, 1
    v_lshl_add_u32 v3, v4, 10, v3
    v_and_b32 v4, 3, v0
    v_lshl_add_u32 v3, v4, 7, v3
    s_lshr_b32 s8, s4, 2
    s_lshl_b32 s8, s8, 9
    s_add_u32 s8, s8, 1024
    v_add_u32 v3, s8, v3             ; w line
    s_mov_b32 exec_hi, 0
    s_waitcnt lgkmcnt(0)
    global_load_dword v252, v2, s[{P_X}:{P_X+1}]
    global_load_dword v251, v3, s[{P_W}:{P_W+1}]
    s_mov_b32 exec_hi, -1
    s_branch K_KV
K_LOADER:
    """)
    q_wave()
    A("K_HELPER:"); ssm_helper()
    p2_early()
    A("s_endpgm")
    A("K_SSM:"); ssm_compute()
    A("K_KV:"); kv_wave()
    p2_late()
    A("K_END:\ns_endpgm")

def first_stamp():
    st_set(1)
    if STAMP: A("v_writelane_b32 v254, s92, 0")
    stamp()

WSL = 131072
def frag_addr_setup():
    A("""
    v_and_b32 v1, 31, v0
    v_lshrrev_b32 v2, 5, v0      ; hf
    v_bfe_u32 v3, v0, 1, 3
    v_xor_b32 v3, v3, v2
    s_lshl_b32 s60, s8, 6
    v_add_u32 v1, s60, v1
    v_lshlrev_b32 v1, 7, v1      ; row*128
    """)
    for ks in range(4):
        A(f"v_xor_b32 v{4+ks}, {2*ks}, v3")
        A(f"v_lshl_add_u32 v{4+ks}, v{4+ks}, 4, v1")
    A(f"""
    v_bfe_u32 v1, v0, 2, 2
    v_lshlrev_b32 v8, 7, v1
    v_bfe_u32 v1, v0, 4, 1
    v_lshlrev_b32 v1, 5, v1
    v_and_b32 v3, 3, v0
    v_lshl_add_u32 v1, v3, 3, v1
    s_lshl_b32 s60, s9, 6
    v_add_u32 v1, s60, v1
    v_bfe_u32 v3, v0, 3, 1
    v_lshlrev_b32 v3, 6, v3
    v_xor_b32 v1, v1, v3
    v_add_u32 v8, v8, v1
    v_add_u32 v8, {WSL}, v8
    """)

def init_check(tag, vt):
    A(f"""
    s_and_b64 s[64:65], s[64:65], s[66:67]
    s_and_b64 s[68:69], s[68:69], s[70:71]
    s_and_b64 s[64:65], s[64:65], s[68:69]
    s_and_b32 s64, s64, s65
    s_cbranch_scc1 INIT_OK_{tag}
    v_and_b32 v{vt}, 7, v0
    v_lshlrev_b32 v{vt}, 2, v{vt}
INIT_POLL_{tag}:
    global_load_dword v{vt+1}, v{vt}, s[{P_DBG}:{P_DBG+1}] sc1
    s_waitcnt vmcnt(0)
    v_cmp_eq_u32 vcc, 0, v{vt+1}
    s_cbranch_vccz INIT_OK_{tag}
    s_add_u32 s64, s64, 1
    s_cmp_gt_u32 s64, 0x40000
    s_cbranch_scc1 INIT_OK_{tag}
    s_sleep 8
    s_branch INIT_POLL_{tag}
INIT_OK_{tag}:
    """)

def phi_ops(base, dst, tmp, pk=True):
    L = []
    for h in range(2):
        r = range(8*h, 8*h+8)
        if pk: L += [f"v_pk_mul_f32 v[{tmp+i}:{tmp+i+1}], v[{base+i}:{base+i+1}], s[10:11]" for i in r[::2]]
        else: L += [f"v_mul_f32 v{tmp+i}, s10, v{base+i}" for i in r]
        for i in r:
            L.append(f"v_exp_f32_e64 v{tmp+i}, v{tmp+i} clamp")
            L.append(f"v_max_f32 v{base+i}, s12, v{base+i}")
        if pk: L += [f"v_pk_add_f32 v[{base+i}:{base+i+1}], v[{base+i}:{base+i+1}], v[{tmp+i}:{tmp+i+1}]" for i in r[::2]]
        else: L += [f"v_add_f32 v{base+i}, v{base+i}, v{tmp+i}" for i in r]
        L += [f"v_cvt_pk_bf16_f32 v{dst+i//2}, v{base+i}, v{base+i+1}" for i in r[::2]]
    return L

def q_wave():
    X, W = SA, SB
    A(f"""
    s_sub_u32 s13, s3, 4         ; w
    v_lshrrev_b32 v2, 3, v0
    v_and_b32 v3, 7, v0
    v_lshrrev_b32 v4, 4, v0
    s_and_b32 s10, s13, 1
    s_lshl_b32 s10, s10, 2
    v_or_b32 v5, s10, v4
    v_xor_b32 v5, v5, v3
    s_lshl_b32 s10, s6, 7
    s_lshl_b32 s11, s13, 3
    s_add_u32 s10, s10, s11
    v_add_u32 v10, s10, v2
    v_lshlrev_b32 v10, 10, v10
    v_lshl_add_u32 v10, v5, 4, v10   ; x source
    v_and_b32 v4, 1, v4
    v_lshlrev_b32 v4, 2, v4
    v_xor_b32 v4, v4, v3
    v_add_u32 v11, s11, v2
    v_mul_u32_u24 v11, 3072, v11
    v_lshl_add_u32 v11, v4, 4, v11
    s_lshl_b32 s10, s7, 7
    v_add_u32 v11, s10, v11          ; w source
    s_lshl_b32 s12, s13, 10
    s_lshl_b32 s14, s13, 11
    s_add_u32 s14, s14, {WSL-1024}
    """)
    for n in range(4):
        A(f"s_add_u32 s60, s15, {n}\ns_and_b32 s60, s60, 3\ns_lshl_b32 s{64+n}, s60, 15\ns_lshl_b32 s60, s60, 12\ns_add_u32 s{68+n}, s60, s12")
    A(f"""
    s_mov_b32 s10, 0
    s_mov_b32 s11, 0
    s_mov_b32 s50, 0x200000
    s_mov_b32 s51, 0x20000
    s_mov_b32 s54, 0x180000
    s_mov_b32 s55, 0x20000
    s_waitcnt lgkmcnt(0)
    s_mov_b64 s[48:49], s[{P_X}:{P_X+1}]
    s_mov_b64 s[52:53], s[{P_W}:{P_W+1}]
    """)
    first_stamp()
    def ldx(n, lds):
        A(f"s_add_u32 m0, s{68+n}, {lds}\ns_add_u32 s63, s10, s{64+n}")
        A(f"buffer_load_dwordx4 v10, s[{X}:{X+3}], s63 offen lds")
    def ldw(lds, goff):
        A(f"s_add_u32 m0, s14, {lds}\ns_add_u32 s63, s11, {goff}")
        for p in (1, 2): A(f"buffer_load_dwordx4 v11, s[{W}:{W+3}], s63 offen offset:{p*1024} lds")
    ldx(0, 0); ldx(1, 0); ldw(0, 0); ldx(2, 0); ldx(3, 0)
    A("s_movk_i32 s10, 128")
    ldx(0, 16384); ldx(1, 16384); ldw(8192, 32*3072)
    A(f"s_mov_b32 s11, {64*3072}")
    ldx(2, 16384); ldx(3, 16384); ldw(16384, 0)
    A("s_and_b32 s8, s13, 1\ns_lshr_b32 s9, s13, 1")
    frag_addr_setup()
    A(f"""
    v_lshl_add_u32 v8, v2, 10, v8
    s_lshl_b32 s61, s7, 2
    s_lshl_b32 s60, s9, 1
    s_add_u32 s61, s61, s60      ; head0
    s_lshl_b32 s60, s6, 2
    s_lshl_b32 s62, s8, 1
    s_add_u32 s60, s60, s62
    s_lshl_b32 s60, s60, 5
    s_add_u32 s60, s60, s61
    s_lshl_b32 s60, s60, 10
    v_lshlrev_b32 v57, 4, v0
    v_add_u32 v57, s60, v57
    s_mov_b32 s4, 2
    s_mov_b32 s5, 32768
    s_movk_i32 s10, 256
    s_movk_i32 s15, 16384
    """)
    srd(WS, P_WS, WS_SIZE)
    commit()
    A("K_LD_LOOP:")
    A("s_waitcnt vmcnt(8)")
    stamp_dyn("s4")
    A("s_barrier")
    ldx(0, "s5"); ldx(1, "s5")
    A("s_add_u32 s62, s15, 8192")
    ldw("s62", 32*3072)
    A(f"s_mul_i32 s11, s4, {64*3072}\ns_xor_b32 s15, s15, 16384\ns_waitcnt vmcnt(8)\ns_barrier")
    ldx(2, "s5"); ldx(3, "s5"); ldw("s15", 0)
    A("""
    s_add_u32 s4, s4, 1
    s_add_u32 s5, s5, 16384
    s_add_u32 s10, s10, 128
    s_cmp_lt_u32 s4, 8
    s_cbranch_scc1 K_LD_LOOP
    """)
    def ldq(pos):
        return [f"s_add_u32 m0, s12, {WSL+(pos&3)*8192+h*4096}\ns_mov_b32 s63, {pos*64*3072+h*32*3072}\nbuffer_load_dwordx4 v11, s[{W}:{W+3}], s63 offen lds" for h in range(2)]
    A("s_waitcnt vmcnt(8)\ns_barrier")
    ldw(3*8192, 32*3072)
    A("s_waitcnt vmcnt(6)\ns_barrier")
    for x in ldq(0): A(x)
    A("s_waitcnt vmcnt(4)\ns_barrier")
    for x in ldq(1): A(x)
    A("s_waitcnt vmcnt(4)\ns_barrier")
    for x in ldq(2): A(x)
    def ldwo(kw, st): return f"s_add_u32 m0, s12, {L2_WO+kw*32768+st*4096}\ns_nop 0\nbuffer_load_dwordx4 v{12+kw}, s[{SA}:{SA+3}], s{64+st} offen lds"
    st_set(8)
    QA = (64, 80)
    NS = 6
    QS = [96 + 24*i for i in range(NS)]
    def qreads(u):
        b = QS[u % NS]; pos = u >> 1
        L = []
        for j in range(2):
            ks = 2*(u & 1) + j
            xo = (pos & 3)*16384
            wo = (pos & 3)*8192 + ks*2048
            L.append(f"ds_read_b128 v[{b+12*j}:{b+12*j+3}], v{4+ks} offset:{xo}")
            L += [f"ds_read_b64_tr_b16 v[{b+12*j+8+2*t}:{b+12*j+9+2*t}], v8 offset:{wo+t*512}" for t in range(2)]
            L.append(f"ds_read_b128 v[{b+12*j+4}:{b+12*j+7}], v{4+ks} offset:{xo+4096}")
        return L
    def qmf(u, j, mb):
        b = QS[u % NS] + 12*j; d = QA[mb]
        c = "0" if (u == 0 and j == 0) else f"v[{d}:{d+15}]"
        return f"v_mfma_f32_32x32x16_bf16 v[{d}:{d+15}], v[{b+8}:{b+11}], v[{b+4*mb}:{b+4*mb+3}], {c}"
    A("s_waitcnt vmcnt(4)\ns_barrier")
    stamp()
    for r in qreads(0) + qreads(1)[:7]: A(r)
    for x in ldq(3): A(x)
    A(qreads(1)[7])
    DEF = []; D = []
    UD = opt("ud", 12)
    seq = [1, 1, 2, 2, 3, 3]
    for u in range(16):
        A(f"s_waitcnt lgkmcnt({8 if u < 15 else 0})")
        if u % 2 == 0 and u < 14:
            assert not D
            p = u//2 + 1
            last = max(k for k, t in enumerate(seq) if t == p)
            A(f"s_waitcnt vmcnt({len(seq)-1-last})\ns_barrier")
            if 4 <= p+2 <= 7:
                i = p - 2
                D = [(x, p+2) for x in ldq(p+2)] + ([(ldwo(i >> 1, 4*(i & 1)+k), "w") for k in range(4 if i < 3 else 2)] if WOQ else [])
        if u == opt("qpu", 10): A("s_setprio 2")
        if u in (6, 7):
            for i in range(2*(u-6), 2*(u-6)+2): A(f"v_add_u32 v{4+i}, 65536, v{4+i}")
        R = qreads(u+2) if u < 14 else []
        if u < UD: M = [qmf(u, 0, 0), qmf(u, 0, 1), qmf(u, 1, 0), qmf(u, 1, 1)]
        else:
            M = [qmf(u, 0, 0), qmf(u, 1, 0)]; DEF += [qmf(u, 0, 1), qmf(u, 1, 1)]
        n = 2 if len(M) == 4 else 4
        for k, m in enumerate(M):
            A(m)
            for r in R[:n]: A(r)
            R = R[n:]
            if k != 2 and D:
                x, t = D.pop(0); A(x); seq.append(t)
        if u == 13:
            A(f"s_mov_b32 s10, {hex(LOG2E)}\ns_mov_b32 s11, {hex(LOG2E)}\ns_mov_b32 s12, {hex(EPS)}\ns_mov_b32 s61, 32768")
    stamp()
    TMP = 32; PQ = (16, 24)
    A(DEF.pop(0)); A(DEF.pop(0))
    def pst(mb, h): return f"buffer_store_dwordx4 v[{PQ[mb]+4*h}:{PQ[mb]+4*h+3}], v57, s[{WS}:{WS+3}], {'s61' if mb else '0'} offen offset:{1024*h} sc1"
    V0 = phi_ops(QA[0], PQ[0], TMP, False)[:36] + [pst(0, 0)]
    for x in interleave(DEF, V0, 28): A(x)
    for x in phi_ops(QA[0], PQ[0], TMP, True)[28:] + [pst(0, 1)]: A(x)
    V = phi_ops(QA[1], PQ[1], TMP, True)
    for h in range(2):
        for x in V[28*h:28*h+28] + [pst(1, h)]: A(x)
    stamp()
    A("s_setprio 0\ns_barrier")
    shard_target("s7")
    p2_ids()
    p2_common_setup()
    p2_early_setup()
    A("s_branch K_P2E")

def lds_count_arrive(tag):
    A(f"""
    v_mov_b32 v60, {L_CNT}
    v_mov_b32 v61, 1
    s_mov_b64 exec, 1
    ds_add_rtn_u32 v62, v60, v61
    s_mov_b64 exec, -1
    s_waitcnt lgkmcnt(0)
    v_readfirstlane_b32 s60, v62
    s_cmp_lg_u32 s60, 7
    s_cbranch_scc1 K_NOARR_{tag}
    s_mov_b32 exec_hi, 0
    buffer_atomic_add v61, v58, s[{WS}:{WS+3}], s62 offen sc1
    s_mov_b64 exec, 1
    ds_add_u32 v60, v61
    s_mov_b64 exec, -1
K_NOARR_{tag}:
    """)

def shard_target(shard):
    A(f"""
    v_lshlrev_b32 v58, 12, v0
    s_lshl_b32 s62, {shard}, 8
    s_add_u32 s62, s62, {hex(CT_OFF)}
    """)

def kv_wave():
    ACC = {"k": (96, 112), "v": (128, 144)}
    A("s_and_b32 s8, s3, 1\ns_lshr_b32 s9, s3, 1")
    frag_addr_setup()
    A("v_lshl_add_u32 v13, v2, 11, v8")
    for r in range(96, 160, 2): A(f"v_mov_b64 v[{r}:{r+1}], 0")
    A(f"""
    s_lshl_b32 s14, s7, 2
    s_lshl_b32 s13, s9, 1
    s_add_u32 s14, s14, s13      ; head0
    v_bfe_u32 v14, v0, 4, 1
    v_add_u32 v14, s14, v14
    v_mul_u32_u24 v14, {HS}, v14
    v_and_b32 v1, 3, v0
    v_bfe_u32 v3, v0, 2, 1
    v_lshl_add_u32 v1, v3, 3, v1
    v_bfe_u32 v3, v0, 3, 1
    v_lshl_add_u32 v1, v3, 2, v1
    v_lshl_add_u32 v14, v1, 2, v14
    v_add_u32 v14, {hex(KV_OFF)}, v14
    v_lshl_add_u32 v15, v2, 8, v14
    s_lshl_b32 s13, s8, 9
    v_add_u32 v15, s13, v15
    v_lshlrev_b32 v56, 4, v0
    s_mul_i32 s13, s3, 1280
    s_add_u32 s13, s13, 57344
    v_add_u32 v58, s13, v56
    s_xor_b32 s15, s3, 1
    s_mul_i32 s15, s15, 1280
    s_add_u32 s15, s15, 57344
    v_add_u32 v59, s15, v56
    v_lshlrev_b32 v1, 2, v0
    v_add_u32 v60, s13, v1
    v_add_u32 v61, s15, v1
    s_mov_b32 s10, {hex(LOG2E)}
    s_mov_b32 s11, {hex(LOG2E)}
    s_mov_b32 s12, {hex(EPS)}
    s_mov_b32 s14, 0xffff0000
    s_mov_b32 s15, 0xffff0000
    s_cmp_eq_u32 s8, 0
    s_cselect_b64 s[62:63], 0, -1
    """)
    for i in range(4): A(f"v_mov_b32 v{232+i}, 0x3f803f80")
    A("s_waitcnt lgkmcnt(0)")
    srd(WS, P_WS, WS_SIZE)
    SET = (16, 32)
    def reads(ks, st):
        b = SET[st]
        L = [f"ds_read_b128 v[{b}:{b+3}], v{4+ks}"]
        L += [f"ds_read_b64_tr_b16 v[{b+8+2*t}:{b+9+2*t}], v13 offset:{ks*4096+t*512}" for t in range(2)]
        L += [f"ds_read_b128 v[{b+4}:{b+7}], v{4+ks} offset:4096"]
        L += [f"ds_read_b64_tr_b16 v[{b+12+2*t}:{b+13+2*t}], v13 offset:{ks*4096+1024+t*512}" for t in range(2)]
        return L
    def mf(st, nm, mb):
        b = SET[st]; p = "kv".index(nm); d = ACC[nm][mb]
        return f"v_mfma_f32_32x32x16_bf16 v[{d}:{d+15}], v[{b+4*mb}:{b+4*mb+3}], v[{b+8+4*p}:{b+11+4*p}], v[{d}:{d+15}]"
    A("s_mov_b32 s4, 0")
    first_stamp()
    A("s_barrier")
    stamp()
    for r in reads(0, 0): A(r)
    A("K_G_LOOP:")
    for ks in range(4):
        st = ks & 1
        M = [mf(st, "k", 0), mf(st, "k", 1), mf(st, "v", 0), mf(st, "v", 1)]
        A("s_waitcnt lgkmcnt(0)")
        if ks == 1: A("s_barrier")
        if ks == 3: A("s_barrier\ns_cbranch_scc0 K_G_TAIL")
        R = reads((ks+1) & 3, st ^ 1)
        A(M[0]); [A(r) for r in R[0:3]]
        A(M[1]); [A(r) for r in R[3:6]]
        A(M[2])
        if ks == 2:
            for i in range(4): A(f"v_add_u32 v{4+i}, 16384, v{4+i}")
            A("v_xor_b32 v13, 16384, v13")
            A("s_add_u32 s4, s4, 1\ns_cmp_lt_u32 s4, 8")
        A(M[3])
    A("s_branch K_G_LOOP")
    A("K_G_TAIL:")
    for m in M: A(m)
    stamp()
    TMP = 208; PK = (16, 24); KVA = 64; ZA = 80
    def km(mb):
        L = []
        for z in range(2):
            for fr in range(2):
                d = ZA if z else KVA
                pk = f"v[{PK[mb]+4*fr}:{PK[mb]+4*fr+3}]"
                vv = "v[232:235]" if z else f"v[{ACC['v'][mb]+4*fr}:{ACC['v'][mb]+4*fr+3}]"
                L.append(f"v_mfma_f32_32x32x16_bf16 v[{d}:{d+15}], {vv}, {pk}, {'0' if mb+fr == 0 else f'v[{d}:{d+15}]'}")
        return L
    def cvv(mb): return [f"v_cvt_pk_bf16_f32 v{ACC['v'][mb]+i}, v{ACC['v'][mb]+2*i}, v{ACC['v'][mb]+2*i+1}" for i in range(8)]
    V = phi_ops(ACC["k"][0], PK[0], TMP, False) + cvv(0) + cvv(1)
    P1_ = phi_ops(ACC["k"][1], PK[1], TMP, False)
    K0 = km(0)
    for k in range(4): V += [K0[k]] + P1_[18*k:18*k+18]
    SEL = [f"v_cndmask_b32_e64 v{KVA+j}, v{KVA+j}, v{KVA+8+j}, s[14:15]" for j in range(8)]
    SEL += [f"v_cndmask_b32_e64 v{40+j}, v{KVA+4+j}, v{KVA+j}, s[62:63]" for j in range(4)]
    SEL += ["ds_write_b128 v58, v[40:43]"]
    SEL += [f"v_cndmask_b32_e64 v{36+j}, v{KVA+j}, v{KVA+4+j}, s[62:63]" for j in range(4)]
    SEL += [f"ds_write_b32 v60, v{ZA} offset:1024"]
    BUD = [opt("bud0", 40)] + [opt("bud1", 200)]*3 + [100000, 0]
    for seg in range(6):
        if seg == 1: A(f"s_load_dwordx8 s[64:71], s[{P_DBG}:{P_DBG+1}], 0")
        c = 0
        while V and c < BUD[seg]:
            x = V.pop(0); A(x); c += cost(x)
        if seg == 5:
            for m in km(1): A(m)
            for x in SEL: A(x)
            A("s_waitcnt lgkmcnt(0)")
        A("s_barrier")
    A("ds_read_b128 v[40:43], v59\nds_read_b32 v44, v61 offset:1024")
    stamp()
    init_check("G", 62)
    A("s_waitcnt lgkmcnt(0)")
    for j in range(4): A(f"v_add_f32 v{36+j}, v{36+j}, v{40+j}")
    A(f"v_add_f32 v44, v44, v{ZA}")
    for j in range(4): A(f"buffer_atomic_add_f32 v{36+j}, v15, s[{WS}:{WS+3}], 0 offen offset:{j*64}")
    A(f"""
    s_cmp_lg_u32 s8, 0
    s_cbranch_scc1 K_NOZ
    s_mov_b32 exec_hi, 0
    buffer_atomic_add_f32 v44, v14, s[{WS}:{WS+3}], 0 offen offset:1024
    s_mov_b32 exec_hi, -1
K_NOZ:
    """)
    A("s_waitcnt lgkmcnt(0)\ns_barrier")
    p2_ids()
    p2_common_setup()
    p2_compute_setup()
    wo_setup()
    A("s_waitcnt vmcnt(0)")
    stamp()
    A("s_barrier")
    NE = opt("woe", 3)
    for st in range(NE): wo_dma(st)
    A("s_barrier")
    for st in range(NE, 8): wo_dma(st)

TROW = 528
TCH = 28672
AOFF = [r*TROW + (48 if r >= 16 else 0) + (64 if r == 21 else 0) for r in range(22)]
L_TB = 22*TROW + 128
assert L_TB + 32*TROW <= TCH
UB = 4*TCH
UCH = 4608
KB = UB + 4*UCH
L_KR0 = 0
L_KR1 = L_KR0 + 1152 + 64
L_T = L_KR1 + 1152 + 64
TSEQ = 192
TCOPY = 6*TSEQ + 64
KCH = L_T + 2*TCOPY
L_CNT = 65536
assert KB + 4*KCH <= 163840
AROWS = list(range(9)) + [256,258,260,262,264] + [516,520,772,776] + [1032,1288,1544,1800]
HROWS = ([0,1,2,3,4,5,6,7,8,516,520,772,776,0,0,0], [256,256,258,260,260,260,262,264,264,1032,1288,1544,1800,0,0,0])
BOX = [(3,3,-16),(5,6,-16),(3,11,-16),(5,14,-24),(7,5,-16),(9,12,-24)]

def ssm_tables():
    T = []
    for lane in range(64):
        R = lane & 31; hf = lane >> 5
        g = R >> 3; h = (R >> 2) & 1; i = R & 3
        ta = AOFF[AROWS.index(HROWS[h][4*g+i])] + hf*16
        b = lane & 15; q = lane >> 4
        p0 = 535 - 32*16 - b + 8*q
        kr = (L_KR1 + 2*(p0+1)) if (p0 & 1) else (L_KR0 + 2*p0)
        p0 = 15 - b + 4*q
        tf = (L_T + TCOPY + 2*(p0+1)) if (p0 & 1) else (L_T + 2*p0)
        fr = 512 - 32 - 64*7 + 32*b + 16*q
        T += [ta, kr, tf, fr]
    for lane in range(64):
        j = lane & 31; h = lane >> 5
        for kap in range(4):
            if h == 0:
                seq = 2*(j & 1) + (kap & 1); kp = 32 + 16*(kap >> 1) + (j >> 1); Q0 = 79
            else:
                seq = 4 + (j & 1); kp = 64 + 16*kap + (j >> 1); Q0 = 127
            T.append(L_T + seq*TSEQ + 2*(Q0 - kp))
    for lane in range(64):
        b = lane & 15; q = lane >> 4
        h = [0xffff if (16 + b - (8*q+i)) in (3, 4) else 0 for i in range(8)]
        T += [h[2*i] | (h[2*i+1] << 16) for i in range(4)]
    for (ln, o, off) in BOX:
        for lane in range(64):
            b = lane & 15; q = lane >> 4
            h = [0x3f80 if (b - o - ln + 1 <= off + 8*q + i <= b - o) else 0 for i in range(8)]
            T += [h[2*i] | (h[2*i+1] << 16) for i in range(4)]
    return T

def ssm_helper():
    X = SA
    A(f"""
    s_sub_u32 s9, s3, 4          ; w
    s_and_b32 s6, s4, 3          ; mg
    s_lshr_b32 s7, s4, 2         ; ng
    s_lshl_b32 s10, s6, 9
    s_lshl_b32 s11, s5, 4
    s_add_u32 s10, s10, s11
    s_lshl_b32 s11, s7, 8
    s_add_u32 s14, s10, s11
    s_lshl_b32 s15, s9, 2
    s_add_u32 s14, s14, s15
    s_xor_b32 s11, s11, 256
    s_add_u32 s10, s10, s11
    v_add_u32 v6, s10, v0
    v_lshlrev_b32 v6, 10, v6
    v_subrev_u32 v7, 16, v0
    v_mul_u32_u24 v8, 43, v7
    v_bfe_u32 v8, v8, 9, 3               ; /12
    v_mul_u32_u24 v9, 12, v8
    v_sub_u32 v9, v7, v9                 ; %12
    s_lshl_b32 s10, s5, 2
    v_add_u32 v8, s10, v8
    v_mul_u32_u24 v8, 3072, v8
    v_bfe_u32 v11, v9, 2, 2
    v_lshl_add_u32 v8, v11, 10, v8
    v_and_b32 v11, 3, v9
    v_lshl_add_u32 v8, v11, 7, v8
    s_lshl_b32 s10, s7, 9
    v_add_u32 v8, s10, v8
    s_mov_b64 s[10:11], 0xffff
    v_cndmask_b32_e64 v6, v8, v6, s[10:11]
    v_mov_b32 v7, {64*3072}
    v_mov_b32 v8, 128
    v_cndmask_b32_e64 v7, v7, v8, s[10:11]
    s_lshl_b32 s15, s14, 10
    v_lshlrev_b32 v12, 4, v0
    v_add_u32 v13, s15, v12
    s_waitcnt lgkmcnt(0)
    v_mov_b32 v8, s{P_W}
    v_mov_b32 v9, s{P_X}
    v_cndmask_b32_e64 v8, v8, v9, s[10:11]
    v_mov_b32 v9, s{P_W+1}
    v_mov_b32 v11, s{P_X+1}
    v_cndmask_b32_e64 v9, v9, v11, s[10:11]
    """)
    first_stamp()
    srd(X, P_X, 0x200000)
    def pf_half(c0, dst):
        A(f"""
        s_lshr_b32 s60, s9, 1
        s_add_u32 s60, s60, {c0}
        v_mad_u32_u24 v14, v7, s60, v6
        v_add_co_u32 v14, vcc, v8, v14
        v_addc_co_u32 v15, vcc, 0, v9, vcc
        s_bitcmp1_b32 s9, 0
        s_cselect_b32 exec_lo, 0, -1
        s_cselect_b32 exec_hi, -1, 0
        global_load_dword v{dst}, v[14:15], off
        s_mov_b64 exec, -1
        """)
    def gate_loads():
        for r in range(4):
            A(f"buffer_load_dwordx4 v[{48+4*r}:{51+4*r}], v13, s[{X}:{X+3}], 0 offen offset:{r*1024}")
        A(f"global_load_dwordx4 v[64:67], v12, s[{P_GW}:{P_GW+1}]")
    A("s_barrier")
    pf_half(2, 44)
    gate_loads()
    srd(WS, P_WS, WS_SIZE)
    for r in range(4): A(f"v_mov_b32 v{40+r}, 0")
    A(f"""
    s_lshl_b32 s61, s5, 2
    s_add_u32 s61, s61, s9       ; 4js + w
    s_cmp_lg_u32 s61, 3
    s_cbranch_scc1 K_H_NOZ
    s_mul_i32 s13, s4, {4*HS}
    s_add_u32 s13, s13, {hex(KV_OFF)}
    """)
    A(f"""
    v_bfe_u32 v39, v0, 2, 2
    v_mul_u32_u24 v39, {HS}, v39
    v_and_b32 v36, 3, v0
    v_lshl_add_u32 v39, v36, 4, v39
    s_mov_b64 exec, 0xffff
    buffer_store_dwordx4 v[40:43], v39, s[{WS}:{WS+3}], s13 offen offset:1024 sc0 sc1
    s_mov_b64 exec, -1
    """)
    for i in range(4):
        A(f"buffer_store_dwordx4 v[40:43], v12, s[{WS}:{WS+3}], s13 offen sc0 sc1")
        if i < 3: A(f"s_add_u32 s13, s13, {HS}")
    A(f"""
    s_lshl_b32 s13, s4, 14
    s_add_u32 s13, s13, {hex(CT_OFF)}
    v_lshlrev_b32 v39, 8, v0
    buffer_store_dword v40, v39, s[{WS}:{WS+3}], s13 offen sc0 sc1
K_H_NOZ:
    """)
    pf_half(4, 45)
    A(f"""
    s_lshl_b32 s15, s9, 6
    v_add_u32 v1, s15, v0        ; t = 0..255
    s_lshl_b32 s15, s4, 7
    s_lshl_b32 s60, s5, 3
    s_add_u32 s15, s15, s60
    v_lshlrev_b32 v2, 10, v1
    v_add_u32 v2, s15, v2
    s_lshl_b32 s60, s5, 7
    s_lshl_b32 s62, s9, 5
    s_add_u32 s60, s60, s62
    v_and_b32 v11, 31, v0
    v_add_u32 v11, s60, v11
    v_lshlrev_b32 v11, 10, v11
    v_add_u32 v11, s15, v11      ; this workgroup's share of the u slab
    """)
    UF = opt("ufirst", 1)
    if UF: A(f"buffer_load_dword v47, v11, s[{X}:{X+3}], 0 offen")
    pf_half(6, 46)
    if not UF: A(f"buffer_load_dword v47, v11, s[{X}:{X+3}], 0 offen")
    A(f"""
    s_lshr_b32 s60, s9, 1
    s_lshl_b32 s60, s60, 6
    s_and_b32 s62, s9, 1
    s_lshl_b32 s62, s62, 1
    s_add_u32 s60, s60, s62
    s_lshl_b32 s62, s5, 2
    s_add_u32 s60, s60, s62
    v_bfe_u32 v14, v0, 2, 1
    v_add_u32 v14, s60, v14
    v_mul_u32_u24 v14, 3072, v14
    v_and_b32 v15, 3, v0
    v_lshl_add_u32 v14, v15, 7, v14
    s_lshl_b32 s60, s7, 9
    v_add_u32 v14, s60, v14
    global_load_dword v38, v14, s[{P_W}:{P_W+1}]
    s_waitcnt vmcnt(4)
    s_cmp_lg_u32 s61, 3
    s_cbranch_scc1 K_H_NOF
    s_lshl_b32 s13, s4, 2
    v_mov_b32 v6, s13
    v_mov_b32 v7, 1
    s_mov_b64 exec, 1
    global_store_dword v6, v7, s[{P_DBG}:{P_DBG+1}] sc0 sc1
    s_mov_b64 exec, -1
K_H_NOF:
    """)
    stamp()
    for r in range(4): A(f"v_mov_b32 v{68+r}, 0")
    for k in range(4):
        for r in range(4): A(f"v_dot2c_f32_bf16 v{68+r}, v{48+4*r+k}, v{64+k}")
    for m in ("row_shr:1","row_shr:2","row_shr:4","row_shr:8"):
        for r in range(4): A(f"v_add_f32_dpp v{68+r}, v{68+r}, v{68+r} {m} row_mask:0xf bank_mask:0xf bound_ctrl:0")
    for m in ("row_bcast:15 row_mask:0xa","row_bcast:31 row_mask:0xc"):
        for r in range(4): A(f"v_add_f32_dpp v{68+r}, v{68+r}, v{68+r} {m} bank_mask:0xf")
    for r in range(4): A(f"v_mul_f32 v{68+r}, {hex(f2u(-1.4426950408889634))}, v{68+r}")
    for r in range(4): A(f"v_exp_f32 v{68+r}, v{68+r}")
    for r in range(4): A(f"v_add_f32 v{68+r}, 1.0, v{68+r}")
    for r in range(4): A(f"v_rcp_f32 v{68+r}, v{68+r}")
    A(f"""
    s_lshl_b32 s10, s14, 2
    s_add_u32 s10, s10, {hex(G_OFF)}
    v_mov_b32 v10, s10
    s_mov_b32 exec_lo, 0
    s_mov_b32 exec_hi, 0x80000000
    buffer_store_dwordx4 v[68:71], v10, s[{WS}:{WS+3}], 0 offen sc1
    s_mov_b64 exec, -1
    v_lshlrev_b32 v3, 1, v1
    v_add_u32 v3, {UB+512}, v3
    """)
    WOP = opt("wop", 0)
    commit()
    p2_ids()
    seq = []
    def stage_block(b):
        younger = len(seq) - 1 - seq.index(("g", b))
        A(f"s_waitcnt vmcnt({younger})")
        A(f"ds_write_b16 v3, v{16+2*b} offset:{512*b}")
        A(f"ds_write_b16_d16_hi v3, v{16+2*b} offset:{UCH+512*b}")
        A(f"ds_write_b16 v3, v{17+2*b} offset:{2*UCH+512*b}")
        A(f"ds_write_b16_d16_hi v3, v{17+2*b} offset:{3*UCH+512*b}")
        A("s_waitcnt lgkmcnt(0)")
        stamp()
        A("s_barrier")
    sched = [int(c) for c in opt("gs", "33567888")]
    wsch = [int(c) for c in opt("ws", "00000022")]
    def other():
        A("s_sub_u32 s7, s7, 4")
        wo_touch(37); seq.append(("p", 0))
        A("s_add_u32 s7, s7, 4")
    OTH = opt("oth", 5)
    if OTH == 0: other()
    OWN = opt("own", 5)
    if OWN == 0: wo_touch(36); seq.append(("p", 1))
    ng = 0; nw = 0
    for b in range(8):
        while ng < sched[b]:
            A(f"s_mov_b32 s13, {ng<<18}")
            A(f"buffer_load_dwordx2 v[{16+2*ng}:{17+2*ng}], v2, s[{X}:{X+3}], s13 offen"); seq.append(("g", ng)); ng += 1
            if ng == OWN: wo_touch(36); seq.append(("p", 1))
            if ng == OTH: other()
            if ng == 8: wo_setup()
        for _ in range(wsch[b]):
            assert ng == 8
            wo_dma(nw); seq += [("w", nw)]*2; nw += 1
        stage_block(b)
    commit()
    A(f"s_load_dwordx8 s[64:71], s[{P_DBG}:{P_DBG+1}], 0")
    while nw < 6:
        wo_dma(nw); nw += 1
    if WOQ: A("s_cmp_lg_u32 s9, 0\ns_cbranch_scc1 K_H_W67")
    wo_dma(6); wo_dma(7)
    A("K_H_W67:")
    p2_common_setup()
    A("s_waitcnt lgkmcnt(0)")
    init_check("H", 62)
    p2_early_setup()
    A("s_add_u32 s60, s4, 8")
    shard_target("s60")

def cmul(d, x, y):
    return [f"v_pk_mul_f32 v[{d}:{d+1}], v[{x}:{x+1}], v[{y}:{y+1}] op_sel:[0,0] op_sel_hi:[1,0]",
            f"v_pk_fma_f32 v[{d}:{d+1}], v[{x}:{x+1}], v[{y}:{y+1}], v[{d}:{d+1}] op_sel:[1,1,0] op_sel_hi:[0,1,1] neg_lo:[1,0,0]"]
def cv2(src, tmp): return [f"v_cvt_pk_bf16_f32 v{tmp}, v{src}, v{src+1}", f"v_cvt_pk_bf16_f32 v{tmp+1}, v{src+2}, v{src+3}"]
def cm2(d, x, y):
    c0 = cmul(d, x, y); c1 = cmul(d+2, x+2, y+2)
    return [c0[0], c1[0], c0[1], c1[1]]

def ssm_compute():
    first_stamp()
    A("""
    v_lshlrev_b32 v2, 4, v0
    s_add_u32 s60, s62, K_TABLE-K_PC0
    s_addc_u32 s61, s63, 0
    """)
    MISC, TW, CORR, BOXR = 244, 240, 236, 212
    dst = [MISC, TW, CORR] + [BOXR+4*n for n in range(6)]
    def table_loads(lo, hi):
        for n in range(lo, hi):
            if n in (4, 8): A("v_add_u32 v2, 4096, v2")
            A(f"global_load_dwordx4 v[{dst[n]}:{dst[n]+3}], v2, s[60:61] offset:{(n%4)*1024}")
    table_loads(0, 9)
    A("s_barrier")
    srd(WS, P_WS, WS_SIZE)
    A(f"""
    s_mul_i32 s8, s3, {KCH}
    s_add_u32 s8, s8, {KB}
    s_mul_i32 s12, s3, {UCH}
    s_add_u32 s12, s12, {UB}
    s_mul_i32 s11, s3, {TCH}
    v_mov_b32 v16, 0
    v_mov_b32 v17, 0
    v_mov_b32 v18, 0
    v_mov_b32 v19, 0
    v_lshlrev_b32 v3, 4, v0
    v_add_u32 v3, s8, v3
    """)
    zl = KCH
    for o in range(0, zl, 1024): A(f"ds_write_b128 v3, v[16:19] offset:{L_KR0+min(o, zl-1024)}")
    A(f"""
    v_lshlrev_b32 v3, 3, v0
    v_add_u32 v11, s12, v3
    ds_write_b64 v11, v[16:17]
    v_add_u32 v3, s11, v3
    v_add_u32 v11, {L_TB}, v3
    s_waitcnt vmcnt(16)
    v_mul_f32 v10, {hex(LOG2E)}, v10
    v_exp_f32 v10, v10
    v_cvt_pk_bf16_f32 v10, v10, v10
    v_and_b32 v10, 0xffff0000, v10   ; dt
    s_waitcnt vmcnt(14)
    """)
    stamp()
    for n in range(2):
        A(f"v_lshlrev_b32 v{20+2*n}, 16, v{4+n}")
        A(f"v_and_b32 v{21+2*n}, 0xffff0000, v{4+n}")
    for r in range(20, 24): A(f"v_mul_f32 v{r}, v10, v{r}")
    AV = {r: 48 + 4*n for n, r in enumerate(AROWS)}
    E1, E256, E8, E16 = 136, 140, 144, 148
    C = (152, 156, 160, 164)
    Es = ((E8, 8, -1.0, 32), (E16, 16, -1.0, 36), (E1, 1, 1.0, 40), (E256, 256, 1.0, 44))
    for (E, r, sgn, t) in Es:
        for m in range(2):
            A(f"v_mul_f32 v{t+m}, {hex(f2u(r*1.4426950408889634))}, v{20+m}")
            A(f"v_mul_f32 v{t+2+m}, {hex(f2u(sgn*r*0.15915494309189535))}, v{22+m}")
    for (E, r, sgn, t) in Es:
        for m in range(2):
            A(f"v_exp_f32 v{t+m}, v{t+m}")
            A(f"v_fract_f32 v{t+2+m}, v{t+2+m}")
    for (E, r, sgn, t) in Es:
        for m in range(2):
            A(f"v_cos_f32 v{E+2*m}, v{t+2+m}")
            A(f"v_sin_f32 v{E+2*m+1}, v{t+2+m}")
    for (E, r, sgn, t) in Es:
        for m in range(2):
            A(f"v_mul_f32 v{E+2*m}, v{t+m}, v{E+2*m}")
            A(f"v_mul_f32 v{E+2*m+1}, v{t+m}, v{E+2*m+1}")
    A(f"""
    v_mov_b32 v{C[0]}, 1.0
    v_mov_b32 v{C[0]+1}, 0
    v_mov_b32 v{C[0]+2}, 1.0
    v_mov_b32 v{C[0]+3}, 0
    v_mov_b64 v[{C[2]}:{C[2]+1}], v[{E8}:{E8+1}]
    v_mov_b64 v[{C[2]+2}:{C[2]+3}], v[{E8+2}:{E8+3}]
    s_mov_b32 s9, 8
K_S_BL:
    """)
    for half in range(2):
        e, en = C[half], C[half ^ 1]
        o, on = C[2 + half], C[2 + (half ^ 1)]
        me = cm2(en, e, E16); mo = cm2(on, o, E16)
        t = 168 + 4*half
        ce = cv2(e, t); co = cv2(o, t+2)
        for x in (me[0], me[1], mo[0], mo[1], ce[0], ce[1], me[2], me[3], co[0], co[1], mo[2], mo[3]): A(x)
        A(f"ds_write2_b64 v11, v[{t}:{t+1}], v[{t+2}:{t+3}] offset0:{132*half} offset1:{132*half+66}")
    A(f"""
    v_add_u32 v11, {4*TROW}, v11
    s_sub_u32 s9, s9, 1
    s_cmp_lg_u32 s9, 0
    s_cbranch_scc1 K_S_BL
    s_waitcnt vmcnt(0)
    """)
    stamp()
    for n in range(2, 6):
        A(f"v_lshlrev_b32 v{20+2*n}, 16, v{4+n}")
        A(f"v_and_b32 v{21+2*n}, 0xffff0000, v{4+n}")
    for r in range(24, 28): A(f"v_mul_f32 v{r}, v10, v{r}")
    for m in range(2):
        d = AV[0] + 2*m
        A(f"v_mul_f32 v{d}, v{28+m}, v{24+m}")
        A(f"v_mul_f32 v{d+1}, v{28+m}, v{26+m}")
        A(f"v_fma_f32 v{d}, -v{30+m}, v{26+m}, v{d}")
        A(f"v_fma_f32 v{d+1}, v{30+m}, v{24+m}, v{d+1}")
    steps = [(0, None, None)] + [(r, r-1, E1) for r in range(1, 9)] + [(r, r-256, E256) for r in AROWS[9:]]
    pend = []; base = 0
    for n in range(0, 22, 2):
        flat = [x for (r, src, E) in steps[n:n+2] if src is not None for x in cm2(AV[r], AV[src], E)]
        for k, x in enumerate(flat):
            A(x)
            if pend and k % 2 == 1: A(pend.pop(0))
        for x in pend: A(x)
        t = 168 + 4*((n >> 1) & 1)
        pend = cv2(AV[steps[n][0]], t) + cv2(AV[steps[n+1][0]], t+2)
        pend.append(f"ds_write2_b64 v3, v[{t}:{t+1}], v[{t+2}:{t+3}] offset0:{(AOFF[n]-base)//8} offset1:{(AOFF[n+1]-base)//8}")
        if n % 4 == 2:
            pend.append(f"v_add_u32 v3, {4*TROW}, v3"); base += 4*TROW
    for x in pend: A(x)
    stamp()
    A(f"v_add_u32 v{MISC}, s11, v{MISC}")
    A(f"v_add_u32 v{MISC+3}, s12, v{MISC+3}")
    for r in list(range(MISC+1, MISC+3)) + list(range(TW, TW+4)): A(f"v_add_u32 v{r}, s8, v{r}")
    A(f"""
    v_and_b32 v4, 31, v0
    v_mul_u32_u24 v4, {TROW}, v4
    v_lshrrev_b32 v5, 5, v0
    v_lshl_add_u32 v4, v5, 4, v4
    v_add_u32 v4, s11, v4
    """)
    KA = 16; FR = 40
    def kmf(t): return f"v_mfma_f32_32x32x16_bf16 v[{KA}:{KA+15}], v[{FR+8*t}:{FR+8*t+3}], v[{FR+8*t+4}:{FR+8*t+7}], {'0' if t == 0 else f'v[{KA}:{KA+15}]'}"
    for s_ in range(16):
        A(f"ds_read_b128 v[{FR+8*s_+4}:{FR+8*s_+7}], v4 offset:{L_TB+32*s_}")
        A(f"ds_read_b128 v[{FR+8*s_}:{FR+8*s_+3}], v{MISC} offset:{32*s_}")
        if s_ >= 5:
            A(f"s_waitcnt lgkmcnt(10)")
            A(kmf(s_-5))
    A(f"""
    s_mov_b64 s[14:15], 1
    v_cndmask_b32_e64 v5, 0, v252, s[14:15]
    v_lshlrev_b32 v6, 4, v0
    v_sub_u32 v6, {L_KR0+1088}, v6
    v_add_u32 v6, s8, v6
    v_mov_b32 v7, s8
    """)
    for t in range(11, 16):
        A(f"s_waitcnt lgkmcnt({2*(15-t)})")
        A(kmf(t))
    A(f"""
    s_lshl_b32 s9, s7, 12
    s_add_u32 s9, s9, {hex(BT_OFF)}
    v_and_b32 v1, 15, v0
    v_lshrrev_b32 v2, 4, v0
    v_lshlrev_b32 v1, 5, v1
    v_lshrrev_b32 v3, 1, v2
    v_lshl_add_u32 v1, v3, 4, v1
    v_and_b32 v2, 1, v2
    v_lshl_add_u32 v1, v2, 9, v1     ; 32j + 16(q>>1) + 512(q&1)
    v_add_u32 v8, 512, v{MISC+1}
    v_add_u32 v9, 1024, v{MISC+1}
    v_add_u32 v2, 768, v{MISC+2}
    v_add_f32 v{KA}, v{KA}, v5
    """)
    for i in range(4): A(f"v_cvt_pk_bf16_f32 v{40+i}, v{KA+7-2*i}, v{KA+6-2*i}")
    A(f"ds_write_b128 v6, v[40:43]")
    for i in range(4): A(f"v_cvt_pk_bf16_f32 v{44+i}, v{KA+8-2*i}, v{KA+7-2*i}")
    A(f"ds_write_b128 v6, v[44:47] offset:{L_KR1-L_KR0}")
    A(f"""
    v_cvt_pk_bf16_f32 v52, v{KA+8}, v{KA+8}
    s_mov_b64 exec, 1
    ds_write_b16_d16_hi v7, v43 offset:{L_KR1+2*552}
    s_mov_b32 exec_lo, 0
    s_mov_b32 exec_hi, 0x80000000
    ds_write_b32 v7, v52 offset:{L_KR0+2*38}
    ds_write_b16 v7, v52 offset:{L_KR0+2*37}
    ds_write_b32 v7, v52 offset:{L_KR1+2*38}
    s_mov_b64 exec, -1
    """)
    for k in range(4): A(f"v_cvt_pk_bf16_f32 v{48+k}, v{KA+9+k}, v{KA+9+k}")
    for k in range(4):
        A(f"ds_write_b16 v{TW+k}, v{48+k}")
        A(f"ds_write_b16 v{TW+k}, v{48+k} offset:{TCOPY+2}")
    A("v_readlane_b32 s15, v51, 31      ; (K1024,K1024)")
    for i in range(4): A(f"v_and_b32 v{CORR+i}, s15, v{CORR+i}")
    stamp()
    AFB = 56; TFB = 124; ACC = 164; FB = 12; GB = 44; TMP = 196
    def af(c): return AFB + 4*c
    def aread(c):
        o = 16*(16-c)
        base, oo = (MISC+1, o) if o < 128 else ((8, o-128) if o < 256 else (9, o-256))
        return [f"ds_read2_b32 v[{af(c)}:{af(c)+1}], v{base} offset0:{oo} offset1:{oo+1}",
                f"ds_read2_b32 v[{af(c)+2}:{af(c)+3}], v{base} offset0:{oo+2} offset1:{oo+3}"]
    def tf(pair, dl): return TFB + 4*((dl-2) + 3*pair if pair < 2 else 6 + dl - 4)
    TR = []
    for pair in range(3):
        dls = (2,3,4) if pair < 2 else (4,5,6,7)
        for dl in dls:
            r = tf(pair, dl)
            for hh in range(2):
                o = ((2*pair+hh)*TSEQ + 32*(dls[-1]-dl))//4
                base, oo = (MISC+2, o) if o < 192 else (2, o-192)
                TR.append(f"ds_read2_b32 v[{r+2*hh}:{r+2*hh+1}], v{base} offset0:{oo} offset1:{oo+1}")
    BT_ = [TMP, TMP+8, 48]
    XR = [240, 248, 8]
    FA = MISC+3
    started = set()
    def mm(t, a_, b_):
        c = f"v[{ACC+4*t}:{ACC+4*t+3}]" if t in started else "0"
        started.add(t)
        return f"v_mfma_f32_16x16x32_bf16 v[{ACC+4*t}:{ACC+4*t+3}], v[{a_}:{a_+3}], v[{b_}:{b_+3}], {c}"
    def far(tau):
        return [mm(tau+dl, XR[pair], tf(pair, dl)) for pair in range(3) for dl in ((2,3,4) if pair < 2 else (4,5,6,7)) if tau + dl < 8]
    def store(t):
        d = ACC + 8*(t >> 1) + 2*(t & 1)
        return [f"v_cvt_pk_bf16_f32 v{d}, v{ACC+4*t}, v{ACC+4*t+1}", f"v_cvt_pk_bf16_f32 v{d+1}, v{ACC+4*t+2}, v{ACC+4*t+3}"]
    def wide_store(p):
        d = ACC + 8*p
        return [f"v_permlane16_swap_b32 v{d}, v{d+2}", f"v_permlane16_swap_b32 v{d+1}, v{d+3}",
                f"buffer_store_dwordx4 v[{d}:{d+3}], v1, s[{WS}:{WS+3}], s9 offen offset:{1024*p} sc1"]
    def rdF(tau, rho): return f"ds_read_b128 v[{FB+4*rho}:{FB+4*rho+3}], v{FA} offset:{512*tau+448-64*rho}"
    def rdG(tau): return f"ds_read_b128 v[{GB}:{GB+3}], v{FA} offset:{512*tau+432}"
    npairs = lambda tau: 3 if tau < 4 else (2 if tau < 6 else 0)
    for c in range(17):
        for x in aread(c): A(x)
    TPRE = opt("tpre", 1)
    if TPRE:
        for x in TR: A(x)
    A("s_barrier")
    A(rdF(0, 0)); A(rdG(0))
    for rho in range(1, 8): A(rdF(0, rho))
    for tau in range(8):
        if tau < 7: A("s_barrier")
        if tau in (0, 6): stamp()
        npair = npairs(tau)
        full = tau <= 4
        A("s_waitcnt lgkmcnt(0)" if full else "s_waitcnt lgkmcnt(7)")
        for pair in range(npair):
            for hh in range(2):
                sq = 2*pair + hh
                src = GB if BOX[sq][2] == -24 else FB
                d = BT_[pair] + 4*hh
                A(f"v_mfma_f32_16x16x32_bf16 v[{d}:{d+3}], v[{src}:{src+3}], v[{BOXR+4*sq}:{BOXR+4*sq+3}], 0")
        if tau + 2 < 8: A(mm(tau+2, af(16), FB))
        if tau + 4 < 8: A(mm(tau+4, CORR, FB))
        CVT = [f"v_cvt_pk_bf16_f32 v{XR[pair]+i}, v{BT_[pair]+2*i}, v{BT_[pair]+2*i+1}" for pair in range(npair) for i in range(4)]
        ST = store(tau-1) if tau > 0 else []
        if opt("bspread", 1) and tau in (2, 4, 6): ST += wide_store(tau//2 - 1)
        nnew = 0
        for rho in range(8):
            if rho > 0 and not full: A(f"s_waitcnt lgkmcnt({7-rho+nnew})")
            A(mm(tau, af(rho), FB+4*rho))
            if rho >= 1 and CVT: A(CVT.pop(0))
            if tau + 1 < 8: A(mm(tau+1, af(8+rho), FB+4*rho))
            if tau < 7:
                A(rdF(tau+1, rho)); nnew += 1
                if rho == 0 and npairs(tau+1): A(rdG(tau+1)); nnew += 1
                if tau == 0 and rho < 5 and not TPRE:
                    for x in TR[4*rho:4*rho+4]: A(x)
            if rho >= 1 and CVT: A(CVT.pop(0))
            if rho == 3 and not npair:
                for x in ST: A(x)
                ST = []
        assert not CVT
        if tau == 0 and not TPRE: A("s_waitcnt lgkmcnt(3)")
        for m in (far(tau) if npair else []):
            A(m)
            if ST: A(ST.pop(0))
        for x in ST: A(x)
    for p in range(0 if opt("bspread", 1) else 3):
        for x in wide_store(p): A(x)
    for x in store(7) + wide_store(3): A(x)
    stamp()
    p2_ids()
    p2_common_setup()
    p2_compute_setup()
    A("s_waitcnt vmcnt(0)\ns_barrier\ns_branch K_P2L")

KVS = 576
L2_WO = 0
L2_PQ = 65536
L2_KV = 131072
L2_B = L2_KV + 32*KVS
L2_G = L2_B + 8192
assert L2_G + 256 <= 163840
def p2_ids():
    A("""
    s_and_b32 s4, s2, 7
    s_lshr_b32 s5, s2, 3
    s_and_b32 s6, s4, 3
    s_lshl_b32 s6, s6, 3
    s_lshr_b32 s7, s4, 2
    s_lshl_b32 s7, s7, 2
    s_add_u32 s6, s6, s7
    s_and_b32 s7, s5, 3
    s_add_u32 s6, s6, s7         ; rt (0..31)
    s_lshr_b32 s7, s5, 2         ; ct (0..7)
    s_and_b32 s8, s3, 1          ; sw
    s_bfe_u32 s9, s3, 0x10001    ; kw
    """)
def wo_setup():
    A(f"""
    s_lshl_b32 s12, s9, 8
    s_lshl_b32 s13, s8, 4
    s_add_u32 s12, s12, s13      ; first wo row: 256kw + 16sw
    v_lshrrev_b32 v14, 3, v0
    v_add_u32 v14, s12, v14
    v_lshlrev_b32 v14, 10, v14
    v_bfe_u32 v15, v0, 4, 1
    v_lshlrev_b32 v15, 2, v15
    v_and_b32 v13, 7, v0
    v_xor_b32 v15, v15, v13
    v_lshl_add_u32 v14, v15, 4, v14
    s_lshl_b32 s13, s7, 7
    v_add_u32 v14, s13, v14      ; wo source
    s_lshl_b32 s12, s12, 7
    s_add_u32 s12, s12, {L2_WO}  ; wo lds base
    """)
    srd(SA, P_WO, 0x80000)
def wo_touch(dst):
    A(f"""
    s_and_b32 s60, s6, 3
    s_lshl_b32 s60, s60, 2
    s_and_b32 s61, s3, 3
    s_add_u32 s60, s60, s61
    s_lshl_b32 s60, s60, 15
    s_lshl_b32 s61, s7, 7
    s_add_u32 s60, s60, s61
    v_and_b32 v{dst}, 31, v0
    v_lshlrev_b32 v{dst}, 10, v{dst}
    v_add_u32 v{dst}, s60, v{dst}
    global_load_dword v{dst}, v{dst}, s[{P_WO}:{P_WO+1}]
    """)
def wo_dma(st):
    A(f"s_add_u32 s61, s7, {st}\ns_and_b32 s61, s61, 7\ns_lshl_b32 s61, s61, 15")
    for i in range(2):
        A(f"s_add_u32 m0, s12, {st*4096+i*1024}\ns_add_u32 s60, s61, {i*8192}")
        A(f"buffer_load_dwordx4 v14, s[{SA}:{SA+3}], s60 offen lds")

CE = 96
def p2_common_setup(): pass

def p2_early_setup():
    A(f"""
    v_lshlrev_b32 v1, 4, v0
    s_lshl_b32 s13, s8, 5
    s_lshl_b32 s14, s9, 4
    s_add_u32 s13, s13, s14
    s_lshl_b32 s13, s13, 10
    s_lshl_b32 s10, s6, 16
    s_add_u32 s10, s10, s13
    v_add_u32 v2, s10, v1
    s_add_u32 s13, s13, {L2_PQ}
    s_add_u32 s14, s14, s8
    s_mul_i32 s10, s14, {HS}
    s_add_u32 s10, s10, {hex(KV_OFF)}
    v_add_u32 v3, s10, v1
    v_bfe_u32 v6, v0, 2, 3
    v_add_u32 v4, s7, v6
    v_and_b32 v4, 7, v4
    v_mul_u32_u24 v4, {2*HS}, v4
    v_and_b32 v7, 3, v0
    v_lshl_add_u32 v4, v7, 4, v4
    v_add_u32 v4, s10, v4        ; z source (+1024)
    v_lshlrev_b32 v5, 4, v7
    v_add_u32 v5, s10, v5
    s_mul_i32 s10, s14, {KVS}
    s_add_u32 s10, s10, {L2_KV}
    v_lshlrev_b32 v12, 3, v0
    v_add_u32 v12, s10, v12
    v_mul_u32_u24 v13, {2*KVS}, v6
    v_xor_b32 v7, 2, v7
    v_lshl_add_u32 v13, v7, 3, v13
    v_add_u32 v13, s10, v13
    v_lshlrev_b32 v14, 3, v7
    v_add_u32 v14, s10, v14
    v_lshrrev_b32 v10, 3, v0
    s_lshl_b32 s10, s7, 6
    v_add_u32 v10, s10, v10
    v_lshlrev_b32 v10, 12, v10
    v_bfe_u32 v6, v0, 4, 1
    v_lshlrev_b32 v6, 2, v6
    v_and_b32 v7, 7, v0
    v_xor_b32 v6, v6, v7
    v_lshl_add_u32 v10, v6, 4, v10
    s_lshl_b32 s10, s6, 7
    s_add_u32 s10, s10, {hex(BT_OFF)}
    v_add_u32 v10, s10, v10      ; b source
    v_lshlrev_b32 v11, 2, v0     ; lane*4
    s_lshl_b32 s11, s5, 4
    v_add_u32 v8, s11, v0
    s_add_u32 s11, s11, 8
    s_add_u32 s10, s11, s7
    v_writelane_b32 v8, s10, 8   ; b producers
    s_add_u32 s10, s11, s4
    v_writelane_b32 v8, s10, 9   ; g producers
    v_lshlrev_b32 v8, 8, v8
    v_add_u32 v8, {hex(CT_OFF)}, v8
    """)
    for n in range(8):
        A(f"s_add_u32 s{64+n}, s7, {n}\ns_and_b32 s{64+n}, s{64+n}, 7")

def p2_compute_setup():
    A(f"""
    v_lshlrev_b32 v1, 4, v0
    s_lshl_b32 s10, s6, 1
    s_add_u32 s10, s10, s8       ; rb
    v_and_b32 v6, 31, v0
    v_lshrrev_b32 v9, 5, v0      ; hf
    v_min_u32 v3, 16, v6
    v_lshrrev_b32 v4, 4, v3
    v_xor_b32 v4, v4, v9
    v_lshlrev_b32 v3, 5, v3
    v_lshl_add_u32 v3, v4, 4, v3
    s_mul_i32 s11, s9, {16*KVS}
    s_add_u32 s11, s11, {L2_KV}
    v_add_u32 v3, s11, v3
    v_bfe_u32 v7, v0, 2, 2
    v_lshl_add_u32 v7, v9, 2, v7
    v_lshlrev_b32 v7, 7, v7
    v_bfe_u32 v5, v0, 4, 1
    v_lshl_add_u32 v7, v5, 5, v7
    v_and_b32 v5, 3, v0
    v_lshl_add_u32 v7, v5, 3, v7
    v_bfe_u32 v5, v0, 3, 1
    v_lshl_add_u32 v7, v5, 6, v7
    s_lshl_b32 s11, s9, 15
    v_add_u32 v4, s11, v7
    s_lshl_b32 s11, s9, 6
    v_xor_b32 v4, s11, v4        ; wo read, tile jt=kw
    v_xor_b32 v5, 64, v4         ; wo read, other tile
    s_lshl_b32 s13, s7, 6
    s_lshl_b32 s14, s9, 5
    s_add_u32 s13, s13, s14
    s_lshl_b32 s14, s10, 5
    v_add_u32 v8, s14, v6        ; row
    v_lshlrev_b32 v12, 10, v8
    v_lshl_add_u32 v12, v9, 4, v12
    s_lshl_b32 s13, s13, 1
    v_add_u32 v12, s13, v12
    s_lshl_b32 s11, s8, 7
    s_add_u32 s11, s11, {L2_G}
    v_lshlrev_b32 v11, 2, v6
    v_add_u32 v11, s11, v11      ; g read
    s_lshl_b32 s11, s8, 6
    v_xor_b32 v10, s11, v7
    s_lshl_b32 s11, s9, 12
    s_add_u32 s11, s11, {L2_B}
    v_add_u32 v10, s11, v10
    s_lshl_b32 s11, s8, 5
    s_lshl_b32 s14, s9, 4
    s_add_u32 s11, s11, s14
    s_lshl_b32 s11, s11, 10
    s_add_u32 s11, s11, {L2_PQ}
    v_add_u32 v2, s11, v1
    v_xor_b32 v9, {16*1024}, v2
    """)
    for i in range(16): A(f"v_mov_b32 v{CE+i}, {hex(EPS) if i >= 8 else 0}")
    srd(SB, P_OUT, 0x200000)

def leader_branch(label, taken_if_leader):
    A(f"s_cmp_eq_u32 s3, 4\ns_cbranch_scc{1 if taken_if_leader else 0} {label}")
def poll_issue():
    A(f"v_mov_b32 v15, 0\nbuffer_atomic_add v15, v8, s[{WS}:{WS+3}], 0 offen sc0 sc1")
def poll_until(tag, mask, first_in_flight):
    A(f"s_mov_b32 s61, 0\ns_mov_b64 exec, {hex(mask)}")
    if first_in_flight: A(f"s_branch K_PW_{tag}")
    A(f"K_PI_{tag}:")
    poll_issue()
    A(f"""
K_PW_{tag}:
    s_add_u32 s61, s61, 1
    s_waitcnt vmcnt(0)
    v_cmp_ne_u32 vcc, 16, v15
    s_cbranch_vccz K_PX_{tag}
    {f"s_sleep {opt('psl', 0)}" if opt('psl', 0) else ""}
    s_cmp_lt_u32 s61, 0x40000
    s_cbranch_scc1 K_PI_{tag}
K_PX_{tag}:
    s_mov_b64 exec, -1
    """)

BARS = [int(c) for c in opt("bars", "12468")]
def p2_early():
    A("K_P2E:")
    if STAMP:
        A("s_waitcnt lgkmcnt(0)\ns_cmp_ge_u32 s2, 128\ns_cbranch_scc1 K_STE")
        for k in range(3): A(f"v_writelane_b32 v254, s{72+2*k}, {8+k}")
        A("K_STE:")
    st_set(12)
    A("s_waitcnt vmcnt(0)")
    stamp()
    A("s_barrier")
    leader_branch("K_NOLEAD", False)
    A(f"""
    v_mov_b32 v61, 1
    s_mov_b32 exec_hi, 0
    buffer_atomic_add v61, v58, s[{WS}:{WS+3}], s62 offen sc1
    """)
    poll_until("A", 0xff, False)
    A("K_NOLEAD:\ns_barrier")
    stamp()
    KR = 16; ZR = 64
    ZS = opt("zs", 1)
    GN = 4 if ZS else 3
    def group(n):
        A(f"s_mul_i32 s60, s{64+n}, {2*HS}")
        if ZS: A(f"buffer_load_dwordx4 v[{ZR+4*n}:{ZR+4*n+3}], v5, s[{WS}:{WS+3}], s60 offen offset:1024 sc1")
        A(f"buffer_load_dwordx4 v[{KR+4*n}:{KR+4*n+3}], v3, s[{WS}:{WS+3}], s60 offen sc1")
        A(f"s_add_u32 m0, s13, {n*2048}\ns_lshl_b32 s60, s{64+n}, 11")
        for i in range(2): A(f"buffer_load_dwordx4 v2, s[{WS}:{WS+3}], s60 offen offset:{i*1024} sc1 lds")
    if not ZS: A(f"buffer_load_dwordx4 v[48:51], v4, s[{WS}:{WS+3}], 0 offen offset:1024 sc1")
    LA = opt("k2la", 3)
    issued = 0
    for n in range(8):
        while issued < (opt("la0", 3) if n == 0 else min(8, n + 1 + LA)):
            group(issued); issued += 1
            if issued == 8:
                leader_branch("K_NOP2", False)
                A("s_mov_b64 exec, 0x300"); poll_issue(); A("s_mov_b64 exec, -1\nK_NOP2:")
        r = KR + 4*n
        A(f"s_waitcnt vmcnt({GN*(issued-1-n) + 2})")
        if n == 0 and not ZS:
            A("v_cvt_pk_bf16_f32 v48, v48, v49\nv_cvt_pk_bf16_f32 v49, v50, v51\ns_mov_b32 exec_hi, 0\nds_write_b64 v13, v[48:49] offset:512\ns_mov_b32 exec_hi, -1")
        A(f"v_cvt_pk_bf16_f32 v{r}, v{r}, v{r+1}\nv_cvt_pk_bf16_f32 v{r+1}, v{r+2}, v{r+3}")
        A(f"ds_write_b64 v12, v[{r}:{r+1}] offset:{2*n*KVS}")
        if ZS:
            z = ZR + 4*n
            A(f"v_cvt_pk_bf16_f32 v{z}, v{z}, v{z+1}\nv_cvt_pk_bf16_f32 v{z+1}, v{z+2}, v{z+3}")
            A(f"ds_write_b64 v14, v[{z}:{z+1}] offset:{2*n*KVS+512}")
        if n + 1 in BARS:
            if n == 7:
                leader_branch("K_LEADB", True)
                A("s_waitcnt vmcnt(0) lgkmcnt(0)\ns_barrier")
                flush()
                A("s_endpgm\nK_LEADB:\ns_waitcnt vmcnt(1) lgkmcnt(0)")
            else:
                A(f"s_waitcnt vmcnt({GN*(issued-1-n)}) lgkmcnt(0)")
            if n in (0, 3, 7): stamp()
            A("s_barrier")
    poll_until("B", 0x300, True)
    stamp()
    A(f"s_lshl_b32 s60, s6, 8\ns_add_u32 s60, s60, {hex(G_OFF)}\nbuffer_load_dword v56, v11, s[{WS}:{WS+3}], s60 offen sc1")
    for i in range(8):
        A(f"s_mov_b32 s60, {i*32768}")
        A(f"buffer_load_dwordx4 v[{16+4*i}:{19+4*i}], v10, s[{WS}:{WS+3}], s60 offen sc1")
    A(f"v_add_u32 v11, {L2_G}, v11\nv_add_u32 v1, {L2_B}, v1\ns_waitcnt vmcnt(8)\nds_write_b32 v11, v56")
    for i in range(8): A(f"s_waitcnt vmcnt({7-i})\nds_write_b128 v1, v[{16+4*i}:{19+4*i}] offset:{i*1024}")
    A("s_waitcnt lgkmcnt(0)")
    stamp()
    A("s_barrier")
    flush()

def p2_late():
    A("K_P2L:")
    if STAMP:
        A("s_waitcnt lgkmcnt(0)")
        for k in range(8): A(f"v_writelane_b32 v254, s{72+2*k}, {1+k}")
    st_set(12)
    ACC = (112, 128); OD = (64, 80); KF = (16, 20, 24, 28); PF = (32, 36, 40, 44); WF = (160, 168, 176); OF = (48, 52); BB = 144; BR = 56
    stamp()
    A("s_barrier")
    stamp()
    A("s_waitcnt vmcnt(0)\ns_barrier")
    stamp()
    def rd_kp(h): return [f"ds_read_b128 v[{KF[h%4]}:{KF[h%4]+3}], v3 offset:{h*KVS}", f"ds_read_b128 v[{PF[h%4]}:{PF[h%4]+3}], v2 offset:{h*1024}"]
    def rd_wo(h):
        b = WF[h % 3]
        return [f"ds_read_b64_tr_b16 v[{b+4*jt+2*t}:{b+4*jt+2*t+1}], v{4+jt} offset:{h*2048+t*1024}" for jt in (1, 0) for t in range(2)]
    def omf(h): return f"v_mfma_f32_32x32x16_bf16 v[{OD[h%2]}:{OD[h%2]+15}], v[{KF[h%4]}:{KF[h%4]+3}], v[{PF[h%4]}:{PF[h%4]+3}], v[{CE}:{CE+15}]"
    def norm(h):
        d = OD[h % 2]; o = OF[h & 1]
        return [f"v_rcp_f32 v{d+8}, v{d+8}"] + [f"v_mul_f32 v{d+i}, v{d+i}, v{d+8}" for i in range(8)] + [f"v_cvt_pk_bf16_f32 v{o+i}, v{d+2*i}, v{d+2*i+1}" for i in range(4)]
    def proj(h, jt):
        b = WF[h % 3]; o = OF[h & 1]
        c = "0" if h == 0 else f"v[{ACC[jt]}:{ACC[jt]+15}]"
        return f"v_mfma_f32_32x32x16_bf16 v[{ACC[jt]}:{ACC[jt]+15}], v[{b+4*jt}:{b+4*jt+3}], v[{o}:{o+3}], {c}"
    avail = 2*BARS[0]; nb = 1
    for x in rd_kp(0) + rd_kp(1): A(x)
    out = [("k", 0)]*2 + [("k", 1)]*2
    nk = 2
    for i in range(18):
        last = max([k for k, t in enumerate(out) if t in {("k", i), ("wo", i-2)}], default=-1)
        if last >= 0:
            A(f"s_waitcnt lgkmcnt({len(out)-1-last})"); del out[:last+1]
        N = norm(i-1) if 0 <= i-1 < 16 else []
        if i < 16: A(omf(i))
        if nk == avail and nk < 16 and nk == i + 1:
            A("s_barrier"); avail = 2*BARS[nb]; nb += 1
        R = []
        while nk < min(avail, i + 3):
            R += [(x, ("k", nk)) for x in rd_kp(nk)]; nk += 1
        if i < 16: R += [(x, ("wo", i)) for x in rd_wo(i)]
        def emit(n):
            for x, t in R[:n]:
                A(x); out.append(t)
            del R[:n]
        emit(2)
        for x in N[:1]: A(x)
        if len(R) > 4: emit(2)
        for x in N[1:3]: A(x)
        if 0 <= i-2: A(proj(i-2, 1))
        emit(2)
        for x in N[3:8]: A(x)
        if 0 <= i-2: A(proj(i-2, 0))
        emit(2)
        for x in N[8:]: A(x)
    assert nb == len(BARS)
    stamp()
    for g in range(4): A(f"ds_write_b128 v2, v[{ACC[1]+4*g}:{ACC[1]+4*g+3}] offset:{g*1024}")
    A("s_waitcnt lgkmcnt(0)\ns_barrier")
    A("ds_read_b32 v13, v11")
    for g in range(4): A(f"ds_read_b64_tr_b16 v[{BR+2*g}:{BR+2*g+1}], v10 offset:{g*1024}")
    for g in range(4): A(f"ds_read_b128 v[{16+4*g}:{19+4*g}], v9 offset:{g*1024}")
    A("s_waitcnt lgkmcnt(4)")
    A("v_sub_f32 v14, 1.0, v13\nv_mov_b32 v40, v13\nv_mov_b32 v41, v13\nv_mov_b32 v15, v14")
    for p in range(2):
        r = range(8*p, 8*p+8, 2)
        for i in range(4*p, 4*p+4):
            A(f"v_lshlrev_b32 v{BB+2*i}, 16, v{BR+i}")
            A(f"v_and_b32 v{BB+2*i+1}, 0xffff0000, v{BR+i}")
        A(f"s_waitcnt lgkmcnt({2-2*p})")
        for i in r: A(f"v_pk_add_f32 v[{16+i}:{17+i}], v[{16+i}:{17+i}], v[{ACC[0]+i}:{ACC[0]+i+1}]")
        for i in r: A(f"v_pk_mul_f32 v[{BB+i}:{BB+i+1}], v[14:15], v[{BB+i}:{BB+i+1}]")
        for i in r: A(f"v_pk_fma_f32 v[{BB+i}:{BB+i+1}], v[40:41], v[{16+i}:{17+i}], v[{BB+i}:{BB+i+1}]")
        for i in range(4*p, 4*p+4): A(f"v_cvt_pk_bf16_f32 v{32+i}, v{BB+2*i}, v{BB+2*i+1}")
        A(f"v_permlane32_swap_b32 v{32+4*p}, v{34+4*p}")
        A(f"v_permlane32_swap_b32 v{33+4*p}, v{35+4*p}")
        A(f"buffer_store_dwordx4 v[{32+4*p}:{35+4*p}], v12, s[{SB}:{SB+3}], 0 offen offset:{32*p}")
    stamp()
    if STAMP: A("s_waitcnt vmcnt(0)")
    stamp()
    flush()

main()
lines, errs = hazard_pass(A.lines)
for e in errs: print(e, file=sys.stderr)
out = open("gated_mix__linear_attn_block__ssm_conv_s4__prompt.s.ref").read().split("; Override launch")[0]
out += "; @launch grid=(256,1,1) block=(512,1,1) lds=163840\n"
out += f'.amdgcn_target "amdgcn-amd-amdhsa--gfx950"\n.text\n.globl {KN}\n.type {KN},@function\n'
out += "\n".join(lines) + "\n"
T = ssm_tables()
out += ".p2align 8\n.type K_TABLE,@object\nK_TABLE:\n"
for i in range(0, len(T), 8):
    out += ".long " + ", ".join(hex(x) for x in T[i:i+8]) + "\n"
out += f".size K_TABLE, {4*len(T)}\nCODE_END:\n"
out += '.section .rodata,"a"\n' + kernel_desc(KN, 256, 102, 256)
fn = [x for x in sys.argv[1:] if not x.startswith("--")][0]
open(fn, "w").write(out)
```
